```python
import torch

def _softmax(x, axis=-1):
    return torch.softmax(x, dim=axis)
def _gelu(x):
    return torch.nn.functional.gelu(x, approximate="tanh")
def _silu(x):
    return torch.nn.functional.silu(x)
def _sigmoid(x):
    return torch.sigmoid(x)
def _layernorm(x, axis=-1, eps=1e-5):
    m = x.mean(dim=axis, keepdim=True)
    v = x.var(dim=axis, keepdim=True, unbiased=False)
    return (x - m) / torch.sqrt(v + eps)
def _scatter_add(tgt, idx, src, axis=0):
    return tgt.clone().index_add_(axis, idx, src)
def _segment_sum(src, seg, n):
    out = torch.zeros((n,) + src.shape[1:], dtype=src.dtype)
    return out.index_add_(0, seg, src)
def _pad(x, pw):
    flat = tuple(v for pair in reversed(pw) for v in pair)
    return torch.nn.functional.pad(x, flat)

kernel_name = 'standalone__paged_block_table_kv_pagedattention__sampling'

def setup_inputs():

    _w = (lambda a: (lambda t: t.to(torch.bfloat16) if t.is_floating_point() else t)(torch.as_tensor(a)))
    B, Hq, Hkv, Sq, Skv, D = 32, 32, 8, 16, 2048, 128
    bs = 16
    nbps = max(1, Skv // bs)
    num_phys = B * nbps + 4
    bt = torch.randperm(num_phys)[: B * nbps].reshape(B, nbps).to(torch.int64)
    cl = (nbps * bs - (torch.arange(1, B + 1, dtype=torch.int64) * 2654435761) % max(1, nbps * bs // 2)).to(torch.int64)
    return {
        "q": _w((lambda *s: torch.randn(*s, dtype=torch.bfloat16) * 0.8)(B, Hq, Sq, D)),
        "k_cache": _w((lambda *s: torch.randn(*s, dtype=torch.bfloat16) * 0.8)(num_phys, bs, Hkv, D)),
        "v_cache": _w((lambda *s: torch.randn(*s, dtype=torch.bfloat16) * 0.05)(num_phys, bs, Hkv, D)),
        "block_table": _w(bt),
        "context_lens": _w(cl),
    }

def reference(q, k_cache, v_cache, block_table, context_lens):
    B, Hq, Sq, D = q.shape
    bs = k_cache.shape[1]
    Hkv = k_cache.shape[2]
    nbps = block_table.shape[1]
    Skv = nbps * bs
    bt = block_table.reshape(-1)
    k = (lambda x, *d: x.permute(*d))(k_cache[bt].reshape(B, Skv, Hkv, D), 0, 2, 1, 3)
    v = (lambda x, *d: x.permute(*d))(v_cache[bt].reshape(B, Skv, Hkv, D), 0, 2, 1, 3)
    g = Hq // Hkv
    qg = q.reshape(B, Hkv, g, Sq, D)
    scores = torch.einsum("bhgqd,bhkd->bhgqk", qg, k) * (D ** -0.5)
    pos = torch.arange(Skv)
    msk = pos[None, :] < context_lens[:, None]
    scores = torch.where(msk[:, None, None, None, :], scores, -1e9)
    p = _softmax(scores, axis=-1)
    out = torch.einsum("bhgqk,bhkd->bhgqd", p, v)
    return out.reshape(B, Hq, Sq, D)
```

```python
import sys, struct, math

NAME = "standalone__paged_block_table_kv_pagedattention__sampling_kernel"
KV_BYTES = 4100 * 32768
Q_BYTES = 32 * 32 * 16 * 128 * 2

def f32bits(x):
    return struct.unpack("<I", struct.pack("<f", x))[0]

class Gen:
    def __init__(self, D=8, nt=False, stamps=False):
        self.o = []
        self.D = D
        self.nt = nt
        self.stamps = stamps
    def e(self, s):
        self.o.append("    " + s)
    def lab(self, s):
        self.o.append(s + ":")
    def c(self, s):
        self.o.append("    ; " + s)

S_KSRD = 4
S_VSRD = 8
S_XSRD = 12
S_BSRD = 76
S_MASK = 32
S_CL, S_CLE, S_W, S_NT, S_NP, S_KM, S_REM, S_NLOC = 64, 65, 66, 67, 68, 69, 70, 71
S_J2, S_C, S_LB, S_K = 72, 73, 74, 75
S_P0, S_P1, S_T0, S_T1, S_QO0, S_QO1 = 80, 81, 82, 83, 84, 85
S_J = 86
V_LANE = 1
V_KA = 8
V_VA = 16
V_DK = 20
V_DV = 24
V_BT = 28
V_M = 29
V_L0, V_L1 = 30, 31
V_T0, V_T1, V_T2, V_T3 = 32, 33, 34, 35
V_MA, V_MB = 36, 37
V_AA, V_AB = 38, 40
V_R = 42
V_OO = 43
V_EW = 44
V_ER = 45
V_P = 80
V_S = 96
V_O = 128
A_Q = 0
A_K = 64
A_V = 96

def vr(b, n): return f"v[{b}:{b+n-1}]"
def ar(b, n): return f"a[{b}:{b+n-1}]"
def sr(b, n): return f"s[{b}:{b+n-1}]"

def issue_item(g, kind, slot, lane_const_sreg):
    srd = S_KSRD if kind < 2 else S_VSRD
    vb = V_DK if kind < 2 else V_DV
    nt = " nt" if g.nt else ""
    out = []
    out.append(f"s_add_u32 m0, s{S_LB}, {slot*4096}")
    out.append("s_nop 0")
    for i in range(4):
        out.append(f"buffer_load_dwordx4 v{vb+i}, {sr(srd,4)}, s{lane_const_sreg} offen offset:{i*1024}{nt} lds")
    return out

def lookup(g, n_rel, sreg, tmp):
    lane = 2 * (n_rel >> 2) + (n_rel & 1)
    return [f"s_add_u32 s{tmp}, s{S_J2}, {lane}",
            f"v_readlane_b32 s{sreg}, v{V_BT}, s{tmp}"]

def tile(g, e, tag):
    D = g.D
    W = 4 * (D - 2)
    base = e * 16384
    g.c(f"---- tile parity {e}: QK")
    nA = D
    for l in lookup(g, nA, S_P0, S_T0) + lookup(g, nA + 1, S_P1, S_T1): g.e(l)
    g.e(f"s_waitcnt vmcnt({W})")
    for st in range(8):
        g.e(f"ds_read_b128 {ar(A_K+4*st,4)}, v{V_KA+st} offset:{base}")
    dma = issue_item(g, nA & 3, (4*e + nA) & 7, S_P0) + issue_item(g, (nA+1) & 3, (4*e + nA + 1) & 7, S_P1)
    def mf(st, qh):
        cc = "0" if st == 0 else vr(V_S+16*qh, 16)
        g.e(f"v_mfma_f32_32x32x16_bf16 {vr(V_S+16*qh,16)}, {ar(A_K+4*st,4)}, {ar(A_Q+(qh*8+st)*4,4)}, {cc}")
    g.e("s_waitcnt lgkmcnt(7)")
    mf(0,0); mf(0,1)
    g.e("s_waitcnt lgkmcnt(6)")
    mf(1,0); mf(1,1)
    g.e("s_waitcnt lgkmcnt(0)")
    seq = [(st,qh) for st in range(2,8) for qh in range(2)]
    di = 0
    for idx,(st,qh) in enumerate(seq):
        mf(st,qh)
        if di < len(dma):
            g.e(dma[di]); di += 1
    while di < len(dma):
        g.e(dma[di]); di += 1
    g.e("s_nop 7"); g.e("s_nop 3")
    g.e(f"s_cmp_lt_u32 s{S_K}, s{S_KM}")
    g.e(f"s_cbranch_scc1 L_nomask_{tag}")
    for j in range(16):
        for qh in range(2):
            r = V_S + 16*qh + j
            g.e(f"v_cndmask_b32 v{r}, v{V_R}, v{r}, {sr(S_MASK+2*j,2)}")
    g.lab(f"L_nomask_{tag}")
    g.c("row max")
    s0, s1 = V_S, V_S + 16
    g.e(f"v_max3_f32 v{V_T0}, v{s0}, v{s0+1}, v{s0+2}")
    g.e(f"v_max3_f32 v{V_T1}, v{s1}, v{s1+1}, v{s1+2}")
    for k in range(3, 15, 2):
        g.e(f"v_max3_f32 v{V_T0}, v{V_T0}, v{s0+k}, v{s0+k+1}")
        g.e(f"v_max3_f32 v{V_T1}, v{V_T1}, v{s1+k}, v{s1+k+1}")
    g.e(f"v_max_f32 v{V_T0}, v{V_T0}, v{s0+15}")
    g.e(f"v_max_f32 v{V_T1}, v{V_T1}, v{s1+15}")
    g.e("s_nop 1")
    g.e(f"v_permlane32_swap_b32 v{V_T0}, v{V_T1}")
    g.e(f"v_max_f32 v{V_T0}, v{V_T0}, v{V_T1}")
    g.e(f"v_mul_f32 v{V_T0}, s{S_C}, v{V_T0}")
    g.e(f"v_max_f32 v{V_MA}, v{V_M}, v{V_T0}")
    g.e(f"v_sub_f32 v{V_T1}, v{V_M}, v{V_MA}")
    g.e(f"v_cmp_gt_f32 vcc, v{V_MA}, v{V_M}")
    g.e(f"v_exp_f32 v{V_AA}, v{V_T1}")
    g.e(f"v_mov_b32 v{V_M}, v{V_MA}")
    g.e(f"v_mov_b32 v{V_MB}, v{V_MA}")
    g.e(f"v_mov_b32 v{V_AB}, v{V_AA}")
    g.e("s_nop 1")
    g.e(f"v_permlane32_swap_b32 v{V_MA}, v{V_MB}")
    g.e(f"v_permlane32_swap_b32 v{V_AA}, v{V_AB}")
    g.e(f"s_cbranch_vccz L_noresc_{tag}")
    for db in range(4):
        for qh in range(2):
            al = V_AA if qh == 0 else V_AB
            for k in range(0, 16, 2):
                r = V_O + (db*2+qh)*16 + k
                g.e(f"v_pk_mul_f32 {vr(r,2)}, {vr(r,2)}, {vr(al,2)} op_sel_hi:[1,0]")
    g.lab(f"L_noresc_{tag}")
    g.c("p = exp2(s*c - m)")
    for j in range(16):
        for qh in range(2):
            r = V_S + 16*qh + j
            m = V_MA if qh == 0 else V_MB
            g.e(f"v_fma_f32 v{r}, v{r}, s{S_C}, -v{m}")
    for j in range(16):
        for qh in range(2):
            r = V_S + 16*qh + j
            g.e(f"v_exp_f32 v{r}, v{r}")
    g.e(f"v_fma_f32 v{V_L0}, v{V_L0}, v{V_AA}, v{s0}")
    g.e(f"v_fma_f32 v{V_L1}, v{V_L1}, v{V_AB}, v{s1}")
    g.e(f"v_add_f32 v{V_T0}, v{s0+1}, v{s0+2}")
    g.e(f"v_add_f32 v{V_T1}, v{s1+1}, v{s1+2}")
    for k in range(3, 16):
        d0 = V_L0 if (k & 1) else V_T0
        d1 = V_L1 if (k & 1) else V_T1
        g.e(f"v_add_f32 v{d0}, v{d0}, v{s0+k}")
        g.e(f"v_add_f32 v{d1}, v{d1}, v{s1+k}")
    for qh in range(2):
        for ts in range(2):
            for r in range(4):
                src = V_S + 16*qh + 8*ts + 2*r
                g.e(f"v_cvt_pk_bf16_f32 v{V_P + (qh*2+ts)*4 + r}, v{src}, v{src+1}")
    g.e(f"v_add_f32 v{V_L0}, v{V_L0}, v{V_T0}")
    g.e(f"v_add_f32 v{V_L1}, v{V_L1}, v{V_T1}")
    g.c("PV")
    nB = D + 2
    for l in lookup(g, nB, S_P0, S_T0) + lookup(g, nB + 1, S_P1, S_T1): g.e(l)
    g.e(f"s_waitcnt vmcnt({W})")
    reads = []
    for db in range(4):
        for ts in range(2):
            for u in range(2):
                reads.append(f"ds_read_b64_tr_b16 {ar(A_V+(db*2+ts)*4+2*u,2)}, v{V_VA+db} offset:{base+ts*4096+u*2048}")
    dma = issue_item(g, nB & 3, (4*e + nB) & 7, S_P0) + issue_item(g, (nB+1) & 3, (4*e + nB + 1) & 7, S_P1)
    def pv(db, ts, qh):
        o = vr(V_O + (db*2+qh)*16, 16)
        g.e(f"v_mfma_f32_32x32x16_bf16 {o}, {ar(A_V+(db*2+ts)*4,4)}, {vr(V_P+(qh*2+ts)*4,4)}, {o}")
    for r in reads[:12]: g.e(r)
    g.e("s_waitcnt lgkmcnt(10)")
    pv(0,0,0); pv(0,0,1)
    for r in reads[12:]: g.e(r)
    g.e("s_waitcnt lgkmcnt(12)")
    pv(0,1,0); pv(0,1,1)
    g.e("s_waitcnt lgkmcnt(0)")
    seq = [(db,ts,qh) for db in range(1,4) for ts in range(2) for qh in range(2)]
    di = 0
    for (db,ts,qh) in seq:
        pv(db,ts,qh)
        if di < len(dma):
            g.e(dma[di]); di += 1
    while di < len(dma):
        g.e(dma[di]); di += 1
    g.e(f"s_add_u32 s{S_J2}, s{S_J2}, 2")
    g.e(f"s_add_u32 s{S_K}, s{S_K}, 4")
    g.e(f"s_add_u32 s{S_J}, s{S_J}, 1")

def build(D=8, nt=False):
    g = Gen(D, nt)
    c = (128 ** -0.5) * math.log2(math.e)
    R = -1e9 * math.sqrt(128.0)
    hdr = open("standalone__paged_block_table_kv_pagedattention__sampling.s.ref").read().split("\n")
    head = [l for l in hdr if l.startswith(";") and "@launch" not in l and "Override launch" not in l and "grid=ceil" not in l]
    LDS = 131072 + 2048
    out = head + [f"; @launch grid=(256,1,1) block=(256,1,1) lds={LDS}",
        '.amdgcn_target "amdgcn-amd-amdhsa--gfx950"', ".text", f".globl {NAME}", ".p2align 8",
        f".type {NAME},@function", f"{NAME}:"]
    e = g.e
    e("s_cmp_ge_u32 s2, 256")
    e("s_cbranch_scc1 L_end")
    e("s_load_dwordx16 s[16:31], s[0:1], 0")
    e(f"v_and_b32 v{V_LANE}, 63, v0")
    e("v_lshrrev_b32 v2, 6, v0")
    e(f"v_lshrrev_b32 v3, 5, v{V_LANE}")
    e(f"v_readfirstlane_b32 s{S_W}, v2")
    e(f"v_and_b32 v4, 31, v{V_LANE}")
    e("s_lshr_b32 s3, s2, 3")
    e(f"s_and_b32 s{S_T0}, s2, 7")
    e(f"s_lshl_b32 s{S_T0}, s{S_T0}, 8")
    e(f"s_lshl_b32 s{S_LB}, s{S_W}, 15")
    e(f"v_lshrrev_b32 v5, 1, v{V_LANE}")
    e("v_lshlrev_b32 v5, 3, v5")
    e(f"v_and_b32 v6, 1, v{V_LANE}")
    e("v_add_u32 v5, v5, v6")
    e(f"s_lshl_b32 s{S_T1}, s{S_W}, 1")
    e(f"v_add_u32 v5, s{S_T1}, v5")
    e("v_lshlrev_b32 v6, 2, v5")
    e(f"s_lshl_b32 s{S_P0}, s3, 9")
    e("v_lshlrev_b32 v7, 8, v4")
    e("v_lshl_add_u32 v7, v3, 4, v7")
    e(f"s_lshl_b32 s{S_QO0}, s2, 14")
    e(f"s_add_u32 s{S_QO1}, s{S_QO0}, 8192")
    e(f"s_lshl_b32 s{S_P1}, s3, 2")
    e("s_waitcnt lgkmcnt(0)")
    e(f"s_load_dword s{S_CL}, s[24:25], s{S_P1}")
    e(f"s_mov_b32 s{S_BSRD}, s22"); e(f"s_mov_b32 s{S_BSRD+1}, s23")
    e(f"s_mov_b32 s{S_BSRD+2}, 16384"); e(f"s_mov_b32 s{S_BSRD+3}, 0x20000")
    e(f"buffer_load_dword v{V_BT}, v6, {sr(S_BSRD,4)}, s{S_P0} offen")
    e(f"s_mov_b32 s{S_XSRD}, s16"); e(f"s_mov_b32 s{S_XSRD+1}, s17")
    e(f"s_mov_b32 s{S_XSRD+2}, {Q_BYTES}"); e(f"s_mov_b32 s{S_XSRD+3}, 0x20000")
    for qh in range(2):
        for st in range(8):
            so = S_QO0 if qh == 0 else S_QO1
            e(f"buffer_load_dwordx4 {ar(A_Q+(qh*8+st)*4,4)}, v7, {sr(S_XSRD,4)}, s{so} offen offset:{st*32}")
    e(f"s_mov_b32 s{S_KSRD}, s18"); e(f"s_mov_b32 s{S_KSRD+1}, s19")
    e(f"s_mov_b32 s{S_KSRD+2}, {KV_BYTES}"); e(f"s_mov_b32 s{S_KSRD+3}, 0x20000")
    e(f"s_mov_b32 s{S_VSRD}, s20"); e(f"s_mov_b32 s{S_VSRD+1}, s21")
    e(f"s_mov_b32 s{S_VSRD+2}, {KV_BYTES}"); e(f"s_mov_b32 s{S_VSRD+3}, 0x20000")
    e(f"v_lshrrev_b32 v46, 4, v{V_LANE}")
    e(f"v_and_b32 v47, 15, v{V_LANE}")
    for i in range(4):
        e(f"v_add_u32 v48, {4*i}, v46")
        e("v_xor_b32 v49, v47, v48")
        e("v_lshlrev_b32 v49, 4, v49")
        e("v_lshl_add_u32 v49, v48, 11, v49")
        e(f"v_add_u32 v49, s{S_T0}, v49")
        if i: e(f"v_subrev_u32 v{V_DK+i}, {i*1024}, v49")
        else: e(f"v_mov_b32 v{V_DK}, v49")
    e("v_lshlrev_b32 v48, 2, v46")
    e("v_xor_b32 v49, v47, v48")
    e("v_lshlrev_b32 v49, 4, v49")
    e("v_lshl_add_u32 v49, v46, 11, v49")
    e(f"v_add_u32 v{V_DV}, s{S_T0}, v49")
    for i in range(1, 4):
        e(f"v_add_u32 v{V_DV+i}, {i*7168}, v{V_DV}")
    e("v_and_b32 v48, 15, v4")
    e("v_xor_b32 v48, v48, v3")
    e("v_lshlrev_b32 v49, 8, v4")
    e(f"v_add_u32 v49, s{S_LB}, v49")
    for st in range(8):
        e(f"v_xor_b32 v50, {2*st}, v48")
        e(f"v_lshl_add_u32 v{V_KA+st}, v50, 4, v49")
    e("v_lshrrev_b32 v48, 2, v47")
    e("v_lshl_add_u32 v49, v3, 2, v48")
    e("v_lshlrev_b32 v49, 8, v49")
    e("v_and_b32 v50, 1, v46")
    e("v_lshl_add_u32 v49, v50, 5, v49")
    e(f"v_and_b32 v50, 3, v{V_LANE}")
    e("v_lshl_add_u32 v49, v50, 3, v49")
    e(f"v_add_u32 v49, s{S_LB}, v49")
    e("v_add_u32 v49, 8192, v49")
    for db in range(4):
        e(f"v_xor_b32 v50, {db}, v48")
        e(f"v_lshl_add_u32 v{V_VA+db}, v50, 6, v49")
    e("v_lshlrev_b32 v49, 8, v4")
    e("v_lshl_add_u32 v49, v3, 3, v49")
    e(f"s_lshl_b32 s{S_T1}, s{S_W}, 6")
    e(f"v_add_u32 v{V_OO}, s{S_T1}, v49")
    e(f"v_lshlrev_b32 v49, 4, v{V_LANE}")
    e(f"v_add_u32 v{V_EW}, s{S_LB}, v49")
    e(f"s_lshl_b32 s{S_T1}, s{S_W}, 13")
    e(f"v_add_u32 v{V_ER}, s{S_T1}, v49")
    e(f"v_mov_b32 v{V_M}, 0x{f32bits(-3.0e38):08x}")
    e(f"v_mov_b32 v{V_L0}, 0"); e(f"v_mov_b32 v{V_L1}, 0")
    e(f"v_mov_b32 v{V_R}, 0x{f32bits(R):08x}")
    e(f"s_mov_b32 s{S_C}, 0x{f32bits(c):08x}")
    for r in range(128):
        e(f"v_mov_b32 v{V_O+r}, 0")
    e("s_waitcnt lgkmcnt(0)")
    e(f"s_max_i32 s{S_CL}, s{S_CL}, 0")
    e(f"s_min_i32 s{S_CL}, s{S_CL}, 2048")
    e(f"s_cmp_eq_u32 s{S_CL}, 0")
    e(f"s_cselect_b32 s{S_CLE}, 2048, s{S_CL}")
    e(f"s_add_u32 s{S_NT}, s{S_CLE}, 31")
    e(f"s_lshr_b32 s{S_NT}, s{S_NT}, 5")
    e(f"s_add_u32 s{S_NP}, s{S_CLE}, 15")
    e(f"s_lshr_b32 s{S_NP}, s{S_NP}, 4")
    e(f"s_sub_u32 s{S_KM}, s{S_NT}, 1")
    e(f"s_lshl_b32 s{S_T1}, s{S_KM}, 5")
    e(f"s_sub_i32 s{S_REM}, s{S_CL}, s{S_T1}")
    e(f"s_cmp_eq_u32 s{S_CL}, 0")
    e(f"s_cselect_b32 s{S_KM}, 0, s{S_KM}")
    e(f"s_sub_u32 s{S_NLOC}, s{S_NT}, s{S_W}")
    e(f"s_add_u32 s{S_NLOC}, s{S_NLOC}, 3")
    e(f"s_lshr_b32 s{S_NLOC}, s{S_NLOC}, 2")
    e("v_lshlrev_b32 v48, 2, v3")
    e(f"v_sub_u32 v48, s{S_REM}, v48")
    for j in range(16):
        tok = (j & 3) + 8 * (j >> 2)
        e(f"v_cmp_gt_i32 {sr(S_MASK+2*j,2)}, v48, {tok}")
    e(f"v_cmp_gt_u32 vcc, s{S_NP}, v5")
    e(f"v_mov_b32 v49, {KV_BYTES}")
    e(f"s_mov_b32 s{S_J2}, 0")
    e(f"s_mov_b32 s{S_J}, 0")
    e(f"s_mov_b32 s{S_K}, s{S_W}")
    e("s_waitcnt vmcnt(16)")
    e(f"v_lshlrev_b32 v{V_BT}, 15, v{V_BT}")
    e(f"v_cndmask_b32 v{V_BT}, v49, v{V_BT}, vcc")
    e("s_nop 0")
    for n in range(0, D, 2):
        items = [n] + ([n+1] if n+1 < D else [])
        regs = [S_P0, S_P1]
        for k, it in enumerate(items):
            lane = 2 * (it >> 2) + (it & 1)
            e(f"v_readlane_b32 s{regs[k]}, v{V_BT}, {lane}")
        e("s_nop 3")
        for k, it in enumerate(items):
            for l in issue_item(g, it & 3, it & 7, regs[k]): e(l)
    g.lab("L_loop")
    e(f"s_cmp_ge_u32 s{S_J}, s{S_NLOC}")
    e("s_cbranch_scc1 L_done")
    tile(g, 0, "a")
    e(f"s_cmp_ge_u32 s{S_J}, s{S_NLOC}")
    e("s_cbranch_scc1 L_done")
    tile(g, 1, "b")
    e("s_branch L_loop")
    g.lab("L_done")
    e(f"s_mov_b32 s{S_XSRD}, s26"); e(f"s_mov_b32 s{S_XSRD+1}, s27")
    e(f"v_permlane32_swap_b32 v{V_L0}, v{V_L1}")
    e(f"v_lshlrev_b32 v48, 3, v{V_LANE}")
    e(f"s_lshl_b32 s{S_T1}, s{S_W}, 9")
    e(f"s_add_u32 s{S_T1}, s{S_T1}, 131072")
    e(f"v_add_u32 v49, s{S_T1}, v48")
    e("v_add_u32 v48, 131072, v48")
    e(f"v_mov_b32 v50, v{V_M}")
    e(f"v_add_f32 v51, v{V_L0}, v{V_L1}")
    e("s_waitcnt vmcnt(0)")
    e("ds_write_b64 v49, v[50:51]")
    e("s_nop 7")
    for idx in range(32):
        e(f"ds_write_b128 v{V_EW}, {vr(V_O+4*idx,4)} offset:{idx*1024}")
    e("s_waitcnt lgkmcnt(0)")
    e("s_barrier")
    for w in range(4):
        e(f"ds_read_b64 {vr(52+2*w,2)}, v48 offset:{w*512}")
    rd = []
    for w in range(4):
        for k in range(8):
            rd.append((V_O + (w*8+k)*4, w*32768 + k*1024))
    e(f"v_add_u32 v47, 65536, v{V_ER}")
    def rdi(i):
        dst, off = rd[i]
        if off >= 65536: e(f"ds_read_b128 {vr(dst,4)}, v47 offset:{off-65536}")
        else: e(f"ds_read_b128 {vr(dst,4)}, v{V_ER} offset:{off}")
    for i in range(8): rdi(i)
    e("s_waitcnt lgkmcnt(8)")
    e("v_max3_f32 v60, v52, v54, v56")
    e("v_max_f32 v60, v60, v58")
    for w in range(4):
        e(f"v_sub_f32 v{52+2*w}, v{52+2*w}, v60")
    for w in range(4):
        e(f"v_exp_f32 v{52+2*w}, v{52+2*w}")
    e("s_nop 0")
    e("v_mul_f32 v61, v52, v53")
    for w in range(1, 4):
        e(f"v_fma_f32 v61, v{52+2*w}, v{53+2*w}, v61")
    e("v_rcp_f32 v61, v61")
    e("s_nop 0")
    for w in range(4):
        e(f"v_mul_f32 v{52+2*w}, v{52+2*w}, v61")
    for w in range(4):
        e(f"v_mov_b32 v{53+2*w}, v{52+2*w}")
    e("s_nop 1")
    for w in range(4):
        e(f"v_permlane32_swap_b32 v{52+2*w}, v{53+2*w}")
    for w in range(4):
        if w < 3:
            for i in range(8*(w+1), 8*(w+2)): rdi(i)
            e("s_waitcnt lgkmcnt(8)")
        else:
            e("s_waitcnt lgkmcnt(0)")
        for qh in range(2):
            for j in range(16):
                src = V_O + w*32 + qh*16 + j
                dst = V_S + qh*16 + j
                f = 52 + 2*w + qh
                if w == 0: e(f"v_mul_f32 v{dst}, v{src}, v{f}")
                else: e(f"v_fma_f32 v{dst}, v{src}, v{f}, v{dst}")
    for qh in range(2):
        for jj in range(4):
            src = V_S + qh*16 + jj*4
            dst = V_P + (qh*4+jj)*2
            e(f"v_cvt_pk_bf16_f32 v{dst}, v{src}, v{src+1}")
            e(f"v_cvt_pk_bf16_f32 v{dst+1}, v{src+2}, v{src+3}")
    for qh in range(2):
        for jj in range(4):
            dst = V_P + (qh*4+jj)*2
            so = S_QO0 if qh == 0 else S_QO1
            e(f"buffer_store_dwordx2 {vr(dst,2)}, v{V_OO}, {sr(S_XSRD,4)}, s{so} offen offset:{jj*16}")
    g.lab("L_end")
    e("s_endpgm")
    out += g.o
    out += ['.section .rodata,"a"', ".p2align 6", f".amdhsa_kernel {NAME}",
        "  .amdhsa_next_free_vgpr 384", "  .amdhsa_next_free_sgpr 96", "  .amdhsa_accum_offset 256",
        "  .amdhsa_group_segment_fixed_size 0", "  .amdhsa_kernarg_size 64", "  .amdhsa_user_sgpr_count 2",
        "  .amdhsa_user_sgpr_kernarg_segment_ptr 1", "  .amdhsa_system_sgpr_workgroup_id_x 1",
        ".end_amdhsa_kernel", ""]
    return "\n".join(out)

if __name__ == "__main__":
    import argparse
    ap = argparse.ArgumentParser()
    ap.add_argument("-D", type=int, default=8)
    ap.add_argument("--nt", action="store_true")
    ap.add_argument("-o", default="standalone__paged_block_table_kv_pagedattention__sampling.s")
    a = ap.parse_args()
    open(a.o, "w").write(build(a.D, a.nt))
```

```python
import sys, struct, math

NAME = "standalone__paged_block_table_kv_pagedattention__sampling_kernel"
KV_BYTES = 4100 * 32768
Q_BYTES = 32 * 32 * 16 * 128 * 2

def f32bits(x):
    return struct.unpack("<I", struct.pack("<f", x))[0]

class Gen:
    def __init__(self, D=8, nt=False, stamps=False):
        self.o = []
        self.D = D
        self.nt = nt
        self.stamps = stamps
    def e(self, s):
        self.o.append("    " + s)
    def lab(self, s):
        self.o.append(s + ":")
    def c(self, s):
        self.o.append("    ; " + s)

S_KSRD = 4
S_VSRD = 8
S_XSRD = 12
S_BSRD = 76
S_MASK = 32
S_CL, S_CLE, S_W, S_NT, S_NP, S_KM, S_REM, S_NLOC = 64, 65, 66, 67, 68, 69, 70, 71
S_J2, S_C, S_LB, S_K = 72, 73, 74, 75
S_P0, S_P1, S_T0, S_T1, S_QO0, S_QO1 = 80, 81, 82, 83, 84, 85
S_J = 86
V_LANE = 1
V_KA = 8
V_VA = 16
V_DK = 20
V_DV = 24
V_BT = 28
V_M = 29
V_L0, V_L1 = 30, 31
V_T0, V_T1, V_T2, V_T3 = 32, 33, 34, 35
V_MA, V_MB = 36, 37
V_AA, V_AB = 38, 40
V_R = 42
V_OO = 43
V_EW = 44
V_ER = 45
V_P = 80
V_S = 96
V_O = 128
A_Q = 0
A_K = 64
A_V = 96

def vr(b, n): return f"v[{b}:{b+n-1}]"
def ar(b, n): return f"a[{b}:{b+n-1}]"
def sr(b, n): return f"s[{b}:{b+n-1}]"

def issue_item(g, kind, slot, lane_const_sreg):
    srd = S_KSRD if kind < 2 else S_VSRD
    vb = V_DK if kind < 2 else V_DV
    nt = (" " + g.nt) if g.nt else ""
    out = []
    out.append(f"s_add_u32 m0, s{S_LB}, {slot*4096}")
    out.append("s_nop 0")
    for i in range(4):
        out.append(f"buffer_load_dwordx4 v{vb+i}, {sr(srd,4)}, s{lane_const_sreg} offen offset:{i*1024}{nt} lds")
    return out

def lookup(g, n_rel, sreg, tmp):
    lane = 2 * (n_rel >> 2) + (n_rel & 1)
    return [f"s_add_u32 s{tmp}, s{S_J2}, {lane}",
            f"v_readlane_b32 s{sreg}, v{V_BT}, s{tmp}"]

def tile(g, e, tag):
    D = g.D
    W = 4 * (D - 2)
    base = e * 16384
    g.c(f"---- tile parity {e}: QK")
    nA = D
    for l in lookup(g, nA, S_P0, S_T0) + lookup(g, nA + 1, S_P1, S_T1): g.e(l)
    g.e(f"s_waitcnt vmcnt({W})")
    for st in range(8):
        g.e(f"ds_read_b128 {ar(A_K+4*st,4)}, v{V_KA+st} offset:{base}")
    dma = issue_item(g, nA & 3, (4*e + nA) & 7, S_P0) + issue_item(g, (nA+1) & 3, (4*e + nA + 1) & 7, S_P1)
    def mf(st, qh):
        cc = "0" if st == 0 else vr(V_S+16*qh, 16)
        g.e(f"v_mfma_f32_32x32x16_bf16 {vr(V_S+16*qh,16)}, {ar(A_K+4*st,4)}, {ar(A_Q+(qh*8+st)*4,4)}, {cc}")
    g.e("s_waitcnt lgkmcnt(7)")
    mf(0,0); mf(0,1)
    g.e("s_waitcnt lgkmcnt(6)")
    mf(1,0); mf(1,1)
    g.e("s_waitcnt lgkmcnt(0)")
    seq = [(st,qh) for st in range(2,8) for qh in range(2)]
    di = 0
    for idx,(st,qh) in enumerate(seq):
        mf(st,qh)
        if di < len(dma):
            g.e(dma[di]); di += 1
    while di < len(dma):
        g.e(dma[di]); di += 1
    g.e("s_nop 7"); g.e("s_nop 3")
    g.e(f"s_cmp_lt_u32 s{S_K}, s{S_KM}")
    g.e(f"s_cbranch_scc1 L_nomask_{tag}")
    for j in range(16):
        for qh in range(2):
            r = V_S + 16*qh + j
            g.e(f"v_cndmask_b32 v{r}, v{V_R}, v{r}, {sr(S_MASK+2*j,2)}")
    g.lab(f"L_nomask_{tag}")
    g.c("row max")
    s0, s1 = V_S, V_S + 16
    g.e(f"v_max3_f32 v{V_T0}, v{s0}, v{s0+1}, v{s0+2}")
    g.e(f"v_max3_f32 v{V_T1}, v{s1}, v{s1+1}, v{s1+2}")
    for k in range(3, 15, 2):
        g.e(f"v_max3_f32 v{V_T0}, v{V_T0}, v{s0+k}, v{s0+k+1}")
        g.e(f"v_max3_f32 v{V_T1}, v{V_T1}, v{s1+k}, v{s1+k+1}")
    g.e(f"v_max_f32 v{V_T0}, v{V_T0}, v{s0+15}")
    g.e(f"v_max_f32 v{V_T1}, v{V_T1}, v{s1+15}")
    g.e("s_nop 1")
    g.e(f"v_permlane32_swap_b32 v{V_T0}, v{V_T1}")
    g.e(f"v_max_f32 v{V_T0}, v{V_T0}, v{V_T1}")
    g.e(f"v_mul_f32 v{V_T0}, s{S_C}, v{V_T0}")
    g.e(f"v_max_f32 v{V_MA}, v{V_M}, v{V_T0}")
    g.e(f"v_sub_f32 v{V_T1}, v{V_M}, v{V_MA}")
    g.e(f"v_cmp_gt_f32 vcc, v{V_MA}, v{V_M}")
    g.e(f"v_exp_f32 v{V_AA}, v{V_T1}")
    g.e(f"v_mov_b32 v{V_M}, v{V_MA}")
    g.e(f"v_mov_b32 v{V_MB}, v{V_MA}")
    g.e(f"v_mov_b32 v{V_AB}, v{V_AA}")
    g.e("s_nop 1")
    g.e(f"v_permlane32_swap_b32 v{V_MA}, v{V_MB}")
    g.e(f"v_permlane32_swap_b32 v{V_AA}, v{V_AB}")
    g.e(f"s_cbranch_vccz L_noresc_{tag}")
    for db in range(4):
        for qh in range(2):
            al = V_AA if qh == 0 else V_AB
            for k in range(0, 16, 2):
                r = V_O + (db*2+qh)*16 + k
                g.e(f"v_pk_mul_f32 {vr(r,2)}, {vr(r,2)}, {vr(al,2)} op_sel_hi:[1,0]")
    g.lab(f"L_noresc_{tag}")
    g.c("p = exp2(s*c - m)")
    for j in range(16):
        for qh in range(2):
            r = V_S + 16*qh + j
            m = V_MA if qh == 0 else V_MB
            g.e(f"v_fma_f32 v{r}, v{r}, s{S_C}, -v{m}")
    for j in range(16):
        for qh in range(2):
            r = V_S + 16*qh + j
            g.e(f"v_exp_f32 v{r}, v{r}")
    g.e(f"v_fma_f32 v{V_L0}, v{V_L0}, v{V_AA}, v{s0}")
    g.e(f"v_fma_f32 v{V_L1}, v{V_L1}, v{V_AB}, v{s1}")
    g.e(f"v_add_f32 v{V_T0}, v{s0+1}, v{s0+2}")
    g.e(f"v_add_f32 v{V_T1}, v{s1+1}, v{s1+2}")
    for k in range(3, 16):
        d0 = V_L0 if (k & 1) else V_T0
        d1 = V_L1 if (k & 1) else V_T1
        g.e(f"v_add_f32 v{d0}, v{d0}, v{s0+k}")
        g.e(f"v_add_f32 v{d1}, v{d1}, v{s1+k}")
    for qh in range(2):
        for ts in range(2):
            for r in range(4):
                src = V_S + 16*qh + 8*ts + 2*r
                g.e(f"v_cvt_pk_bf16_f32 v{V_P + (qh*2+ts)*4 + r}, v{src}, v{src+1}")
    g.e(f"v_add_f32 v{V_L0}, v{V_L0}, v{V_T0}")
    g.e(f"v_add_f32 v{V_L1}, v{V_L1}, v{V_T1}")
    g.c("PV")
    nB = D + 2
    for l in lookup(g, nB, S_P0, S_T0) + lookup(g, nB + 1, S_P1, S_T1): g.e(l)
    g.e(f"s_waitcnt vmcnt({W})")
    reads = []
    for db in range(4):
        for ts in range(2):
            for u in range(2):
                reads.append(f"ds_read_b64_tr_b16 {ar(A_V+(db*2+ts)*4+2*u,2)}, v{V_VA+db} offset:{base+ts*4096+u*2048}")
    dma = issue_item(g, nB & 3, (4*e + nB) & 7, S_P0) + issue_item(g, (nB+1) & 3, (4*e + nB + 1) & 7, S_P1)
    def pv(db, ts, qh):
        o = vr(V_O + (db*2+qh)*16, 16)
        g.e(f"v_mfma_f32_32x32x16_bf16 {o}, {ar(A_V+(db*2+ts)*4,4)}, {vr(V_P+(qh*2+ts)*4,4)}, {o}")
    for r in reads[:12]: g.e(r)
    g.e("s_waitcnt lgkmcnt(10)")
    pv(0,0,0); pv(0,0,1)
    for r in reads[12:]: g.e(r)
    g.e("s_waitcnt lgkmcnt(12)")
    pv(0,1,0); pv(0,1,1)
    g.e("s_waitcnt lgkmcnt(0)")
    seq = [(db,ts,qh) for db in range(1,4) for ts in range(2) for qh in range(2)]
    di = 0
    for (db,ts,qh) in seq:
        pv(db,ts,qh)
        if di < len(dma):
            g.e(dma[di]); di += 1
    while di < len(dma):
        g.e(dma[di]); di += 1
    g.e(f"s_add_u32 s{S_J2}, s{S_J2}, 2")
    g.e(f"s_add_u32 s{S_K}, s{S_K}, 4")
    g.e(f"s_add_u32 s{S_J}, s{S_J}, 1")

def build(D=8, nt=False, spin=0, stamps=False):
    g = Gen(D, nt, stamps)
    c = (128 ** -0.5) * math.log2(math.e)
    R = -1e9 * math.sqrt(128.0)
    hdr = open("standalone__paged_block_table_kv_pagedattention__sampling.s.ref").read().split("\n")
    head = [l for l in hdr if l.startswith(";") and "@launch" not in l and "Override launch" not in l and "grid=ceil" not in l]
    LDS = 131072 + 2048
    out = head + [f"; @launch grid=(256,1,1) block=(256,1,1) lds={LDS}",
        '.amdgcn_target "amdgcn-amd-amdhsa--gfx950"', ".text", f".globl {NAME}", ".p2align 8",
        f".type {NAME},@function", f"{NAME}:"]
    e = g.e
    e("s_cmp_ge_u32 s2, 256")
    e("s_cbranch_scc1 L_end")
    e("s_load_dwordx16 s[16:31], s[0:1], 0")
    if spin or stamps: e("s_memrealtime s[88:89]")
    e(f"v_and_b32 v{V_LANE}, 63, v0")
    e("v_lshrrev_b32 v2, 6, v0")
    e(f"v_lshrrev_b32 v3, 5, v{V_LANE}")
    e(f"v_readfirstlane_b32 s{S_W}, v2")
    e(f"v_and_b32 v4, 31, v{V_LANE}")
    e("s_lshr_b32 s3, s2, 3")
    e(f"s_and_b32 s{S_T0}, s2, 7")
    e(f"s_lshl_b32 s{S_T0}, s{S_T0}, 8")
    e(f"s_lshl_b32 s{S_LB}, s{S_W}, 15")
    e(f"v_lshrrev_b32 v5, 1, v{V_LANE}")
    e("v_lshlrev_b32 v5, 3, v5")
    e(f"v_and_b32 v6, 1, v{V_LANE}")
    e("v_add_u32 v5, v5, v6")
    e(f"s_lshl_b32 s{S_T1}, s{S_W}, 1")
    e(f"v_add_u32 v5, s{S_T1}, v5")
    e("v_lshlrev_b32 v6, 2, v5")
    e(f"s_lshl_b32 s{S_P0}, s3, 9")
    e("v_lshlrev_b32 v7, 8, v4")
    e("v_lshl_add_u32 v7, v3, 4, v7")
    e(f"s_lshl_b32 s{S_QO0}, s2, 14")
    e(f"s_add_u32 s{S_QO1}, s{S_QO0}, 8192")
    e(f"s_lshl_b32 s{S_P1}, s3, 2")
    e("s_waitcnt lgkmcnt(0)")
    e(f"s_load_dword s{S_CL}, s[24:25], s{S_P1}")
    e(f"s_mov_b32 s{S_BSRD}, s22"); e(f"s_mov_b32 s{S_BSRD+1}, s23")
    e(f"s_mov_b32 s{S_BSRD+2}, 16384"); e(f"s_mov_b32 s{S_BSRD+3}, 0x20000")
    e(f"buffer_load_dword v{V_BT}, v6, {sr(S_BSRD,4)}, s{S_P0} offen")
    e(f"s_mov_b32 s{S_XSRD}, s16"); e(f"s_mov_b32 s{S_XSRD+1}, s17")
    e(f"s_mov_b32 s{S_XSRD+2}, {Q_BYTES}"); e(f"s_mov_b32 s{S_XSRD+3}, 0x20000")
    for qh in range(2):
        for st in range(8):
            so = S_QO0 if qh == 0 else S_QO1
            e(f"buffer_load_dwordx4 {ar(A_Q+(qh*8+st)*4,4)}, v7, {sr(S_XSRD,4)}, s{so} offen offset:{st*32}")
    e(f"s_mov_b32 s{S_KSRD}, s18"); e(f"s_mov_b32 s{S_KSRD+1}, s19")
    e(f"s_mov_b32 s{S_KSRD+2}, {KV_BYTES}"); e(f"s_mov_b32 s{S_KSRD+3}, 0x20000")
    e(f"s_mov_b32 s{S_VSRD}, s20"); e(f"s_mov_b32 s{S_VSRD+1}, s21")
    e(f"s_mov_b32 s{S_VSRD+2}, {KV_BYTES}"); e(f"s_mov_b32 s{S_VSRD+3}, 0x20000")
    e(f"v_lshrrev_b32 v46, 4, v{V_LANE}")
    e(f"v_and_b32 v47, 15, v{V_LANE}")
    for i in range(4):
        e(f"v_add_u32 v48, {4*i}, v46")
        e("v_xor_b32 v49, v47, v48")
        e("v_lshlrev_b32 v49, 4, v49")
        e("v_lshl_add_u32 v49, v48, 11, v49")
        e(f"v_add_u32 v49, s{S_T0}, v49")
        if i: e(f"v_subrev_u32 v{V_DK+i}, {i*1024}, v49")
        else: e(f"v_mov_b32 v{V_DK}, v49")
    e("v_lshlrev_b32 v48, 2, v46")
    e("v_xor_b32 v49, v47, v48")
    e("v_lshlrev_b32 v49, 4, v49")
    e("v_lshl_add_u32 v49, v46, 11, v49")
    e(f"v_add_u32 v{V_DV}, s{S_T0}, v49")
    for i in range(1, 4):
        e(f"v_add_u32 v{V_DV+i}, {i*7168}, v{V_DV}")
    e("v_and_b32 v48, 15, v4")
    e("v_xor_b32 v48, v48, v3")
    e("v_lshlrev_b32 v49, 8, v4")
    e(f"v_add_u32 v49, s{S_LB}, v49")
    for st in range(8):
        e(f"v_xor_b32 v50, {2*st}, v48")
        e(f"v_lshl_add_u32 v{V_KA+st}, v50, 4, v49")
    e("v_lshrrev_b32 v48, 2, v47")
    e("v_lshl_add_u32 v49, v3, 2, v48")
    e("v_lshlrev_b32 v49, 8, v49")
    e("v_and_b32 v50, 1, v46")
    e("v_lshl_add_u32 v49, v50, 5, v49")
    e(f"v_and_b32 v50, 3, v{V_LANE}")
    e("v_lshl_add_u32 v49, v50, 3, v49")
    e(f"v_add_u32 v49, s{S_LB}, v49")
    e("v_add_u32 v49, 8192, v49")
    for db in range(4):
        e(f"v_xor_b32 v50, {db}, v48")
        e(f"v_lshl_add_u32 v{V_VA+db}, v50, 6, v49")
    e("v_lshlrev_b32 v49, 8, v4")
    e("v_lshl_add_u32 v49, v3, 3, v49")
    e(f"s_lshl_b32 s{S_T1}, s{S_W}, 6")
    e(f"v_add_u32 v{V_OO}, s{S_T1}, v49")
    e(f"v_lshlrev_b32 v49, 4, v{V_LANE}")
    e(f"v_add_u32 v{V_EW}, s{S_LB}, v49")
    e(f"s_lshl_b32 s{S_T1}, s{S_W}, 13")
    e(f"v_add_u32 v{V_ER}, s{S_T1}, v49")
    e(f"v_mov_b32 v{V_M}, 0x{f32bits(-3.0e38):08x}")
    e(f"v_mov_b32 v{V_L0}, 0"); e(f"v_mov_b32 v{V_L1}, 0")
    e(f"v_mov_b32 v{V_R}, 0x{f32bits(R):08x}")
    e(f"s_mov_b32 s{S_C}, 0x{f32bits(c):08x}")
    for r in range(128):
        e(f"v_mov_b32 v{V_O+r}, 0")
    e("s_waitcnt lgkmcnt(0)")
    e(f"s_max_i32 s{S_CL}, s{S_CL}, 0")
    e(f"s_min_i32 s{S_CL}, s{S_CL}, 2048")
    e(f"s_cmp_eq_u32 s{S_CL}, 0")
    e(f"s_cselect_b32 s{S_CLE}, 2048, s{S_CL}")
    e(f"s_add_u32 s{S_NT}, s{S_CLE}, 31")
    e(f"s_lshr_b32 s{S_NT}, s{S_NT}, 5")
    e(f"s_add_u32 s{S_NP}, s{S_CLE}, 15")
    e(f"s_lshr_b32 s{S_NP}, s{S_NP}, 4")
    e(f"s_sub_u32 s{S_KM}, s{S_NT}, 1")
    e(f"s_lshl_b32 s{S_T1}, s{S_KM}, 5")
    e(f"s_sub_i32 s{S_REM}, s{S_CL}, s{S_T1}")
    e(f"s_cmp_eq_u32 s{S_CL}, 0")
    e(f"s_cselect_b32 s{S_KM}, 0, s{S_KM}")
    e(f"s_sub_u32 s{S_NLOC}, s{S_NT}, s{S_W}")
    e(f"s_add_u32 s{S_NLOC}, s{S_NLOC}, 3")
    e(f"s_lshr_b32 s{S_NLOC}, s{S_NLOC}, 2")
    e("v_lshlrev_b32 v48, 2, v3")
    e(f"v_sub_u32 v48, s{S_REM}, v48")
    for j in range(16):
        tok = (j & 3) + 8 * (j >> 2)
        e(f"v_cmp_gt_i32 {sr(S_MASK+2*j,2)}, v48, {tok}")
    e(f"v_cmp_gt_u32 vcc, s{S_NP}, v5")
    e(f"v_mov_b32 v49, {KV_BYTES}")
    e(f"s_mov_b32 s{S_J2}, 0")
    e(f"s_mov_b32 s{S_J}, 0")
    e(f"s_mov_b32 s{S_K}, s{S_W}")
    e("s_waitcnt vmcnt(16)")
    e(f"v_lshlrev_b32 v{V_BT}, 15, v{V_BT}")
    e(f"v_cndmask_b32 v{V_BT}, v49, v{V_BT}, vcc")
    e("s_nop 0")
    for n in range(0, D, 2):
        items = [n] + ([n+1] if n+1 < D else [])
        regs = [S_P0, S_P1]
        for k, it in enumerate(items):
            lane = 2 * (it >> 2) + (it & 1)
            e(f"v_readlane_b32 s{regs[k]}, v{V_BT}, {lane}")
        e("s_nop 3")
        for k, it in enumerate(items):
            for l in issue_item(g, it & 3, it & 7, regs[k]): e(l)
    g.lab("L_loop")
    e(f"s_cmp_ge_u32 s{S_J}, s{S_NLOC}")
    e("s_cbranch_scc1 L_done")
    tile(g, 0, "a")
    e(f"s_cmp_ge_u32 s{S_J}, s{S_NLOC}")
    e("s_cbranch_scc1 L_done")
    tile(g, 1, "b")
    e("s_branch L_loop")
    g.lab("L_done")
    e(f"s_mov_b32 s{S_XSRD}, s26"); e(f"s_mov_b32 s{S_XSRD+1}, s27")
    e(f"v_permlane32_swap_b32 v{V_L0}, v{V_L1}")
    e(f"v_lshlrev_b32 v48, 3, v{V_LANE}")
    e(f"s_lshl_b32 s{S_T1}, s{S_W}, 9")
    e(f"s_add_u32 s{S_T1}, s{S_T1}, 131072")
    e(f"v_add_u32 v49, s{S_T1}, v48")
    e("v_add_u32 v48, 131072, v48")
    e(f"v_mov_b32 v50, v{V_M}")
    e(f"v_add_f32 v51, v{V_L0}, v{V_L1}")
    e("s_waitcnt vmcnt(0)")
    e("ds_write_b64 v49, v[50:51]")
    e("s_nop 7")
    for idx in range(32):
        e(f"ds_write_b128 v{V_EW}, {vr(V_O+4*idx,4)} offset:{idx*1024}")
    e("s_waitcnt lgkmcnt(0)")
    e("s_barrier")
    for w in range(4):
        e(f"ds_read_b64 {vr(52+2*w,2)}, v48 offset:{w*512}")
    rd = []
    for w in range(4):
        for k in range(8):
            rd.append((V_O + (w*8+k)*4, w*32768 + k*1024))
    e(f"v_add_u32 v47, 65536, v{V_ER}")
    def rdi(i):
        dst, off = rd[i]
        if off >= 65536: e(f"ds_read_b128 {vr(dst,4)}, v47 offset:{off-65536}")
        else: e(f"ds_read_b128 {vr(dst,4)}, v{V_ER} offset:{off}")
    for i in range(8): rdi(i)
    e("s_waitcnt lgkmcnt(8)")
    e("v_max3_f32 v60, v52, v54, v56")
    e("v_max_f32 v60, v60, v58")
    for w in range(4):
        e(f"v_sub_f32 v{52+2*w}, v{52+2*w}, v60")
    for w in range(4):
        e(f"v_exp_f32 v{52+2*w}, v{52+2*w}")
    e("s_nop 0")
    e("v_mul_f32 v61, v52, v53")
    for w in range(1, 4):
        e(f"v_fma_f32 v61, v{52+2*w}, v{53+2*w}, v61")
    e("v_rcp_f32 v61, v61")
    e("s_nop 0")
    for w in range(4):
        e(f"v_mul_f32 v{52+2*w}, v{52+2*w}, v61")
    for w in range(4):
        e(f"v_mov_b32 v{53+2*w}, v{52+2*w}")
    e("s_nop 1")
    for w in range(4):
        e(f"v_permlane32_swap_b32 v{52+2*w}, v{53+2*w}")
    for w in range(4):
        if w < 3:
            for i in range(8*(w+1), 8*(w+2)): rdi(i)
            e("s_waitcnt lgkmcnt(8)")
        else:
            e("s_waitcnt lgkmcnt(0)")
        for qh in range(2):
            for j in range(16):
                src = V_O + w*32 + qh*16 + j
                dst = V_S + qh*16 + j
                f = 52 + 2*w + qh
                if w == 0: e(f"v_mul_f32 v{dst}, v{src}, v{f}")
                else: e(f"v_fma_f32 v{dst}, v{src}, v{f}, v{dst}")
    for qh in range(2):
        for jj in range(4):
            src = V_S + qh*16 + jj*4
            dst = V_P + (qh*4+jj)*2
            e(f"v_cvt_pk_bf16_f32 v{dst}, v{src}, v{src+1}")
            e(f"v_cvt_pk_bf16_f32 v{dst+1}, v{src+2}, v{src+3}")
    for qh in range(2):
        for jj in range(4):
            dst = V_P + (qh*4+jj)*2
            so = S_QO0 if qh == 0 else S_QO1
            e(f"buffer_store_dwordx2 {vr(dst,2)}, v{V_OO}, {sr(S_XSRD,4)}, s{so} offen offset:{jj*16}")
    if spin:
        e(f"s_add_u32 s88, s88, {spin*100}")
        e("s_addc_u32 s89, s89, 0")
        g.lab("L_spin")
        e("s_memrealtime s[90:91]")
        e("s_waitcnt lgkmcnt(0)")
        e("s_sub_u32 s92, s90, s88")
        e("s_subb_u32 s93, s91, s89")
        e("s_cmp_lt_i32 s93, 0")
        e("s_cbranch_scc1 L_spin")
    g.lab("L_end")
    e("s_endpgm")
    out += g.o
    out += ['.section .rodata,"a"', ".p2align 6", f".amdhsa_kernel {NAME}",
        "  .amdhsa_next_free_vgpr 384", "  .amdhsa_next_free_sgpr 96", "  .amdhsa_accum_offset 256",
        "  .amdhsa_group_segment_fixed_size 0", "  .amdhsa_kernarg_size 64", "  .amdhsa_user_sgpr_count 2",
        "  .amdhsa_user_sgpr_kernarg_segment_ptr 1", "  .amdhsa_system_sgpr_workgroup_id_x 1",
        ".end_amdhsa_kernel", ""]
    return "\n".join(out)

if __name__ == "__main__":
    import argparse
    ap = argparse.ArgumentParser()
    ap.add_argument("-D", type=int, default=8)
    ap.add_argument("--nt", default="")
    ap.add_argument("-o", default="standalone__paged_block_table_kv_pagedattention__sampling.s")
    ap.add_argument("--spin", type=int, default=0)
    ap.add_argument("--stamps", action="store_true")
    a = ap.parse_args()
    open(a.o, "w").write(build(a.D, a.nt, a.spin, a.stamps))
```

```python
import sys, struct, math, argparse

NAME = "standalone__paged_block_table_kv_pagedattention__sampling_kernel"
KV_BYTES = 4100 * 32768
Q_BYTES = 32 * 32 * 16 * 128 * 2

def f32bits(x): return struct.unpack("<I", struct.pack("<f", x))[0]

class Gen:
    def __init__(self, a): self.o = []; self.a = a; self.ool = []
    def e(self, s): self.o.append("    " + s)
    def lab(self, s): self.o.append(s + ":")
    def c(self, s): self.o.append("    ; " + s)

LDS_Q = 98304
LDS_FLAG = 114688
LDS_DONE = LDS_FLAG + 256
LDS_FIN = LDS_FLAG + 1024
LDS_STAT = LDS_FLAG + 2048
LDS_TOTAL = LDS_STAT + 2048

S_KSRD = 4; S_VSRD = 8; S_XSRD = 12; S_BSRD = 76
S_MASK = 32
S_CL, S_CLE, S_W, S_NT, S_NP, S_JM, S_REM, S_H = 64, 65, 66, 67, 68, 69, 70, 71
S_NEED, S_C, S_LB, S_I = 72, 73, 74, 75
S_P0, S_P1, S_T0, S_T1, S_T2 = 80, 81, 82, 83, 84
S_QO0, S_ROLE, S_CI, S_N = 85, 86, 87, 3
S_CLAST = 28; S_NVB = 29; S_C2 = 4; S_SH = 71; S_PAR = 6
S_P2, S_P3, S_J, S_LBV, S_CV, S_NV = 34, 35, 36, 37, 38, 39
V_LANE = 1
V_KA = 8; V_VA = 16
V_DK = 8; V_DV = 12; V_DQ = 16; V_BT = 20
V_FLAG = 22; V_CNT = 23; V_DONE = 24; V_PT = 25; V_FIN = 26
V_M = 29; V_L0, V_L1 = 30, 31
V_T0, V_T1 = 32, 33
V_MA, V_MB = 36, 44
V_AA, V_AB = 38, 40
V_R = 42
V_EW = 64
V_P = 80; V_S = 96; V_O = 128
A_Q = 0; A_K = 64; A_V = 96

def vr(b, n): return f"v[{b}:{b+n-1}]"
def ar(b, n): return f"a[{b}:{b+n-1}]"
def sr(b, n): return f"s[{b}:{b+n-1}]"

def poll(g, tag, pre=False):
    if pre:
        g.e("s_waitcnt lgkmcnt(0)")
        g.e(f"v_readfirstlane_b32 s{S_H}, v{V_PT}")
    g.e(f"s_cmp_ge_i32 s{S_H}, s{S_NEED}")
    g.e(f"s_cbranch_scc0 L_poll_{tag}")
    g.lab(f"L_ok_{tag}")
    if g.a.wstat:
        acc = 10 if tag[0] == "k" else 11
        g.ool += [f"L_poll_{tag}:", "    s_memtime s[8:9]",
            f"L_poll2_{tag}:",
            f"    ds_read_b32 v{V_PT}, v{V_FLAG}",
            "    s_waitcnt lgkmcnt(0)",
            f"    v_readfirstlane_b32 s{S_H}, v{V_PT}",
            f"    s_cmp_ge_i32 s{S_H}, s{S_NEED}",
            f"    s_cbranch_scc0 L_poll2_{tag}",
            "    s_memtime s[100:101]", "    s_waitcnt lgkmcnt(0)",
            "    s_sub_u32 s100, s100, s8", f"    s_add_u32 s{acc}, s{acc}, s100",
            f"    s_branch L_ok_{tag}"]
        return
    g.ool += [f"L_poll_{tag}:",
        f"    ds_read_b32 v{V_PT}, v{V_FLAG}",
        "    s_waitcnt lgkmcnt(0)",
        f"    v_readfirstlane_b32 s{S_H}, v{V_PT}",
        f"    s_cmp_ge_i32 s{S_H}, s{S_NEED}",
        f"    s_cbranch_scc1 L_ok_{tag}",
        f"    s_branch L_poll_{tag}"]

def need_k(g):
    lead = g.a.lead
    g.e(f"s_lshl_b32 s{S_NEED}, s{S_I}, 1")
    g.e(f"s_add_u32 s{S_NEED}, s{S_NEED}, {3 - lead}")
    g.e(f"s_add_u32 s{S_T1}, s{S_I}, 3")
    g.e(f"s_max_i32 s{S_NEED}, s{S_NEED}, s{S_T1}")
def need_v(g):
    lead = g.a.lead
    g.e(f"s_lshl_b32 s{S_NEED}, s{S_I}, 1")
    g.e(f"s_add_u32 s{S_NEED}, s{S_NEED}, {4 + lead}")
    g.e(f"s_add_u32 s{S_T1}, s{S_I}, s{S_NVB}")
    g.e(f"s_min_i32 s{S_NEED}, s{S_NEED}, s{S_T1}")

def v_reads(base):
    reads = []
    for db in range(4):
        for ts in range(2):
            for u in range(2):
                reads.append(f"ds_read_b64_tr_b16 {ar(A_V+(db*2+ts)*4+2*u,2)}, v{V_VA+db} offset:{base+ts*4096+u*2048}")
    return reads
def pv(db, ts, qh):
    o = vr(V_O + (db*2+qh)*16, 16)
    return f"v_mfma_f32_32x32x16_bf16 {o}, {ar(A_V+(db*2+ts)*4,4)}, {vr(V_P+(qh*2+ts)*4,4)}, {o}"
def owrite(idx):
    db = idx >> 3; jj = idx & 3
    return f"ds_write_b128 v{V_EW + 4*db + jj}, {vr(V_O+4*idx,4)} offset:{idx*1024}"

def write_stats(g):
    e = g.e
    e(f"v_permlane32_swap_b32 v{V_L0}, v{V_L1}")
    e(f"v_lshlrev_b32 v48, 3, v{V_LANE}")
    e(f"s_lshl_b32 s{S_T1}, s{S_ROLE}, 9")
    e(f"s_add_u32 s{S_T1}, s{S_T1}, {LDS_STAT}")
    e(f"v_add_u32 v49, s{S_T1}, v48")
    e(f"v_mov_b32 v50, v{V_M}")
    e(f"v_add_f32 v51, v{V_L0}, v{V_L1}")
    e("ds_write_b64 v49, v[50:51]")

def k_reads(base):
    return [f"ds_read_b128 {ar(A_K+4*st,4)}, v{V_KA+st} offset:{base}" for st in range(8)]

def resc(g, db, pk=False):
    out = []
    for qh in range(2):
        al = V_AA if qh == 0 else V_AB
        if pk:
            for k in range(0, 16, 2):
                r = V_O + (db*2+qh)*16 + k
                out.append(f"v_pk_mul_f32 {vr(r,2)}, {vr(r,2)}, {vr(al,2)} op_sel_hi:[1,0]")
        else:
            for k in range(16):
                r = V_O + (db*2+qh)*16 + k
                out.append(f"v_mul_f32 v{r}, v{r}, v{al}")
    return out

def lsum(g):
    s0, s1 = V_S, V_S + 16
    o = []
    if g.a.pka:
        for qh, (sb, t) in enumerate([(s0, 32), (s1, 34)]):
            pass
        o.append(f"v_pk_add_f32 v[32:33], {vr(s0,2)}, {vr(s0+2,2)}")
        o.append(f"v_pk_add_f32 v[34:35], {vr(s1,2)}, {vr(s1+2,2)}")
        for k in range(4, 16, 2):
            o.append(f"v_pk_add_f32 v[32:33], v[32:33], {vr(s0+k,2)}")
            o.append(f"v_pk_add_f32 v[34:35], v[34:35], {vr(s1+k,2)}")
        o.append(f"v_fma_f32 v{V_L0}, v{V_L0}, v{V_AA}, v32")
        o.append(f"v_fma_f32 v{V_L1}, v{V_L1}, v{V_AB}, v34")
        o.append(f"v_add_f32 v{V_L0}, v{V_L0}, v33")
        o.append(f"v_add_f32 v{V_L1}, v{V_L1}, v35")
    else:
        o.append(f"v_fma_f32 v{V_L0}, v{V_L0}, v{V_AA}, v{s0}")
        o.append(f"v_fma_f32 v{V_L1}, v{V_L1}, v{V_AB}, v{s1}")
        o.append(f"v_add_f32 v{V_T0}, v{s0+1}, v{s0+2}")
        o.append(f"v_add_f32 v{V_T1}, v{s1+1}, v{s1+2}")
        for k in range(3, 16):
            d0 = V_L0 if (k & 1) else V_T0
            d1 = V_L1 if (k & 1) else V_T1
            o.append(f"v_add_f32 v{d0}, v{d0}, v{s0+k}")
            o.append(f"v_add_f32 v{d1}, v{d1}, v{s1+k}")
        o.append(f"v_add_f32 v{V_L0}, v{V_L0}, v{V_T0}")
        o.append(f"v_add_f32 v{V_L1}, v{V_L1}, v{V_T1}")
    return o

def spread(g, mf, fill):
    n = len(mf); k = 0
    for i, m in enumerate(mf):
        g.e(m)
        upto = (len(fill) * (i + 1) + n - 1) // n
        while k < upto:
            g.e(fill[k]); k += 1

def tile(g, e, tag):
    base = e * 16384
    g.c(f"---- tile parity {e}: QK")
    def mf(st, qh):
        cc = "0" if st == 0 else vr(V_S+16*qh, 16)
        return f"v_mfma_f32_32x32x16_bf16 {vr(V_S+16*qh,16)}, {ar(A_K+4*st,4)}, {ar(A_Q+(qh*8+st)*4,4)}, {cc}"
    for st in range(8):
        if st < 4: g.e(f"s_waitcnt lgkmcnt({7-st})")
        elif st == 4: g.e("s_waitcnt lgkmcnt(0)")
        g.e(mf(st,0)); g.e(mf(st,1))
    need_v(g)
    g.e("s_nop 5")
    g.e(f"s_cmp_lt_u32 s{S_I}, s{S_JM}")
    g.e(f"s_cbranch_scc0 L_mask_{tag}")
    g.lab(f"L_nomask_{tag}")
    g.ool.append(f"L_mask_{tag}:")
    for j in range(16):
        for qh in range(2):
            r = V_S + 16*qh + j
            g.ool.append(f"    v_cndmask_b32 v{r}, v{V_R}, v{r}, {sr(S_MASK+2*j,2)}")
    g.ool.append(f"    s_branch L_nomask_{tag}")
    s0, s1 = V_S, V_S + 16
    g.e(f"v_max3_f32 v{V_T0}, v{s0}, v{s0+1}, v{s0+2}")
    g.e(f"v_max3_f32 v{V_T1}, v{s1}, v{s1+1}, v{s1+2}")
    for k in range(3, 15, 2):
        g.e(f"v_max3_f32 v{V_T0}, v{V_T0}, v{s0+k}, v{s0+k+1}")
        g.e(f"v_max3_f32 v{V_T1}, v{V_T1}, v{s1+k}, v{s1+k+1}")
    g.e(f"v_max_f32 v{V_T0}, v{V_T0}, v{s0+15}")
    g.e(f"v_max_f32 v{V_T1}, v{V_T1}, v{s1+15}")
    g.e(f"s_add_u32 s{S_I}, s{S_I}, 3")
    g.e(f"v_add_u32 v{V_CNT}, 1, v{V_CNT}")
    g.e(f"v_permlane32_swap_b32 v{V_T0}, v{V_T1}")
    g.e(f"v_max_f32 v{V_T0}, v{V_T0}, v{V_T1}")
    g.e(f"v_mul_f32 v{V_T0}, s{S_C}, v{V_T0}")
    g.e(f"v_max_f32 v{V_MA}, v{V_M}, v{V_T0}")
    g.e(f"v_sub_f32 v{V_T1}, v{V_M}, v{V_MA}")
    g.e(f"v_mov_b32 v{V_MB}, v{V_MA}")
    g.e(f"v_exp_f32 v{V_AA}, v{V_T1}")
    g.e(f"v_mov_b32 v{V_M}, v{V_MA}")
    g.e(f"v_permlane32_swap_b32 v{V_MA}, v{V_MB}")
    g.e(f"v_mov_b32 v{V_AB}, v{V_AA}")
    if g.a.pkf:
        for j in range(0, 16, 2):
            for qh in range(2):
                r = V_S + 16*qh + j
                m = V_MA if qh == 0 else V_MB
                g.e(f"v_pk_fma_f32 {vr(r,2)}, {vr(r,2)}, {sr(S_C2,2)}, {vr(m,2)} op_sel_hi:[1,1,0] neg_lo:[0,0,1] neg_hi:[0,0,1]")
            if j == 0: g.e(f"v_permlane32_swap_b32 v{V_AA}, v{V_AB}")
    else:
        for j in range(16):
            for qh in range(2):
                r = V_S + 16*qh + j
                m = V_MA if qh == 0 else V_MB
                g.e(f"v_fma_f32 v{r}, v{r}, s{S_C}, -v{m}")
            if j == 0: g.e(f"v_permlane32_swap_b32 v{V_AA}, v{V_AB}")
    cv = []
    for ts in range(2):
        for r in range(4):
            for qh in range(2):
                src = V_S + 16*qh + 8*ts + 2*r
                cv.append(f"v_cvt_pk_bf16_f32 v{V_P + (qh*2+ts)*4 + r}, v{src}, v{src+1}")
    for j in range(16):
        for qh in range(2):
            r = V_S + 16*qh + j
            g.e(f"v_exp_f32 v{r}, v{r}")
    g.e(f"ds_read_b32 v{V_PT}, v{V_FLAG}")
    for x in cv: g.e(x)
    g.e(f"s_cmp_ge_u32 s{S_I}, s{S_NT}")
    g.e(f"s_cbranch_scc1 L_last_{tag}")
    g.c("PV")
    poll(g, "v" + tag, True)
    reads = v_reads(base)
    for r in reads[:12]: g.e(r)
    for x in resc(g, 0, True): g.e(x)
    g.e("s_waitcnt lgkmcnt(11)")
    for r in reads[12:]: g.e(r)
    ls = lsum(g)
    g.e("s_waitcnt lgkmcnt(12)")
    spread(g, [pv(0,0,0), pv(0,0,1), pv(0,1,0), pv(0,1,1)], resc(g, 1))
    g.e("s_waitcnt lgkmcnt(0)")
    g.e(f"ds_write_b32 v{V_DONE}, v{V_CNT}")
    g.e(f"ds_read_b32 v{V_PT}, v{V_FLAG}")
    need_k(g)
    spread(g, [pv(1,0,0), pv(1,0,1), pv(1,1,0), pv(1,1,1)], resc(g, 2))
    poll(g, "k" + tag, True)
    for r in k_reads((1 - e) * 16384): g.e(r)
    g.e("s_nop 0")
    spread(g, [pv(2,0,0), pv(2,0,1), pv(2,1,0), pv(2,1,1)], resc(g, 3))
    g.e("s_nop 0")
    g.e("s_nop 0")
    spread(g, [pv(3,0,0), pv(3,0,1), pv(3,1,0), pv(3,1,1)], ls)

def last_tile(g, e, tag):
    base = e * 16384
    g.lab(f"L_last_{tag}")
    if g.a.estamps: g.e("s_memrealtime s[90:91]")
    for x in lsum(g): g.e(x)
    g.e("s_nop 1")
    write_stats(g)
    g.e(f"v_mov_b32 v{V_CNT}, 1")
    g.e("s_waitcnt lgkmcnt(0)")
    g.e(f"ds_write_b32 v{V_FIN}, v{V_CNT}")
    for db in range(4):
        for x in resc(g, db, True): g.e(x)
    if g.a.estamps: g.e("s_memrealtime s[92:93]")
    poll(g, "l" + tag)
    if g.a.estamps:
        g.e("s_memrealtime s[94:95]")
        g.e("s_waitcnt lgkmcnt(0)")
    reads = v_reads(base)
    for r in reads[:12]: g.e(r)
    g.e("s_waitcnt lgkmcnt(10)")
    g.e(pv(0,0,0)); g.e(pv(0,0,1))
    for r in reads[12:]: g.e(r)
    g.e("s_waitcnt lgkmcnt(12)")
    g.e(pv(0,1,0)); g.e(pv(0,1,1))
    g.e("s_waitcnt lgkmcnt(8)")
    g.e(pv(1,0,0)); g.e(pv(1,0,1)); g.e(pv(1,1,0)); g.e(pv(1,1,1))
    g.e("s_waitcnt lgkmcnt(0)")
    g.e(pv(2,0,0))
    g.e("s_nop 4")
    w = 0
    for m in [pv(2,0,1), pv(2,1,0), pv(2,1,1), pv(3,0,0), pv(3,0,1), pv(3,1,0), pv(3,1,1)]:
        g.e(owrite(w)); g.e(owrite(w+1)); w += 2
        g.e(m)
    while w < 24:
        g.e(owrite(w)); w += 1
    g.e("s_nop 1")
    while w < 32:
        g.e(owrite(w)); w += 1
    g.e("s_branch L_fin2")

def stamp(g, k):
    if g.a.stamps: g.e(f"s_memrealtime s[{88+2*k}:{89+2*k}]")

def cl_common(g):
    e = g.e
    e(f"s_max_i32 s{S_CL}, s{S_CL}, 0")
    e(f"s_min_i32 s{S_CL}, s{S_CL}, 2048")
    e(f"s_cmp_eq_u32 s{S_CL}, 0")
    e(f"s_cselect_b32 s{S_CLE}, 2048, s{S_CL}")
    e(f"s_add_u32 s{S_NT}, s{S_CLE}, 31")
    e(f"s_lshr_b32 s{S_NT}, s{S_NT}, 5")
    e(f"s_sub_u32 s{S_T1}, s{S_NT}, 1")
    e(f"s_mul_i32 s{S_T2}, s{S_T1}, 171")
    e(f"s_lshr_b32 s{S_T2}, s{S_T2}, 9")
    e(f"s_mul_i32 s{S_T2}, s{S_T2}, 3")
    e(f"s_sub_u32 s{S_T1}, s{S_T1}, s{S_T2}")
    e(f"s_sub_u32 s{S_SH}, {g.a.clast + 3}, s{S_T1}")
    e(f"s_cmp_ge_u32 s{S_SH}, 3")
    e(f"s_cselect_b32 s{S_T2}, 3, 0")
    e(f"s_sub_u32 s{S_SH}, s{S_SH}, s{S_T2}")
    e(f"s_mov_b32 s{S_CLAST}, {g.a.clast}")

V_RA = 52
V_SA = 58; V_FP = 59; V_OV = 60
S_DB, S_DC, S_OA, S_OB = 76, 77, 78, 79

def reduce_setup(g, sg0):
    e = g.e
    e(f"s_mov_b32 s{S_XSRD}, s26"); e(f"s_mov_b32 s{S_XSRD+1}, s27")
    e(f"s_mov_b32 s{S_XSRD+2}, {Q_BYTES}"); e(f"s_mov_b32 s{S_XSRD+3}, 0x20000")
    e(f"s_add_u32 s{S_OA}, s{S_CLAST}, 1")
    e(f"s_cmp_ge_u32 s{S_OA}, 3")
    e(f"s_cselect_b32 s{S_OA}, 0, s{S_OA}")
    e(f"s_add_u32 s{S_OB}, s{S_OA}, 1")
    e(f"s_cmp_ge_u32 s{S_OB}, 3")
    e(f"s_cselect_b32 s{S_OB}, 0, s{S_OB}")
    e(f"s_sub_u32 s{S_DB}, s{S_OB}, s{S_OA}")
    e(f"s_lshl_b32 s{S_DB}, s{S_DB}, 15")
    e(f"s_sub_u32 s{S_DC}, s{S_CLAST}, s{S_OB}")
    e(f"s_lshl_b32 s{S_DC}, s{S_DC}, 15")
    e(f"s_lshl_b32 s{S_OA}, s{S_OA}, 15")
    e("v_lshrrev_b32 v48, 2, v47")
    e("v_and_b32 v49, 3, v47")
    e("v_lshl_add_u32 v48, v48, 3, v49")
    e("v_lshlrev_b32 v48, 10, v48")
    e(f"v_add_u32 v48, s{S_OA}, v48")
    e("v_xor_b32 v49, v46, v47")
    for k in range(6):
        e(f"s_add_u32 s{S_OB}, s{sg0}, {k}")
        e(f"s_and_b32 s{S_T1}, s{S_OB}, 3")
        e(f"s_lshl_b32 s{S_T1}, s{S_T1}, 2")
        e(f"v_xor_b32 v50, s{S_T1}, v49")
        e(f"v_lshl_add_u32 v50, v50, 4, v48")
        e(f"s_lshr_b32 s{S_T1}, s{S_OB}, 3")
        e(f"s_lshl_b32 s{S_T1}, s{S_T1}, 12")
        e(f"s_bfe_u32 s{S_T2}, s{S_OB}, 0x10002")
        e(f"s_lshl_b32 s{S_T2}, s{S_T2}, 8")
        e(f"s_add_u32 s{S_T1}, s{S_T1}, s{S_T2}")
        e(f"v_add_u32 v{V_RA+k}, s{S_T1}, v50")
    e(f"s_lshl_b32 s{S_T1}, s{sg0}, 5")
    e(f"s_add_u32 s{S_T1}, s{S_T1}, {LDS_STAT}")
    e(f"v_lshlrev_b32 v{V_SA}, 3, v46")
    e(f"v_add_u32 v{V_SA}, s{S_T1}, v{V_SA}")
    e(f"v_min_u32 v{V_FP}, 2, v{V_LANE}")
    e(f"v_lshlrev_b32 v{V_FP}, 8, v{V_FP}")
    e(f"v_add_u32 v{V_FP}, {LDS_FIN}, v{V_FP}")
    e(f"s_lshl_b32 s{S_T1}, s{sg0}, 10")
    e(f"s_add_u32 s{S_OA}, s{S_QO0}, s{S_T1}")
    e(f"s_add_u32 s{S_OB}, s{S_OA}, 4096")
    e(f"v_lshlrev_b32 v{V_OV}, 4, v{V_LANE}")

def reduce_code(g, NG, tag):
    e = g.e; a = g.a
    V_ST = 100; V_G = 64; V_ACC = 136; V_IN = 184
    g.lab(f"L_reduce_{tag}")
    e(f"ds_read_b32 v17, v{V_FP}")
    e("s_waitcnt lgkmcnt(0)")
    e(f"v_readlane_b32 s{S_T0}, v17, 0")
    e(f"v_readlane_b32 s{S_T1}, v17, 1")
    e(f"v_readlane_b32 s{S_T2}, v17, 2")
    e(f"s_min_u32 s{S_T1}, s{S_T1}, s{S_T2}")
    e(f"s_lshl_b32 s{S_T1}, s{S_T1}, 1")
    e(f"s_min_u32 s{S_T0}, s{S_T0}, s{S_T1}")
    e(f"s_cmp_lt_u32 s{S_T0}, 2")
    e(f"s_cbranch_scc1 L_reduce_{tag}")
    if a.estamps: e("s_memrealtime s[90:91]")
    def rd_part():
        for k in range(NG):
            for hh in range(2):
                e(f"ds_read_b128 {vr(V_IN + k*8 + hh*4, 4)}, v{V_RA+k} offset:{hh*512}")
    for k in range(NG):
        for ro in range(3):
            e(f"ds_read_b64 {vr(V_ST + (k*3+ro)*2, 2)}, v{V_SA} offset:{k*32 + ro*512}")
        if k == 3 and NG > 4: e("s_waitcnt lgkmcnt(4)")
    e("s_waitcnt lgkmcnt(0)")
    rd_part()
    for k in range(NG): e(f"v_add_u32 v{V_RA+k}, s{S_DB}, v{V_RA+k}")
    def st(k, ro, x): return V_ST + (k*3+ro)*2 + x
    T = 8
    for k in range(NG): e(f"v_max3_f32 v{T+k}, v{st(k,0,0)}, v{st(k,1,0)}, v{st(k,2,0)}")
    for k in range(NG):
        for ro in range(3): e(f"v_sub_f32 v{V_G+(k*3+ro)*2}, v{st(k,ro,0)}, v{T+k}")
    for k in range(NG):
        for ro in range(3): e(f"v_exp_f32 v{V_G+(k*3+ro)*2}, v{V_G+(k*3+ro)*2}")
    for k in range(NG): e(f"v_mul_f32 v{T+k}, v{V_G+k*6}, v{st(k,0,1)}")
    for ro in range(1, 3):
        for k in range(NG): e(f"v_fma_f32 v{T+k}, v{V_G+(k*3+ro)*2}, v{st(k,ro,1)}, v{T+k}")
    for k in range(NG): e(f"v_rcp_f32 v{T+k}, v{T+k}")
    e("s_nop 0")
    for k in range(NG):
        for ro in range(3): e(f"v_mul_f32 v{V_G+(k*3+ro)*2}, v{V_G+(k*3+ro)*2}, v{T+k}")
    def acck(k, ro):
        for x in range(0, 8, 2):
            d = V_ACC + k*8 + x; s_ = V_IN + k*8 + x; f = V_G + (k*3 + ro)*2
            if ro == 0: e(f"v_pk_mul_f32 {vr(d,2)}, {vr(s_,2)}, {vr(f,2)} op_sel_hi:[1,0]")
            else: e(f"v_pk_fma_f32 {vr(d,2)}, {vr(s_,2)}, {vr(f,2)}, {vr(d,2)} op_sel_hi:[1,0,1]")
    def waitfin(lane, lab):
        g.lab(lab)
        e(f"ds_read_b32 v17, v{V_FP}")
        e("s_waitcnt lgkmcnt(0)")
        e(f"v_readlane_b32 s{S_T2}, v17, {lane}")
        e(f"s_cmp_lt_u32 s{S_T2}, 2")
        e(f"s_cbranch_scc1 {lab}")
    for k in range(NG):
        e(f"s_waitcnt lgkmcnt({2*(NG-1-k)})"); acck(k, 0)
    waitfin(1, f"L_rpb_{tag}")
    rd_part()
    for k in range(NG): e(f"v_add_u32 v{V_RA+k}, s{S_DC}, v{V_RA+k}")
    for k in range(NG):
        e(f"s_waitcnt lgkmcnt({2*(NG-1-k)})"); acck(k, 1)
    if a.estamps: e("s_memrealtime s[92:93]")
    waitfin(2, f"L_rpc_{tag}")
    rd_part()
    for k in range(NG):
        e(f"s_waitcnt lgkmcnt({2*(NG-1-k)})")
        acck(k, 2)
        for x in range(4):
            e(f"v_cvt_pk_bf16_f32 v{V_ST + k*4 + x}, v{V_ACC + k*8 + 2*x}, v{V_ACC + k*8 + 2*x + 1}")
        so = S_OA if k < 4 else S_OB
        e(f"buffer_store_dwordx4 {vr(V_ST + k*4, 4)}, v{V_OV}, {sr(S_XSRD,4)}, s{so} offen offset:{(k&3)*1024} {a.stpol}")
    if a.estamps: e("s_memrealtime s[94:95]")
    if tag == "b": e("s_branch L_out")

def build(a):
    g = Gen(a); e = g.e
    stamps, spin, lead = a.stamps, a.spin, a.lead
    pol = (" " + a.nt) if a.nt else ""
    c = (128 ** -0.5) * math.log2(math.e)
    R = -1e9 * math.sqrt(128.0)
    hdr = open("standalone__paged_block_table_kv_pagedattention__sampling.s.ref").read().split("\n")
    head = [l for l in hdr if l.startswith(";") and "@launch" not in l and "Override launch" not in l and "grid=ceil" not in l]
    out = head + [f"; @launch grid=(256,1,1) block=(256,1,1) lds={LDS_TOTAL}",
        '.amdgcn_target "amdgcn-amd-amdhsa--gfx950"', ".text", f".globl {NAME}", ".p2align 8",
        f".type {NAME},@function", f"{NAME}:"]
    e("s_cmp_ge_u32 s2, 256")
    e("s_cbranch_scc1 L_end")
    e("s_load_dwordx8 s[16:23], s[0:1], 0")
    e("s_load_dwordx4 s[24:27], s[0:1], 32")
    if stamps: e("s_load_dwordx2 s[30:31], s[0:1], 56")
    if spin or stamps: e("s_memrealtime s[88:89]")
    if a.clk: e("s_memtime s[62:63]")
    e("v_lshrrev_b32 v2, 6, v0")
    e(f"v_and_b32 v{V_LANE}, 63, v0")
    e(f"v_readfirstlane_b32 s{S_W}, v2")
    e("s_lshr_b32 s3, s2, 3")
    e(f"s_add_u32 s{S_T0}, s2, s3")
    e(f"s_and_b32 s{S_T0}, s{S_T0}, 7")
    e(f"s_lshl_b32 s{S_QO0}, s3, 3")
    e(f"s_add_u32 s{S_QO0}, s{S_QO0}, s{S_T0}")
    e(f"s_lshl_b32 s{S_QO0}, s{S_QO0}, 14")
    e(f"s_lshl_b32 s{S_P1}, s3, 2")
    e(f"v_lshlrev_b32 v{V_FLAG}, 2, v{V_LANE}")
    e(f"v_add_u32 v{V_FLAG}, {LDS_FLAG}, v{V_FLAG}")
    e(f"v_lshrrev_b32 v46, 4, v{V_LANE}")
    e(f"v_and_b32 v47, 15, v{V_LANE}")
    e(f"s_cmp_lg_u32 s{S_W}, 0")
    e("s_cbranch_scc1 L_consumer")
    e(f"v_lshlrev_b32 v6, 3, v{V_LANE}")
    e(f"s_lshl_b32 s{S_P0}, s3, 9")
    e(f"s_mov_b32 s{S_BSRD+2}, 16384"); e(f"s_mov_b32 s{S_BSRD+3}, 0x20000")
    e(f"s_mov_b32 s{S_XSRD+2}, {Q_BYTES}"); e(f"s_mov_b32 s{S_XSRD+3}, 0x20000")
    for k in range(4):
        e(f"v_add_u32 v52, {4*k}, v46")
        e("v_xor_b32 v52, v47, v52")
        e(f"v_lshlrev_b32 v{48+k}, 4, v52")
        e(f"v_lshl_add_u32 v{V_DQ+k}, v46, 8, v{48+k}")
    e("v_mov_b32 v52, 0")
    for k in range(7): e(f"ds_write_b32 v{V_FLAG}, v52 offset:{256*k}")
    e("s_waitcnt lgkmcnt(0)")
    stamp(g, 1)
    e(f"s_mov_b32 s{S_BSRD}, s22"); e(f"s_mov_b32 s{S_BSRD+1}, s23")
    e(f"s_load_dword s{S_CL}, s[24:25], s{S_P1}")
    e(f"buffer_load_dwordx2 {vr(V_BT,2)}, v6, {sr(S_BSRD,4)}, s{S_P0} offen")
    e(f"s_mov_b32 s{S_XSRD}, s16"); e(f"s_mov_b32 s{S_XSRD+1}, s17")
    for gq in range(4):
        e(f"s_mov_b32 m0, {LDS_Q + gq*4096}")
        e(f"s_add_u32 s{S_T1}, s{S_QO0}, {gq*4096}")
        for k in range(4):
            e(f"buffer_load_dwordx4 v{V_DQ+k}, {sr(S_XSRD,4)}, s{S_T1} offen offset:{k*1024}{pol} lds")
    e("s_barrier")
    e(f"s_mov_b32 s{S_KSRD}, s18"); e(f"s_mov_b32 s{S_KSRD+1}, s19")
    e(f"s_mov_b32 s{S_KSRD+2}, {KV_BYTES}"); e(f"s_mov_b32 s{S_KSRD+3}, 0x20000")
    e(f"s_mov_b32 s{S_VSRD}, s20"); e(f"s_mov_b32 s{S_VSRD+1}, s21")
    e(f"s_mov_b32 s{S_VSRD+2}, {KV_BYTES}"); e(f"s_mov_b32 s{S_VSRD+3}, 0x20000")
    e(f"s_lshl_b32 s{S_T2}, s{S_T0}, 8")
    e(f"v_lshlrev_b32 v52, 11, v46")
    e(f"v_add_u32 v52, s{S_T2}, v52")
    for k in range(4):
        e(f"v_add_u32 v53, {k*7168}, v52")
        e(f"v_add_u32 v{V_DK+k}, v53, v{48+k}")
    e("v_lshlrev_b32 v53, 2, v46")
    e("v_xor_b32 v53, v47, v53")
    e(f"v_lshl_add_u32 v{V_DV}, v53, 4, v52")
    for k in range(1, 4): e(f"v_add_u32 v{V_DV+k}, {k*7168}, v{V_DV}")
    e(f"v_mov_b32 v49, {KV_BYTES}")
    e(f"v_lshlrev_b32 v5, 1, v{V_LANE}")
    e("v_add_u32 v7, 1, v5")
    e(f"v_min_u32 v{V_DONE}, 2, v{V_LANE}")
    e(f"v_lshlrev_b32 v{V_DONE}, 8, v{V_DONE}")
    e(f"v_add_u32 v{V_DONE}, {LDS_DONE}, v{V_DONE}")
    e(f"v_mov_b32 v{V_PT}, 0")
    e("s_waitcnt lgkmcnt(0)")
    cl_common(g)
    e(f"s_add_u32 s{S_NP}, s{S_CLE}, 15")
    e(f"s_lshr_b32 s{S_NP}, s{S_NP}, 4")
    if a.noload: e(f"s_mov_b32 s{S_NP}, 0")
    e(f"v_cmp_gt_u32 vcc, s{S_NP}, v5")
    e(f"v_cmp_gt_u32 s[32:33], s{S_NP}, v7")
    e(f"s_mov_b32 s{S_I}, 0"); e(f"s_mov_b32 s{S_CV}, s{S_SH}"); e(f"s_mov_b32 s{S_NV}, 0")
    e(f"s_lshl_b32 s{S_LBV}, s{S_SH}, 15"); e(f"s_add_u32 s{S_LBV}, s{S_LBV}, 8192")
    e(f"s_mov_b32 s{S_J}, 0"); e(f"s_mov_b32 s{S_CI}, s{S_SH}"); e(f"s_mov_b32 s{S_N}, 0"); e(f"s_lshl_b32 s{S_LB}, s{S_SH}, 15")
    e(f"s_and_b32 s{S_T1}, s{S_T0}, 3")
    e(f"s_cmp_eq_u32 s{S_T1}, 1")
    e(f"s_cselect_b32 s{S_T1}, {a.bonus}, 0")
    e(f"s_add_u32 s{S_REM}, s{S_CLE}, s{S_T1}")
    e("s_waitcnt vmcnt(16)")
    stamp(g, 2)
    e(f"v_lshlrev_b32 v{V_BT}, 15, v{V_BT}")
    e(f"v_lshlrev_b32 v{V_BT+1}, 15, v{V_BT+1}")
    e(f"v_cndmask_b32 v{V_BT}, v49, v{V_BT}, vcc")
    e(f"v_cndmask_b32 v{V_BT+1}, v49, v{V_BT+1}, s[32:33]")
    e("s_nop 0")
    def advance(si, sc, sn, sb, extra, tag):
        e(f"s_add_u32 s{si}, s{si}, 1")
        e(f"s_add_u32 s{sc}, s{sc}, 1")
        e(f"s_add_u32 s{sb}, s{sb}, 32768")
        e(f"s_cmp_lt_u32 s{sc}, 3")
        e(f"s_cbranch_scc1 L_nw_{tag}")
        e(f"s_mov_b32 s{sc}, 0")
        e(f"s_add_u32 s{sn}, s{sn}, 1")
        e(f"s_and_b32 s{sb}, s{sn}, 1")
        e(f"s_lshl_b32 s{sb}, s{sb}, 14")
        if extra: e(f"s_add_u32 s{sb}, s{sb}, {extra}")
        g.lab(f"L_nw_{tag}")
    for j in range(lead):
        e(f"v_readlane_b32 s{S_P0}, v{V_BT}, {j}")
        e(f"v_readlane_b32 s{S_P1}, v{V_BT+1}, {j}")
        e("s_nop 2")
        for it in range(2):
            e(f"s_add_u32 m0, s{S_LB}, {it*4096}")
            e("s_nop 0")
            for i in range(4):
                e(f"buffer_load_dwordx4 v{V_DK+i}, {sr(S_KSRD,4)}, s{S_P0 if it == 0 else S_P1} offen offset:{i*1024}{pol} lds")
        advance(S_J, S_CI, S_N, S_LB, 0, f"p{j}")
    e(f"s_mov_b32 s{S_ROLE}, 0")
    reduce_setup(g, S_ROLE)
    for (clmin, L) in reversed(a.table[1:]):
        e(f"s_cmp_ge_u32 s{S_REM}, {clmin}")
        e(f"s_cbranch_scc1 L_var_{L}")
    def group(L, srd, vb, sbase, sp0, sp1, p1):
        for q in range(8):
            it = q >> 2; i = q & 3
            if i == 0: e(f"s_add_u32 m0, s{sbase}, {it*4096}")
            e(f"s_waitcnt vmcnt({L-1})")
            e(f"buffer_load_dwordx4 v{vb+i}, {sr(srd,4)}, s{sp0 if it == 0 else sp1} offen offset:{i*1024}{pol} lds")
            if q == p1:
                e(f"v_add_u32 v{V_CNT}, 1, v{V_CNT}")
                e(f"ds_write_b32 v{V_FLAG}, v{V_CNT}")
    for (clmin, L) in a.table:
        p1 = (L - 1) % 8
        H0 = (16 + 8*lead + p1 - L + 1) // 8
        g.lab(f"L_var_{L}")
        e(f"v_mov_b32 v{V_CNT}, {H0 - 1}")
        g.lab(f"L_lp_{L}")
        e(f"v_readlane_b32 s{S_P2}, v{V_BT}, s{S_I}")
        e(f"v_readlane_b32 s{S_P3}, v{V_BT+1}, s{S_I}")
        e(f"s_cmp_ge_u32 s{S_J}, s{S_NT}")
        e(f"s_cbranch_scc1 L_nok_{L}")
        e(f"v_readlane_b32 s{S_P0}, v{V_BT}, s{S_J}")
        e(f"v_readlane_b32 s{S_P1}, v{V_BT+1}, s{S_J}")
        g.lab(f"L_chk_{L}")
        e("s_waitcnt lgkmcnt(0)")
        e(f"v_readlane_b32 s{S_T1}, v{V_PT}, s{S_CI}")
        e(f"ds_read_b32 v{V_PT}, v{V_DONE}")
        e(f"s_add_u32 s{S_T1}, s{S_T1}, 1")
        e(f"s_cmp_lt_u32 s{S_T1}, s{S_N}")
        e(f"s_cbranch_scc1 L_chk_{L}")
        group(L, S_KSRD, V_DK, S_LB, S_P0, S_P1, p1)
        advance(S_J, S_CI, S_N, S_LB, 0, f"k{L}")
        g.lab(f"L_nok_{L}")
        e("s_nop 0")
        group(L, S_VSRD, V_DV, S_LBV, S_P2, S_P3, p1)
        advance(S_I, S_CV, S_NV, S_LBV, 8192, f"v{L}")
        e(f"s_cmp_lt_u32 s{S_I}, s{S_NT}")
        e(f"s_cbranch_scc1 L_lp_{L}")
        rem = 1 - (p1 - L + 1) // 8
        for k in range(rem - 1, -1, -1):
            e(f"s_waitcnt vmcnt({8*k})")
            e(f"v_add_u32 v{V_CNT}, 1, v{V_CNT}")
            e(f"ds_write_b32 v{V_FLAG}, v{V_CNT}")
        e("s_branch L_ldone")
    g.lab("L_ldone")
    stamp(g, 4)
    e("s_branch L_reduce_a")
    g.lab("L_consumer")
    if a.wstat:
        e("s_mov_b32 s10, 0"); e("s_mov_b32 s11, 0")
    e("s_barrier")
    e(f"s_sub_u32 s{S_CI}, s{S_W}, 1")
    e(f"s_lshl_b32 s{S_LB}, s{S_CI}, 15")
    e(f"v_lshrrev_b32 v3, 5, v{V_LANE}")
    e(f"v_and_b32 v4, 31, v{V_LANE}")
    e("s_waitcnt lgkmcnt(0)")
    e(f"s_load_dword s{S_CL}, s[24:25], s{S_P1}")
    e("v_and_b32 v48, 15, v4")
    e("v_xor_b32 v48, v48, v3")
    e("v_lshlrev_b32 v49, 8, v4")
    for st in range(8):
        e(f"v_xor_b32 v50, {2*st}, v48")
        e(f"v_lshl_add_u32 v50, v50, 4, v49")
        e(f"v_add_u32 v{V_KA+st}, s{S_LB}, v50")
        e(f"v_add_u32 v{52+st}, {LDS_Q}, v50")
    e("v_lshrrev_b32 v48, 2, v47")
    e("v_lshl_add_u32 v49, v3, 2, v48")
    e("v_lshlrev_b32 v49, 8, v49")
    e("v_and_b32 v50, 1, v46")
    e("v_lshl_add_u32 v49, v50, 5, v49")
    e(f"v_and_b32 v50, 3, v{V_LANE}")
    e("v_lshl_add_u32 v49, v50, 3, v49")
    e(f"v_add_u32 v49, s{S_LB}, v49")
    e("v_add_u32 v49, 8192, v49")
    for db in range(4):
        e(f"v_xor_b32 v50, {db}, v48")
        e(f"v_lshl_add_u32 v{V_VA+db}, v50, 6, v49")
    for f in range(16):
        e(f"v_xor_b32 v50, {f}, v{V_LANE}")
        e(f"v_lshlrev_b32 v50, 4, v50")
        e(f"v_add_u32 v{V_EW+f}, s{S_LB}, v50")
    e(f"s_lshl_b32 s{S_T1}, s{S_W}, 8")
    e(f"v_add_u32 v{V_DONE}, s{S_T1}, v{V_FLAG}")
    e(f"v_mov_b32 v{V_CNT}, 0")
    e(f"v_mov_b32 v{V_M}, 0x{f32bits(-3.0e38):08x}")
    e(f"v_mov_b32 v{V_L0}, 0"); e(f"v_mov_b32 v{V_L1}, 0")
    e(f"v_mov_b32 v{V_R}, 0x{f32bits(R):08x}")
    e(f"s_mov_b32 s{S_C}, 0x{f32bits(c):08x}")
    e(f"s_mov_b32 s{S_C2}, s{S_C}"); e(f"s_mov_b32 s{S_C2+1}, s{S_C}")
    for r in range(0, 128, 2):
        e(f"v_pk_mul_f32 {vr(V_O+r,2)}, {vr(V_L0,2)}, {vr(V_L0,2)}")
    e("s_waitcnt lgkmcnt(0)")
    cl_common(g)
    e(f"s_max_u32 s{S_NVB}, s{S_NT}, {lead}")
    e(f"s_add_u32 s{S_NVB}, s{S_NVB}, 3")
    e(f"s_sub_u32 s{S_ROLE}, s{S_CI}, s{S_CLAST}")
    e(f"s_add_u32 s{S_ROLE}, s{S_ROLE}, 2")
    e(f"s_cmp_ge_u32 s{S_ROLE}, 3")
    e(f"s_cselect_b32 s{S_T1}, 3, 0")
    e(f"s_sub_u32 s{S_ROLE}, s{S_ROLE}, s{S_T1}")
    e(f"s_lshl_b32 s{S_T1}, s{S_ROLE}, 8")
    e(f"s_add_u32 s{S_T1}, s{S_T1}, {LDS_FIN - LDS_FLAG}")
    e(f"v_add_u32 v{V_FIN}, s{S_T1}, v{V_FLAG}")
    e(f"s_sub_u32 s{S_JM}, s{S_NT}, 1")
    e(f"s_lshl_b32 s{S_T1}, s{S_JM}, 5")
    e(f"s_sub_i32 s{S_REM}, s{S_CL}, s{S_T1}")
    e(f"s_cmp_eq_u32 s{S_CL}, 0")
    e(f"s_cselect_b32 s{S_JM}, 0, s{S_JM}")
    e("v_lshlrev_b32 v48, 2, v3")
    e(f"v_sub_u32 v48, s{S_REM}, v48")
    for j in range(16):
        tok = (j & 3) + 8 * (j >> 2)
        e(f"v_cmp_gt_i32 {sr(S_MASK+2*j,2)}, v48, {tok}")
    e(f"s_sub_u32 s{S_I}, s{S_CI}, s{S_SH}")
    e(f"s_cmp_lt_u32 s{S_CI}, s{S_SH}")
    e(f"s_cselect_b32 s{S_PAR}, 1, 0")
    e(f"s_cselect_b32 s{S_T1}, 3, 0")
    e(f"s_add_u32 s{S_I}, s{S_I}, s{S_T1}")
    e(f"v_mov_b32 v{V_CNT}, s{S_PAR}")
    e(f"ds_write_b32 v{V_DONE}, v{V_CNT}")
    e(f"s_cmp_ge_u32 s{S_I}, s{S_NT}")
    e("s_cbranch_scc1 L_notiles")
    e(f"s_mov_b32 s{S_H}, 0")
    e(f"s_mov_b32 s{S_NEED}, 2")
    poll(g, "q")
    for qh in range(2):
        for st in range(8):
            e(f"ds_read_b128 {ar(A_Q+(qh*8+st)*4,4)}, v{52+st} offset:{qh*8192}")
        if qh == 0: e("s_waitcnt lgkmcnt(4)")
    e(f"s_cmp_eq_u32 s{S_ROLE}, 0")
    e(f"s_cselect_b32 s{S_T0}, 6, 12")
    reduce_setup(g, S_T0)
    need_k(g)
    e("s_waitcnt lgkmcnt(0)")
    poll(g, "k0")
    e(f"s_cmp_eq_u32 s{S_PAR}, 1")
    e("s_cbranch_scc1 L_start_b")
    for r in k_reads(0): e(r)
    g.lab("L_loop")
    tile(g, 0, "a")
    g.lab("L_loop_b")
    tile(g, 1, "b")
    e("s_branch L_loop")
    g.lab("L_start_b")
    for r in k_reads(16384): e(r)
    e("s_branch L_loop_b")
    last_tile(g, 0, "a")
    last_tile(g, 1, "b")
    g.o += g.ool; g.ool = []
    g.lab("L_notiles")
    e(f"s_cmp_eq_u32 s{S_ROLE}, 0")
    e(f"s_cselect_b32 s{S_T0}, 6, 12")
    reduce_setup(g, S_T0)
    write_stats(g)
    for idx in range(32): e(owrite(idx))
    g.lab("L_fin2")
    e(f"v_mov_b32 v{V_CNT}, 2")
    e("s_waitcnt lgkmcnt(0)")
    e(f"ds_write_b32 v{V_FIN}, v{V_CNT}")
    stamp(g, 4)
    e(f"s_cmp_eq_u32 s{S_ROLE}, 2")
    e("s_cbranch_scc1 L_out")
    e(f"s_cmp_eq_u32 s{S_ROLE}, 0")
    e("s_cbranch_scc1 L_reduce_a")
    reduce_code(g, 4, "b")
    reduce_code(g, 6, "a")
    g.lab("L_out")
    if stamps:
        e("s_waitcnt vmcnt(0)")
        e("s_memrealtime s[98:99]")
        if a.wstat:
            e("s_mov_b32 s90, s10"); e("s_mov_b32 s91, 0"); e("s_mov_b32 s92, s11"); e("s_mov_b32 s93, 0")
        if a.clk:
            e("s_memtime s[94:95]")
            e("s_mov_b32 s92, s62"); e("s_mov_b32 s93, s63")
        e("s_getreg_b32 s100, hwreg(HW_REG_XCC_ID)")
        e("s_getreg_b32 s101, hwreg(HW_REG_HW_ID)")
        e("s_lshl_b32 s3, s2, 2")
        e(f"s_add_u32 s3, s3, s{S_W}")
        e("s_lshl_b32 s3, s3, 6")
        e("v_mov_b32 v2, s3")
        e("s_waitcnt lgkmcnt(0)")
        for k in range(6):
            e(f"v_mov_b32 v4, s{88+2*k}")
            e(f"v_mov_b32 v5, s{89+2*k}")
            e(f"global_store_dwordx2 v2, v[4:5], s[30:31] offset:{8*k}")
            e("s_nop 1")
        e("v_mov_b32 v4, 0"); e("v_mov_b32 v5, 0")
        e("global_store_dwordx2 v2, v[4:5], s[30:31] offset:48")
        e("s_nop 1")
        e("v_mov_b32 v4, s100"); e("v_mov_b32 v5, s101")
        e("global_store_dwordx2 v2, v[4:5], s[30:31] offset:56")
    if spin:
        e(f"s_add_u32 s88, s88, {spin*100}")
        e("s_addc_u32 s89, s89, 0")
        g.lab("L_spin")
        e("s_memrealtime s[90:91]")
        e("s_waitcnt lgkmcnt(0)")
        e("s_sub_u32 s92, s90, s88")
        e("s_subb_u32 s93, s91, s89")
        e("s_cmp_lt_i32 s93, 0")
        e("s_cbranch_scc1 L_spin")
    g.lab("L_end")
    e("s_endpgm")
    out += g.o
    out += ['.section .rodata,"a"', ".p2align 6", f".amdhsa_kernel {NAME}",
        "  .amdhsa_next_free_vgpr 384", "  .amdhsa_next_free_sgpr 102", "  .amdhsa_accum_offset 256",
        "  .amdhsa_group_segment_fixed_size 0", "  .amdhsa_kernarg_size 64", "  .amdhsa_user_sgpr_count 2",
        "  .amdhsa_user_sgpr_kernarg_segment_ptr 1", "  .amdhsa_system_sgpr_workgroup_id_x 1",
        ".end_amdhsa_kernel", ""]
    return "\n".join(out)

def parse():
    ap = argparse.ArgumentParser()
    ap.add_argument("-L", type=int, default=20)
    ap.add_argument("--lin", default="")
    ap.add_argument("--nt", default="nt")
    ap.add_argument("--bonus", type=int, default=0)
    ap.add_argument("--lead", type=int, default=1)
    ap.add_argument("--gl", type=int, default=0)
    ap.add_argument("--ga", type=int, default=5)
    ap.add_argument("--gb", type=int, default=10)
    ap.add_argument("--spin", type=int, default=0)
    ap.add_argument("--stamps", action="store_true")
    ap.add_argument("--estamps", action="store_true")
    ap.add_argument("--noload", action="store_true")
    ap.add_argument("--clk", action="store_true")
    ap.add_argument("--wstat", action="store_true")
    ap.add_argument("--clast", type=int, default=1)
    ap.add_argument("--pkr", type=int, default=1)
    ap.add_argument("--pka", type=int, default=0)
    ap.add_argument("--pkf", type=int, default=1)
    ap.add_argument("--stpol", default="")
    ap.add_argument("-o", default="standalone__paged_block_table_kv_pagedattention__sampling.s")
    a = ap.parse_args()
    if a.lin:
        L0, L1 = [float(x) for x in a.lin.split(",")]
        tab = []
        for cl in range(1024, 2400):
            L = int(round(L0 + (L1 - L0) * (cl - 1024) / 1024.0))
            L = max(2, min(40, L))
            if not tab or tab[-1][1] != L: tab.append((cl, L))
        tab[0] = (0, tab[0][1])
        a.table = tab
    else:
        a.table = [(0, a.L)]
    return a

if __name__ == "__main__":
    a = parse()
    open(a.o, "w").write(build(a))
```

```python
import sys, struct, math, argparse

NAME = "standalone__paged_block_table_kv_pagedattention__sampling_kernel"
KV_BYTES = 4100 * 32768
Q_BYTES = 32 * 32 * 16 * 128 * 2
LEAD = 6

def f32bits(x): return struct.unpack("<I", struct.pack("<f", x))[0]

class Gen:
    def __init__(self, a): self.o = []; self.a = a; self.ool = []
    def e(self, s): self.o.append("    " + s)
    def lab(self, s): self.o.append(s + ":")
    def c(self, s): self.o.append("    ; " + s)

LDS_Q = 98304
LDS_FLAG = 114688
LDS_DONE = LDS_FLAG + 256
LDS_FIN = LDS_FLAG + 1024
LDS_STAT = LDS_FLAG + 2048
LDS_Q2 = LDS_STAT + 2048
LDS_TOTAL = LDS_Q2 + 16384
LDS_NOSPLIT = LDS_Q2

S_KSRD = 4; S_VSRD = 8; S_XSRD = 12; S_BSRD = 76
S_C2 = 38; S_PAR = 47
S_CL4 = 40; S_KEY4 = 44; S_WSRD = 48
S_MODE, S_TB, S_CLO, S_HD, S_SLOT, S_QOV, S_SH, S_NVB, S_KEY, S_QSRC, S_IMP, S_CLV = 52, 53, 54, 55, 56, 57, 58, 59, 60, 61, 62, 63
S_TE = 77; S_G0 = 76; S_CUT = 46
V_BT2 = 62; V_REM = 28
S_P2, S_P3, S_J, S_LBV, S_CV, S_NV = 34, 35, 36, 37, 38, 39
S_CL, S_CLE, S_W, S_NT, S_NP, S_JM, S_REM, S_H = 64, 65, 66, 67, 68, 69, 70, 71
S_NEED, S_C, S_LB, S_I = 72, 73, 74, 75
S_DB, S_DC, S_OA, S_OB = 76, 77, 78, 79
S_P0, S_P1, S_T0, S_T1, S_T2 = 80, 81, 82, 83, 84
S_QO0, S_ROLE, S_CI, S_N = 85, 86, 87, 70
S_NK = S_N; S_FIRST = 71
V_LANE = 1
V_KA = 8; V_VA = 16
V_DK = 8; V_DV = 12; V_DQ = 16; V_BT = 20
V_FLAG = 22; V_CNT = 23; V_DONE = 24; V_PT = 25; V_FIN = 26
V_R = 27; V_M = 29; V_L0, V_L1 = 30, 31
V_T0, V_T1 = 32, 33
V_MA, V_MB = 34, 36
V_AL = [(38, 40), (42, 44)]
V_RA = 52; V_SA = 58; V_FP = 59; V_OV = 60
V_PP = [64, 80]; V_S = 96; V_O = 128
V_EW = 96
A_Q = 0; A_K = 64; A_V = 96

def vr(b, n): return f"v[{b}:{b+n-1}]"
def ar(b, n): return f"a[{b}:{b+n-1}]"
def sr(b, n): return f"s[{b}:{b+n-1}]"

def poll(g, tag, pre=False):
    if pre:
        g.e("s_waitcnt lgkmcnt(0)")
        g.e(f"v_readfirstlane_b32 s{S_H}, v{V_PT}")
    g.e(f"s_cmp_ge_i32 s{S_H}, s{S_NEED}")
    g.e(f"s_cbranch_scc0 L_poll_{tag}")
    g.lab(f"L_ok_{tag}")
    if g.a.wstat:
        acc = 10 if tag[0] == "k" else 11
        g.ool += [f"L_poll_{tag}:", "    s_memtime s[8:9]", f"L_poll2_{tag}:",
            f"    ds_read_b32 v{V_PT}, v{V_FLAG}", "    s_waitcnt lgkmcnt(0)",
            f"    v_readfirstlane_b32 s{S_H}, v{V_PT}", f"    s_cmp_ge_i32 s{S_H}, s{S_NEED}",
            f"    s_cbranch_scc0 L_poll2_{tag}", "    s_memtime s[100:101]", "    s_waitcnt lgkmcnt(0)",
            "    s_sub_u32 s100, s100, s8", f"    s_add_u32 s{acc}, s{acc}, s100", f"    s_branch L_ok_{tag}"]
        return
    g.ool += [f"L_poll_{tag}:",
        f"    ds_read_b32 v{V_PT}, v{V_FLAG}",
        "    s_waitcnt lgkmcnt(0)",
        f"    v_readfirstlane_b32 s{S_H}, v{V_PT}",
        f"    s_cmp_ge_i32 s{S_H}, s{S_NEED}",
        f"    s_cbranch_scc1 L_ok_{tag}",
        f"    s_branch L_poll_{tag}"]

def need_k_first(g):
    g.e(f"s_lshl_b32 s{S_NEED}, s{S_I}, 1")
    g.e(f"s_add_i32 s{S_NEED}, s{S_NEED}, {3 - LEAD}")
    g.e(f"s_add_u32 s{S_T1}, s{S_I}, 3")
    g.e(f"s_max_i32 s{S_NEED}, s{S_NEED}, s{S_T1}")
def need_k_next():
    return [f"s_lshl_b32 s{S_NEED}, s{S_I}, 1", f"s_add_i32 s{S_NEED}, s{S_NEED}, {9 - LEAD}",
            f"s_add_u32 s{S_T1}, s{S_I}, 6", f"s_max_i32 s{S_NEED}, s{S_NEED}, s{S_T1}"]
def need_v():
    return [f"s_lshl_b32 s{S_NEED}, s{S_I}, 1", f"s_add_u32 s{S_NEED}, s{S_NEED}, {4 + LEAD}",
            f"s_add_u32 s{S_T1}, s{S_I}, s{S_NVB}", f"s_min_i32 s{S_NEED}, s{S_NEED}, s{S_T1}"]

def k_reads(e): return [f"ds_read_b128 {ar(A_K+4*st,4)}, v{V_KA+st} offset:{e*16384}" for st in range(8)]
def v_reads(e):
    return [f"ds_read_b64_tr_b16 {ar(A_V+(db*2+ts)*4+2*u,2)}, v{V_VA+db} offset:{e*16384+ts*4096+u*2048}"
            for db in range(4) for ts in range(2) for u in range(2)]
def qk(st, qh):
    cc = "0" if st == 0 else vr(V_S+16*qh, 16)
    return f"v_mfma_f32_32x32x16_bf16 {vr(V_S+16*qh,16)}, {ar(A_K+4*st,4)}, {ar(A_Q+(qh*8+st)*4,4)}, {cc}"
def pv(e, db, ts, qh):
    o = vr(V_O + (db*2+qh)*16, 16)
    return f"v_mfma_f32_32x32x16_bf16 {o}, {ar(A_V+(db*2+ts)*4,4)}, {vr(V_PP[e]+(qh*2+ts)*4,4)}, {o}"
def owrite(idx):
    db = idx >> 3; jj = idx & 3
    return f"ds_write_b128 v{V_EW + 4*db + jj}, {vr(V_O+4*idx,4)} offset:{idx*1024}"
def resc(e, db, pk=False):
    out = []
    for qh in range(2):
        al = V_AL[e][qh]
        if pk:
            for k in range(0, 16, 2):
                r = V_O + (db*2+qh)*16 + k
                out.append(f"v_pk_mul_f32 {vr(r,2)}, {vr(r,2)}, {vr(al,2)} op_sel_hi:[1,0]")
        else:
            for k in range(16):
                r = V_O + (db*2+qh)*16 + k
                out.append(f"v_mul_f32 v{r}, v{r}, v{al}")
    return out
def lsum(e):
    s0, s1 = V_S, V_S + 16
    aa, ab = V_AL[e]
    o = [f"v_pk_add_f32 v[48:49], {vr(s0,2)}, {vr(s0+2,2)}", f"v_pk_add_f32 v[50:51], {vr(s1,2)}, {vr(s1+2,2)}"]
    for k in range(4, 16, 2):
        o.append(f"v_pk_add_f32 v[48:49], v[48:49], {vr(s0+k,2)}")
        o.append(f"v_pk_add_f32 v[50:51], v[50:51], {vr(s1+k,2)}")
    o += [f"v_fma_f32 v{V_L0}, v{V_L0}, v{aa}, v48", f"v_fma_f32 v{V_L1}, v{V_L1}, v{ab}, v50",
          f"v_add_f32 v{V_L0}, v{V_L0}, v49", f"v_add_f32 v{V_L1}, v{V_L1}, v51"]
    return o
def ew_addrs(g):
    for f in range(16):
        g.e(f"v_xor_b32 v48, {f}, v{V_LANE}")
        g.e(f"v_lshl_add_u32 v{V_EW+f}, v48, 4, s{S_LB}")

def qk_phase(g, fill):
    mf = [qk(st, qh) for st in range(8) for qh in range(2)]
    n = len(mf); k = 0
    for i, m in enumerate(mf):
        st = i >> 1
        if (i & 1) == 0:
            if st < 4: g.e(f"s_waitcnt lgkmcnt({7-st})")
            elif st == 4:
                g.e("s_waitcnt lgkmcnt(0)")
                g.e(f"ds_write_b32 v{V_DONE}, v{V_CNT}")
        g.e(m)
        upto = (len(fill) * (i + 1) + n - 1) // n
        while k < upto:
            g.e(fill[k]); k += 1

def softmax(g, e, tag, imask):
    aa, ab = V_AL[e]
    if imask: g.e(f"s_add_u32 s{S_T2}, s{S_I}, {imask}")
    g.e(f"s_cmp_lt_u32 s{S_T2 if imask else S_I}, s{S_JM}")
    g.e(f"s_cbranch_scc0 L_mask_{tag}")
    g.lab(f"L_nomask_{tag}")
    g.ool.append(f"L_mask_{tag}:")
    prs = ["vcc", "s[32:33]", "s[34:35]", "s[36:37]"]
    for j0 in range(0, 16, 4):
        for j in range(j0, j0 + 4):
            g.ool.append(f"    v_cmp_gt_i32 {prs[j & 3]}, v{V_REM}, {(j & 3) + 8 * (j >> 2)}")
        if True: g.ool.append("    s_nop 1")
        for j in range(j0, j0 + 4):
            for qh in range(2):
                r = V_S + 16*qh + j
                g.ool.append(f"    v_cndmask_b32 v{r}, v{V_R}, v{r}, {prs[j & 3]}")
    g.ool.append(f"    s_branch L_nomask_{tag}")
    s0, s1 = V_S, V_S + 16
    g.e(f"v_max3_f32 v{V_T0}, v{s0}, v{s0+1}, v{s0+2}")
    g.e(f"v_max3_f32 v{V_T1}, v{s1}, v{s1+1}, v{s1+2}")
    for k in range(3, 15, 2):
        g.e(f"v_max3_f32 v{V_T0}, v{V_T0}, v{s0+k}, v{s0+k+1}")
        g.e(f"v_max3_f32 v{V_T1}, v{V_T1}, v{s1+k}, v{s1+k+1}")
    g.e(f"v_max_f32 v{V_T0}, v{V_T0}, v{s0+15}")
    g.e(f"v_max_f32 v{V_T1}, v{V_T1}, v{s1+15}")
    g.e(f"v_add_u32 v{V_CNT}, 1, v{V_CNT}")
    g.e("s_nop 0")
    g.e(f"v_permlane32_swap_b32 v{V_T0}, v{V_T1}")
    g.e(f"v_max_f32 v{V_T0}, v{V_T0}, v{V_T1}")
    g.e(f"v_mul_f32 v{V_T0}, s{S_C}, v{V_T0}")
    g.e(f"v_max_f32 v{V_MA}, v{V_M}, v{V_T0}")
    g.e(f"v_sub_f32 v{V_T1}, v{V_M}, v{V_MA}")
    g.e(f"v_mov_b32 v{V_MB}, v{V_MA}")
    g.e(f"v_exp_f32 v{aa}, v{V_T1}")
    g.e(f"v_mov_b32 v{V_M}, v{V_MA}")
    g.e(f"v_permlane32_swap_b32 v{V_MA}, v{V_MB}")
    g.e(f"v_mov_b32 v{ab}, v{aa}")
    for j in range(0, 16, 2):
        for qh in range(2):
            r = V_S + 16*qh + j
            m = V_MA if qh == 0 else V_MB
            g.e(f"v_pk_fma_f32 {vr(r,2)}, {vr(r,2)}, {sr(S_C2,2)}, {vr(m,2)} op_sel_hi:[1,1,0] neg_lo:[0,0,1] neg_hi:[0,0,1]")
        if j == 0: g.e(f"v_permlane32_swap_b32 v{aa}, v{ab}")
    for j in range(16):
        for qh in range(2):
            r = V_S + 16*qh + j
            g.e(f"v_exp_f32 v{r}, v{r}")
    g.e(f"ds_read_b32 v{V_PT}, v{V_FLAG}")
    for ts in range(2):
        for r in range(4):
            for qh in range(2):
                src = V_S + 16*qh + 8*ts + 2*r
                g.e(f"v_cvt_pk_bf16_f32 v{V_PP[e] + (qh*2+ts)*4 + r}, v{src}, v{src+1}")

def iteration(g, e, tag):
    x = g.e
    g.c(f"---- iteration parity {e}")
    x(f"s_add_u32 s{S_T1}, s{S_I}, 3")
    x(f"s_cmp_ge_u32 s{S_T1}, s{S_NT}")
    x(f"s_cbranch_scc1 L_last_{tag}")
    poll(g, "k" + tag, True)
    for r in k_reads(1 - e): x(r)
    for r in resc(e, 0, True): x(r)
    qk_phase(g, resc(e, 1) + resc(e, 2) + resc(e, 3)[:26])
    for r in resc(e, 3)[26:]: x(r)
    for r in need_v(): x(r)
    softmax(g, 1 - e, tag, 3)
    poll(g, "v" + tag, True)
    rd = v_reads(e)
    for r in rd[:12]: x(r)
    ls = lsum(1 - e)
    for r in ls[:10]: x(r)
    x("s_waitcnt lgkmcnt(10)")
    for r in rd[12:]: x(r)
    for r in ls[10:]: x(r)
    x("s_waitcnt lgkmcnt(12)")
    for ts in range(2):
        for qh in range(2): x(pv(e, 0, ts, qh))
    x("s_waitcnt lgkmcnt(8)")
    for ts in range(2):
        for qh in range(2): x(pv(e, 1, ts, qh))
    x("s_waitcnt lgkmcnt(0)")
    x(f"ds_write_b32 v{V_DONE}, v{V_CNT}")
    x(f"s_add_u32 s{S_I}, s{S_I}, 3")
    for ts in range(2):
        for qh in range(2): x(pv(e, 2, ts, qh))
    x(f"v_add_u32 v{V_CNT}, 1, v{V_CNT}")
    for r in need_k_next(): x(r)
    x(pv(e, 3, 0, 0))
    if g.a.split:
      x(f"s_cmp_lg_u32 s{S_IMP}, 0")
      x(f"s_cbranch_scc1 L_imp_{tag}")
      g.lab(f"L_impr_{tag}")
      g.ool += [f"L_imp_{tag}:",
        f"    s_cmp_eq_u32 s{S_IMP}, 2",
        f"    s_cbranch_scc1 L_imp2_{tag}",
        f"    s_add_u32 s{S_T2}, s{S_I}, {g.a.impat}",
        f"    s_cmp_lt_u32 s{S_T2}, s{S_NT}",
        f"    s_cbranch_scc1 L_impr_{tag}",
        f"    global_load_dword v63, v62, s[28:29] sc1",
        f"    s_add_u32 s{S_IMP}, s{S_IMP}, 1",
        f"    s_branch L_impr_{tag}",
        f"L_imp2_{tag}:",
        "    s_waitcnt vmcnt(0)",
        f"    v_readfirstlane_b32 s{S_T2}, v63",
        f"    s_cmp_eq_u32 s{S_T2}, 0",
        f"    s_addc_u32 s{S_IMP}, 0, 0",
        f"    s_branch L_impr_{tag}"]
    x(pv(e, 3, 0, 1))
    x(f"ds_read_b32 v{V_PT}, v{V_FLAG}")
    x(pv(e, 3, 1, 0)); x(pv(e, 3, 1, 1))

def write_stats(g):
    e = g.e
    e(f"v_permlane32_swap_b32 v{V_L0}, v{V_L1}")
    e(f"v_lshlrev_b32 v48, 3, v{V_LANE}")
    e(f"s_lshl_b32 s{S_T1}, s{S_ROLE}, 9")
    e(f"s_add_u32 s{S_T1}, s{S_T1}, {LDS_STAT}")
    e(f"v_add_u32 v49, s{S_T1}, v48")
    e(f"v_mov_b32 v50, v{V_M}")
    e(f"v_add_f32 v51, v{V_L0}, v{V_L1}")
    e("ds_write_b64 v49, v[50:51]")

def last_tile(g, e, tag):
    x = g.e
    g.lab(f"L_last_{tag}")
    if g.a.estamps: x("s_memrealtime s[90:91]")
    if g.a.split:
      x(f"s_cmp_lg_u32 s{S_IMP}, 0")
      x(f"s_cbranch_scc1 L_impb_{tag}")
      g.lab(f"L_impbr_{tag}")
      g.ool += [f"L_impb_{tag}:",
        f"    global_load_dword v63, v62, s[28:29] sc1",
        "    s_waitcnt vmcnt(0)",
        f"    v_readfirstlane_b32 s{S_T2}, v63",
        f"    s_cmp_eq_u32 s{S_T2}, 0",
        f"    s_cbranch_scc1 L_impb_{tag}",
        f"    s_branch L_impbr_{tag}"]
    write_stats(g)
    x(f"v_mov_b32 v{V_CNT}, 1")
    for r in need_v(): x(r)
    x("s_waitcnt lgkmcnt(0)")
    x(f"ds_write_b32 v{V_FIN}, v{V_CNT}")
    ew_addrs(g)
    for db in range(4):
        for r in resc(e, db, True): x(r)
    if g.a.estamps: x("s_memrealtime s[92:93]")
    poll(g, "l" + tag)
    if g.a.estamps:
        x("s_memrealtime s[94:95]"); x("s_waitcnt lgkmcnt(0)")
    rd = v_reads(e)
    for r in rd[:12]: x(r)
    x("s_waitcnt lgkmcnt(10)")
    x(pv(e,0,0,0)); x(pv(e,0,0,1))
    for r in rd[12:]: x(r)
    x("s_waitcnt lgkmcnt(12)")
    x(pv(e,0,1,0)); x(pv(e,0,1,1))
    x("s_waitcnt lgkmcnt(8)")
    x(pv(e,1,0,0)); x("s_nop 3"); x(pv(e,1,0,1)); x("s_nop 3")
    x("s_waitcnt lgkmcnt(0)")
    w = 0
    for m in [pv(e,1,1,0), pv(e,1,1,1), pv(e,2,0,0), pv(e,2,0,1), pv(e,2,1,0), pv(e,2,1,1), pv(e,3,0,0), pv(e,3,0,1), pv(e,3,1,0), pv(e,3,1,1)]:
        x(m)
        x(owrite(w)); w += 1
        if w > 2:
            x(owrite(w)); w += 1
    while w < 32:
        if w == 24: x("s_nop 3")
        x(owrite(w)); w += 1
    x("s_branch L_fin2")

def first_tile(g, e, tag):
    x = g.e
    for r in k_reads(e): x(r)
    qk_phase(g, [])
    x("s_nop 7"); x("s_nop 1")
    softmax(g, e, tag, 0)
    for r in lsum(e): x(r)
    x(f"v_add_u32 v{V_CNT}, 1, v{V_CNT}")
    for r in need_k_next(): x(r)

def stamp(g, k):
    if g.a.stamps: g.e(f"s_memrealtime s[{88+2*k}:{89+2*k}]")

def decide(g):
    e = g.e; a = g.a
    if not a.split:
        e(f"s_cmp_eq_u32 s{S_CL}, 0")
        e(f"s_cselect_b32 s{S_KEY}, 2048, s{S_CL}")
        e(f"s_bfe_u32 s{S_T0}, s{S_QO0}, 0x2000e")
        e(f"s_cmp_eq_u32 s{S_T0}, 1")
        e(f"s_cselect_b32 s{S_T2}, {a.thetal}, -1")
        e(f"s_cselect_b32 s{S_T1}, {a.bonus}, 0")
        e(f"s_cmp_ge_u32 s{S_KEY}, s{S_T2}")
        e(f"s_cselect_b32 s{S_T1}, 4096, s{S_T1}")
        e(f"s_add_u32 s{S_KEY}, s{S_KEY}, s{S_T1}")
        e(f"s_mov_b32 s{S_TB}, 0")
        e(f"s_mov_b32 s{S_QSRC}, {LDS_Q}")
        return
    assert a.hmap == 2
    for p in range(2):
        e(f"s_max_i32 s{S_CL4+p}, s{S_CL4+p}, 0")
        e(f"s_min_i32 s{S_CL4+p}, s{S_CL4+p}, 2048")
    e(f"s_bitcmp1_b32 s3, 0")
    e(f"s_cselect_b32 s{S_CLO}, s{S_CL4+1}, s{S_CL4}")
    e(f"s_cselect_b32 s{S_T1}, s{S_CL4}, s{S_CL4+1}")
    e(f"s_cmp_eq_u32 s{S_CLO}, 0")
    e(f"s_cselect_b32 s{S_KEY}, 2048, s{S_CLO}")
    e(f"s_bfe_u32 s{S_T0}, s{S_QO0}, 0x2000e")
    e(f"s_cmp_eq_u32 s{S_T0}, 1")
    e(f"s_cselect_b32 s{S_CLV}, s{S_CLO}, s{S_T1}")
    e(f"s_cselect_b32 s{S_T1}, s{S_T1}, s{S_CLO}")
    e(f"s_cselect_b32 s{S_MODE}, 2, 1")
    e(f"s_cselect_b32 s{S_T2}, {a.thetal}, -1")
    e(f"s_bitcmp1_b32 s{S_T0}, 0")
    e(f"s_cselect_b32 s{S_MODE}, s{S_MODE}, 0")
    e(f"s_cmp_lt_u32 s{S_CLV}, {a.theta}")
    e(f"s_cselect_b32 s{S_MODE}, 0, s{S_MODE}")
    e(f"s_sub_u32 s{S_T1}, s{S_T1}, 1")
    e(f"s_cmp_ge_u32 s{S_T1}, {a.sigma}")
    e(f"s_cselect_b32 s{S_MODE}, 0, s{S_MODE}")
    e(f"s_cmp_ge_u32 s{S_KEY}, s{S_T2}")
    e(f"s_cselect_b32 s{S_KEY}, 4096, s{S_KEY}")
    e(f"s_mov_b32 s{S_QSRC}, {LDS_Q}")
    e(f"s_xor_b32 s{S_T2}, s3, 1")
    e(f"s_cmp_eq_u32 s{S_MODE}, 2")
    e(f"s_cselect_b32 s{S_T2}, s3, s{S_T2}")
    e(f"s_lshl1_add_u32 s{S_QOV}, s{S_T2}, s2")
    e(f"s_and_b32 s{S_QOV}, s{S_QOV}, 7")
    e(f"s_lshr_b32 s{S_SLOT}, s{S_QOV}, 2")
    e(f"s_lshl1_add_u32 s{S_SLOT}, s{S_T2}, s{S_SLOT}")
    e(f"s_bfe_u32 s{S_HD}, s{S_QO0}, 0x3000e")
    e(f"s_sub_u32 s{S_HD}, s{S_QOV}, s{S_HD}")
    e(f"s_lshl_b32 s{S_HD}, s{S_HD}, 8")
    e(f"s_lshl3_add_u32 s{S_QOV}, s{S_T2}, s{S_QOV}")
    e(f"s_lshl_b32 s{S_QOV}, s{S_QOV}, 14")
    e(f"s_add_u32 s{S_T2}, s{S_CLV}, {31 - 32*a.t0}")
    e(f"s_lshr_b32 s{S_T2}, s{S_T2}, 5")
    e(f"s_and_b32 s{S_T2}, s{S_T2}, 63")
    e(f"s_mul_i32 s{S_CUT}, s{S_T2}, 171")
    e(f"s_lshr_b32 s{S_CUT}, s{S_CUT}, 9")
    e(f"s_mul_i32 s{S_CUT}, s{S_CUT}, 3")
    e(f"s_sub_u32 s{S_CUT}, s{S_T2}, s{S_CUT}")
    e(f"s_add_u32 s{S_CUT}, s{S_CUT}, {a.t0}")
    e(f"s_lshl_b32 s{S_T2}, s{S_CUT}, 5")
    e(f"s_sub_u32 s{S_T2}, s{S_CLV}, s{S_T2}")
    e(f"s_add_u32 s{S_T2}, s{S_T2}, s{S_KEY}")
    e(f"s_mul_i32 s{S_T2}, s{S_T2}, {a.hs}")
    e(f"s_lshr_b32 s{S_T2}, s{S_T2}, 8")
    e(f"s_min_u32 s{S_T2}, s{S_T2}, 2048")
    e(f"s_cmp_eq_u32 s{S_MODE}, 1")
    e(f"s_cselect_b32 s{S_KEY}, s{S_T2}, s{S_KEY}")
    e(f"s_cselect_b32 s{S_CL}, s{S_CLV}, s{S_CLO}")
    e(f"s_cselect_b32 s{S_TB}, s{S_CUT}, 0")
    e(f"s_cselect_b32 s{S_QSRC}, {LDS_Q2}, s{S_QSRC}")

def job_common(g, first=False):
    e = g.e; a = g.a
    e(f"s_cmp_eq_u32 s{S_CL}, 0")
    e(f"s_cselect_b32 s{S_CLE}, 2048, s{S_CL}")
    e(f"s_add_u32 s{S_TE}, s{S_CLE}, 31")
    e(f"s_lshr_b32 s{S_TE}, s{S_TE}, 5")
    if a.split and not first:
        e(f"s_cmp_eq_u32 s{S_MODE}, 2")
        e(f"s_cselect_b32 s{S_TE}, s{S_CUT}, s{S_TE}")
    e(f"s_sub_u32 s{S_NT}, s{S_TE}, s{S_TB}")
    e(f"s_sub_u32 s{S_T1}, s{S_NT}, 1")
    e(f"s_mul_i32 s{S_T2}, s{S_T1}, 171")
    e(f"s_lshr_b32 s{S_T2}, s{S_T2}, 9")
    e(f"s_mul_i32 s{S_T2}, s{S_T2}, 3")
    e(f"s_sub_u32 s{S_T1}, s{S_T1}, s{S_T2}")
    e(f"s_sub_u32 s{S_SH}, {a.clast + 3}, s{S_T1}")
    e(f"s_cmp_ge_u32 s{S_SH}, 3")
    e(f"s_cselect_b32 s{S_T2}, 3, 0")
    e(f"s_sub_u32 s{S_SH}, s{S_SH}, s{S_T2}")

def next_job(g):
    e = g.e
    e(f"s_mov_b32 s{S_MODE}, 0")
    e(f"s_mov_b32 s{S_CL}, s{S_CLO}")
    e(f"s_mov_b32 s{S_TB}, 0")
    e(f"s_mov_b32 s{S_QSRC}, {LDS_Q}")

def reduce_setup(g, sg0):
    e = g.e
    cl = g.a.clast
    cA = (cl + 1) % 3
    e(f"s_mov_b32 s{S_G0}, s{sg0}")
    e("v_lshrrev_b32 v48, 2, v47")
    e("v_and_b32 v49, 3, v47")
    e("v_lshl_add_u32 v48, v48, 3, v49")
    e("v_lshlrev_b32 v48, 10, v48")
    if cA: e(f"v_add_u32 v48, {cA*32768}, v48")
    e("v_xor_b32 v49, v46, v47")
    for k in range(6):
        e(f"s_add_u32 s{S_OB}, s{sg0}, {k}")
        e(f"s_and_b32 s{S_T1}, s{S_OB}, 3")
        e(f"s_lshl_b32 s{S_T1}, s{S_T1}, 2")
        e(f"v_xor_b32 v50, s{S_T1}, v49")
        e(f"v_lshl_add_u32 v50, v50, 4, v48")
        e(f"s_lshr_b32 s{S_T1}, s{S_OB}, 3")
        e(f"s_lshl_b32 s{S_T1}, s{S_T1}, 12")
        e(f"s_bfe_u32 s{S_T2}, s{S_OB}, 0x10002")
        e(f"s_lshl_b32 s{S_T2}, s{S_T2}, 8")
        e(f"s_add_u32 s{S_T1}, s{S_T1}, s{S_T2}")
        e(f"v_add_u32 v{V_RA+k}, s{S_T1}, v50")
    e(f"s_lshl_b32 s{S_T1}, s{sg0}, 5")
    e(f"s_add_u32 s{S_T1}, s{S_T1}, {LDS_STAT}")
    e(f"v_lshlrev_b32 v{V_SA}, 3, v46")
    e(f"v_add_u32 v{V_SA}, s{S_T1}, v{V_SA}")
    e(f"v_min_u32 v{V_FP}, 2, v{V_LANE}")
    e(f"v_lshlrev_b32 v{V_FP}, 8, v{V_FP}")
    e(f"v_add_u32 v{V_FP}, {LDS_FIN}, v{V_FP}")
    e(f"s_lshl_b32 s{S_T1}, s{sg0}, 10")
    e(f"s_add_u32 s{S_OA}, s{S_QO0}, s{S_T1}")
    e(f"s_add_u32 s{S_OB}, s{S_OA}, 4096")
    e(f"v_lshlrev_b32 v{V_OV}, 4, v{V_LANE}")

def reduce_code(g, NG, tag, mode):
    e = g.e; a = g.a
    tag = f"{tag}{mode}"
    cC = a.clast; cA = (cC + 1) % 3; cB = (cC + 2) % 3
    dB = ((cB - cA) * 32768) & 0xffffffff; dC = ((cC - cB) * 32768) & 0xffffffff
    dR = ((cA - cC) * 32768) & 0xffffffff
    V_ST = 100; V_G = 64; V_ACC = 136; V_IN = 184
    T = 232; VP = 238; VT = 239; XS = 240; G4 = 32
    g.lab(f"L_reduce_{tag}")
    e(f"ds_read_b32 v{VP}, v{V_FP}")
    e("s_waitcnt lgkmcnt(0)")
    e(f"v_readlane_b32 s{S_T0}, v{VP}, 0")
    e(f"v_readlane_b32 s{S_T1}, v{VP}, 1")
    e(f"v_readlane_b32 s{S_T2}, v{VP}, 2")
    e(f"s_min_u32 s{S_T1}, s{S_T1}, s{S_T2}")
    e(f"s_min_u32 s{S_T0}, s{S_T0}, s{S_T1}")
    e(f"s_cmp_lt_u32 s{S_T0}, 1")
    e(f"s_cbranch_scc1 L_reduce_{tag}")
    if a.estamps: e("s_memrealtime s[90:91]")
    if mode:
        e(f"s_mov_b32 s{S_WSRD}, s30"); e(f"s_mov_b32 s{S_WSRD+1}, s31")
        e(f"s_mov_b32 s{S_WSRD+2}, {80*65536}"); e(f"s_mov_b32 s{S_WSRD+3}, 0x20000")
        e(f"s_lshl_b32 s{S_P0}, s{S_SLOT}, 16")
        e(f"s_add_u32 s{S_P0}, s{S_P0}, 0x100000")
        e(f"s_lshl_b32 s{S_T1}, s{S_G0}, 9")
        e(f"s_add_u32 s{S_P1}, s{S_P0}, s{S_T1}")
        e(f"s_add_u32 s{S_P1}, s{S_P1}, 32768")
        e(f"s_lshl_b32 s{S_T1}, s{S_G0}, 11")
        e(f"s_add_u32 s{S_P0}, s{S_P0}, s{S_T1}")
        e(f"v_lshlrev_b32 v{VT}, 3, v{V_LANE}")
    if mode == 2:
        for k in range(NG):
            e(f"buffer_load_dwordx2 {vr(XS+2*k,2)}, v{VT}, {sr(S_WSRD,4)}, s{S_P1} offen offset:{k*512} {a.hpol}")
        for k in range(NG):
            for hh in range(2):
                e(f"buffer_load_dwordx4 {vr(V_ACC+k*8+hh*4,4)}, v{V_OV}, {sr(S_WSRD,4)}, s{S_P0} offen offset:{(k&1)*2048+hh*1024} {a.hpol}")
            if k & 1: e(f"s_add_u32 s{S_P0}, s{S_P0}, 4096")
    def rd_part():
        for k in range(NG):
            for hh in range(2):
                e(f"ds_read_b128 {vr(V_IN + k*8 + hh*4, 4)}, v{V_RA+k} offset:{hh*512}")
    for k in range(NG):
        for ro in range(3):
            e(f"ds_read_b64 {vr(V_ST + (k*3+ro)*2, 2)}, v{V_SA} offset:{k*32 + ro*512}")
        if k == 3 and NG > 4: e("s_waitcnt lgkmcnt(4)")
    e("s_waitcnt lgkmcnt(0)")
    def st(k, ro, x): return V_ST + (k*3+ro)*2 + x
    for k in range(NG): e(f"v_max3_f32 v{T+k}, v{st(k,0,0)}, v{st(k,1,0)}, v{st(k,2,0)}")
    if mode == 2:
        e(f"s_waitcnt vmcnt({2*NG})")
        for k in range(NG): e(f"v_max_f32 v{T+k}, v{T+k}, v{XS+2*k}")
        for k in range(NG): e(f"v_sub_f32 v{G4+2*k}, v{XS+2*k}, v{T+k}")
    if mode == 1:
        for k in range(NG): e(f"v_mov_b32 v{XS+2*k}, v{T+k}")
    for k in range(NG):
        for ro in range(3): e(f"v_sub_f32 v{V_G+(k*3+ro)*2}, v{st(k,ro,0)}, v{T+k}")
    if mode == 2:
        for k in range(NG): e(f"v_exp_f32 v{G4+2*k}, v{G4+2*k}")
    for k in range(NG):
        for ro in range(3): e(f"v_exp_f32 v{V_G+(k*3+ro)*2}, v{V_G+(k*3+ro)*2}")
    if mode == 2:
        for k in range(NG): e(f"v_mul_f32 v{G4+2*k}, v{G4+2*k}, v{XS+2*k+1}")
        for k in range(NG): e(f"v_fma_f32 v{T+k}, v{V_G+k*6}, v{st(k,0,1)}, v{G4+2*k}")
    else:
        for k in range(NG): e(f"v_mul_f32 v{T+k}, v{V_G+k*6}, v{st(k,0,1)}")
    for ro in range(1, 3):
        for k in range(NG): e(f"v_fma_f32 v{T+k}, v{V_G+(k*3+ro)*2}, v{st(k,ro,1)}, v{T+k}")
    if mode == 1:
        for k in range(NG): e(f"v_mov_b32 v{XS+2*k+1}, v{T+k}")
        for k in range(NG):
            e(f"buffer_store_dwordx2 {vr(XS+2*k,2)}, v{VT}, {sr(S_WSRD,4)}, s{S_P1} offen offset:{k*512} {a.hpol}")
    for k in range(NG): e(f"v_rcp_f32 v{T+k}, v{T+k}")
    e("s_nop 0")
    for k in range(NG):
        for ro in range(3): e(f"v_mul_f32 v{V_G+(k*3+ro)*2}, v{V_G+(k*3+ro)*2}, v{T+k}")
    if mode == 2:
        for k in range(NG): e(f"v_mul_f32 v{G4+2*k}, v{G4+2*k}, v{T+k}")
    def acck(k, ro, first):
        for x in range(0, 8, 2):
            d = V_ACC + k*8 + x; s_ = V_IN + k*8 + x; f = V_G + (k*3 + ro)*2
            if first: e(f"v_pk_mul_f32 {vr(d,2)}, {vr(s_,2)}, {vr(f,2)} op_sel_hi:[1,0]")
            else: e(f"v_pk_fma_f32 {vr(d,2)}, {vr(s_,2)}, {vr(f,2)}, {vr(d,2)} op_sel_hi:[1,0,1]")
    def waitfin(lane, lab):
        g.lab(lab)
        e(f"ds_read_b32 v{VP}, v{V_FP}")
        e("s_waitcnt lgkmcnt(0)")
        e(f"v_readlane_b32 s{S_T2}, v{VP}, {lane}")
        e(f"s_cmp_lt_u32 s{S_T2}, 2")
        e(f"s_cbranch_scc1 {lab}")
    waitfin(0, f"L_rpa_{tag}")
    rd_part()
    for k in range(NG): e(f"v_add_u32 v{V_RA+k}, 0x{dB:x}, v{V_RA+k}")
    if mode == 2:
        e("s_waitcnt vmcnt(0)")
        for k in range(NG):
            for x in range(0, 8, 2):
                d = V_ACC + k*8 + x
                e(f"v_pk_mul_f32 {vr(d,2)}, {vr(d,2)}, {vr(G4+2*k,2)} op_sel_hi:[1,0]")
    for k in range(NG):
        e(f"s_waitcnt lgkmcnt({2*(NG-1-k)})"); acck(k, 0, mode != 2)
    waitfin(1, f"L_rpb_{tag}")
    rd_part()
    for k in range(NG): e(f"v_add_u32 v{V_RA+k}, 0x{dC:x}, v{V_RA+k}")
    for k in range(NG):
        e(f"s_waitcnt lgkmcnt({2*(NG-1-k)})"); acck(k, 1, False)
    if a.estamps: e("s_memrealtime s[92:93]")
    waitfin(2, f"L_rpc_{tag}")
    rd_part()
    for k in range(NG):
        e(f"s_waitcnt lgkmcnt({2*(NG-1-k)})")
        acck(k, 2, False)
        if mode == 1:
            for hh in range(2):
                e(f"buffer_store_dwordx4 {vr(V_ACC+k*8+hh*4,4)}, v{V_OV}, {sr(S_WSRD,4)}, s{S_P0} offen offset:{(k&1)*2048+hh*1024} {a.hpol}")
            if k & 1: e(f"s_add_u32 s{S_P0}, s{S_P0}, 4096")
        else:
            for x in range(4):
                e(f"v_cvt_pk_bf16_f32 v{V_ST + k*4 + x}, v{V_ACC + k*8 + 2*x}, v{V_ACC + k*8 + 2*x + 1}")
            so = S_OA if k < 4 else S_OB
            e(f"buffer_store_dwordx4 {vr(V_ST + k*4, 4)}, v{V_OV}, {sr(S_XSRD,4)}, s{so} offen offset:{(k&3)*1024} {a.stpol}")
    if mode == 1:
        for k in range(NG): e(f"v_add_u32 v{V_RA+k}, 0x{dR:x}, v{V_RA+k}")
        e("s_branch L_jobend")
    else:
        if a.estamps: e("s_memrealtime s[94:95]")
        e("s_branch L_out")

def build(a):
    g = Gen(a); e = g.e
    stamps, spin = a.stamps, a.spin
    pol = (" " + a.nt) if a.nt else ""
    c = (128 ** -0.5) * math.log2(math.e)
    R = -1e9 * math.sqrt(128.0)
    hdr = open("standalone__paged_block_table_kv_pagedattention__sampling.s.ref").read().split("\n")
    head = [l for l in hdr if l.startswith(";") and "@launch" not in l and "Override launch" not in l and "grid=ceil" not in l]
    out = head + [f"; @launch grid=(256,1,1) block=(256,1,1) lds={LDS_TOTAL if a.split else LDS_NOSPLIT}",
        '.amdgcn_target "amdgcn-amd-amdhsa--gfx950"', ".text", f".globl {NAME}", ".p2align 8",
        f".type {NAME},@function", f"{NAME}:"]
    e("s_cmp_ge_u32 s2, 256")
    e("s_cbranch_scc1 L_end")
    e("s_load_dwordx16 s[16:31], s[0:1], 0")
    if spin or stamps: e("s_memrealtime s[88:89]")
    e("v_lshrrev_b32 v2, 6, v0")
    e(f"v_and_b32 v{V_LANE}, 63, v0")
    e(f"v_readfirstlane_b32 s{S_W}, v2")
    e("s_lshr_b32 s3, s2, 3")
    if a.hmap == 1: e(f"s_add_u32 s{S_T0}, s2, s3")
    elif a.hmap == 2: e(f"s_lshl1_add_u32 s{S_T0}, s3, s2")
    elif a.hmap == 3:
        e(f"s_lshl1_add_u32 s{S_T0}, s3, s2"); e(f"s_add_u32 s{S_T0}, s{S_T0}, 1")
    elif a.hmap >= 4:
        e(f"s_and_b32 s{S_T0}, s2, 7"); e(f"s_lshl_b32 s{S_T0}, s{S_T0}, 2")
        e(f"s_lshr_b32 s{S_T0}, 0x{a.hperm}, s{S_T0}")
    e(f"s_and_b32 s{S_T0}, s{S_T0}, 7")
    e(f"s_lshl3_add_u32 s{S_QO0}, s3, s{S_T0}")
    e(f"s_lshl_b32 s{S_QO0}, s{S_QO0}, 14")
    e(f"v_lshrrev_b32 v46, 4, v{V_LANE}")
    e(f"v_and_b32 v47, 15, v{V_LANE}")
    e(f"s_cmp_lg_u32 s{S_W}, 0")
    e("s_cbranch_scc1 L_consumer")
    e(f"v_lshlrev_b32 v6, 3, v{V_LANE}")
    e(f"s_lshl_b32 s{S_P0}, s3, 9")
    e(f"s_lshl_b32 s{S_P1}, s3, 2")
    e(f"s_movk_i32 s{S_BSRD+2}, 0x4000"); e(f"s_mov_b32 s{S_BSRD+3}, 0x20000")
    e(f"s_mov_b32 s{S_XSRD+2}, {Q_BYTES}"); e(f"s_mov_b32 s{S_XSRD+3}, 0x20000")
    e(f"s_mov_b32 s{S_KSRD+2}, {KV_BYTES}"); e(f"s_mov_b32 s{S_KSRD+3}, 0x20000")
    e("v_xor_b32 v52, v47, v46")
    for k in range(4):
        if k: e(f"v_xor_b32 v53, {4*k}, v52")
        e(f"v_lshlrev_b32 v{48+k}, 4, v{53 if k else 52}")
        e(f"v_lshl_add_u32 v{V_DQ+k}, v46, 8, v{48+k}")
    e("s_waitcnt lgkmcnt(0)")
    stamp(g, 1)
    e(f"s_mov_b32 s{S_BSRD}, s22"); e(f"s_mov_b32 s{S_BSRD+1}, s23")
    e(f"s_load_dword s{S_CL}, s[24:25], s{S_P1}")
    e(f"buffer_load_dwordx2 {vr(V_BT,2)}, v6, {sr(S_BSRD,4)}, s{S_P0} offen")
    e(f"s_mov_b32 s{S_XSRD}, s16"); e(f"s_mov_b32 s{S_XSRD+1}, s17")
    for gq in range(4):
        e(f"s_mov_b32 m0, {LDS_Q + gq*4096}")
        e(f"s_add_u32 s{S_T1}, s{S_QO0}, {gq*4096}")
        for k in range(4):
            e(f"buffer_load_dwordx4 v{V_DQ+k}, {sr(S_XSRD,4)}, s{S_T1} offen offset:{k*1024}{pol} lds")
    e(f"s_mov_b32 s{S_KSRD}, s18"); e(f"s_mov_b32 s{S_KSRD+1}, s19")
    e(f"s_lshl_b32 s{S_T2}, s{S_T0}, 8")
    e(f"v_lshlrev_b32 v54, 11, v46")
    e(f"v_add_u32 v54, s{S_T2}, v54")
    e(f"v_add_u32 v{V_DK}, v54, v48")
    for k in range(1, 4):
        e(f"v_add_u32 v53, {k*7168}, v54")
        e(f"v_add_u32 v{V_DK+k}, v53, v{48+k}")
    e(f"v_lshlrev_b32 v5, 1, v{V_LANE}")
    e("v_add_u32 v7, 1, v5")
    e(f"v_mov_b32 v61, {KV_BYTES}")
    e(f"s_mov_b32 s{S_TB}, 0")
    e("s_waitcnt lgkmcnt(0)")
    e(f"s_max_i32 s{S_CL}, s{S_CL}, 0")
    e(f"s_min_i32 s{S_CL}, s{S_CL}, 2048")
    job_common(g, True)
    e(f"s_add_u32 s{S_NP}, s{S_CLE}, 15")
    e(f"s_lshr_b32 s{S_NP}, s{S_NP}, 4")
    if a.noload: e(f"s_mov_b32 s{S_NP}, 0")
    e(f"v_cmp_gt_u32 vcc, s{S_NP}, v5")
    e(f"v_cmp_gt_u32 s[32:33], s{S_NP}, v7")
    e("s_waitcnt vmcnt(16)")
    stamp(g, 2)
    e(f"v_lshlrev_b32 v{V_BT}, 15, v{V_BT}")
    e(f"v_lshlrev_b32 v{V_BT+1}, 15, v{V_BT+1}")
    e(f"v_cndmask_b32 v{V_BT}, v61, v{V_BT}, vcc")
    e(f"v_cndmask_b32 v{V_BT+1}, v61, v{V_BT+1}, s[32:33]")
    def advance(si, sc, sn, sb, extra):
        e(f"s_add_u32 s{si}, s{si}, 1")
        e(f"s_add_u32 s{sc}, s{sc}, 1")
        e(f"s_add_u32 s{sb}, s{sb}, 32768")
        e(f"s_add_u32 s{S_T1}, s{sn}, 2")
        e(f"s_lshl_b32 s{S_T2}, s{S_T1}, 13")
        e(f"s_and_b32 s{S_T2}, s{S_T2}, 16384")
        if extra: e(f"s_add_u32 s{S_T2}, s{S_T2}, {extra}")
        e(f"s_cmp_eq_u32 s{sc}, 3")
        e(f"s_cselect_b32 s{sc}, 0, s{sc}")
        e(f"s_cselect_b32 s{sn}, s{S_T1}, s{sn}")
        e(f"s_cselect_b32 s{sb}, s{S_T2}, s{sb}")
    def opening(tag):
        e(f"s_lshl_b32 s{S_LB}, s{S_SH}, 15")
        e(f"s_mov_b32 s{S_J}, s{S_TB}"); e(f"s_mov_b32 s{S_CI}, s{S_SH}"); e(f"s_mov_b32 s{S_NK}, 0")
        e(f"s_min_u32 s{S_NP}, s{S_NT}, {a.burst}")
        e(f"s_add_u32 s{S_T1}, s{S_NP}, 2")
        e(f"v_mov_b32 v{V_CNT}, s{S_T1}")
        e(f"s_add_u32 s{S_NP}, s{S_NP}, s{S_TB}")
        g.lab(f"L_burst{tag}")
        e(f"v_readlane_b32 s{S_P0}, v{V_BT}, s{S_J}")
        e(f"v_readlane_b32 s{S_P1}, v{V_BT+1}, s{S_J}")
        e("s_nop 2")
        for it in range(2):
            e(f"s_add_u32 m0, s{S_LB}, {it*4096}")
            e("s_nop 0")
            for i in range(4):
                e(f"buffer_load_dwordx4 v{V_DK+i}, {sr(S_KSRD,4)}, s{S_P0 if it == 0 else S_P1} offen offset:{i*1024}{pol} lds")
        advance(S_J, S_CI, S_N, S_LB, 0)
        e(f"s_cmp_lt_u32 s{S_J}, s{S_NP}")
        e(f"s_cbranch_scc1 L_burst{tag}")
        stamp(g, 3)
        e(f"s_mov_b32 s{S_I}, s{S_TB}"); e(f"s_mov_b32 s{S_CV}, s{S_SH}"); e(f"s_mov_b32 s{S_NV}, 0")
        e(f"s_lshl_b32 s{S_LBV}, s{S_SH}, 15")
        e(f"s_add_u32 s{S_LBV}, s{S_LBV}, 8192")
    opening("0")
    if a.split:
        e(f"s_and_b32 s{S_P1}, s3, 30")
        e(f"s_lshl_b32 s{S_P1}, s{S_P1}, 2")
        e(f"s_load_dwordx2 {sr(S_CL4,2)}, s[24:25], s{S_P1}")
    e(f"v_lshlrev_b32 v{V_FLAG}, 2, v{V_LANE}")
    e(f"v_add_u32 v{V_FLAG}, {LDS_FLAG}, v{V_FLAG}")
    e("v_mov_b32 v53, 0")
    for k in range(7): e(f"ds_write_b32 v{V_FLAG}, v53 offset:{256*k}")
    e(f"s_mov_b32 s{S_VSRD}, s20"); e(f"s_mov_b32 s{S_VSRD+1}, s21")
    e(f"s_mov_b32 s{S_VSRD+2}, {KV_BYTES}"); e(f"s_mov_b32 s{S_VSRD+3}, 0x20000")
    e("v_lshlrev_b32 v53, 2, v46")
    e("v_xor_b32 v53, v47, v53")
    e(f"v_lshl_add_u32 v{V_DV}, v53, 4, v54")
    for k in range(1, 4): e(f"v_add_u32 v{V_DV+k}, {k*7168}, v{V_DV}")
    e(f"v_min_u32 v{V_DONE}, 2, v{V_LANE}")
    e(f"v_lshlrev_b32 v{V_DONE}, 8, v{V_DONE}")
    e(f"v_add_u32 v{V_FP}, {LDS_FIN}, v{V_DONE}")
    e(f"v_add_u32 v{V_DONE}, {LDS_DONE}, v{V_DONE}")
    e(f"v_mov_b32 v{V_PT}, 0")
    if a.split: e(f"v_mov_b32 v{V_BT2}, 0")
    e("s_waitcnt lgkmcnt(0)")
    e("s_barrier")
    decide(g)
    if a.split:
        e(f"s_cmp_eq_u32 s{S_MODE}, 2")
        e(f"s_cselect_b32 s{S_TE}, s{S_CUT}, s{S_TE}")
        e(f"s_sub_u32 s{S_NT}, s{S_TE}, s{S_TB}")
    cA = (a.clast + 1) % 3
    e("v_lshrrev_b32 v48, 2, v47")
    e("v_and_b32 v49, 3, v47")
    e("v_lshl_add_u32 v48, v48, 3, v49")
    e("v_lshlrev_b32 v48, 10, v48")
    e("v_mov_b32 v51, v52")
    for k in range(6):
        cst = cA*32768 + ((k >> 2) & 1) * 256
        if k & 3: e(f"v_xor_b32 v50, {4*(k&3)}, v51")
        e(f"v_lshl_add_u32 v{V_RA+k}, v{50 if k & 3 else 51}, 4, v48")
        if cst: e(f"v_add_u32 v{V_RA+k}, {cst}, v{V_RA+k}")
    e(f"v_lshlrev_b32 v{V_SA}, 3, v46")
    e(f"v_add_u32 v{V_SA}, {LDS_STAT}, v{V_SA}")
    e(f"v_lshlrev_b32 v{V_OV}, 4, v{V_LANE}")
    e(f"s_mov_b32 s{S_G0}, 0")
    e(f"s_mov_b32 s{S_OA}, s{S_QO0}")
    e(f"s_add_u32 s{S_OB}, s{S_QO0}, 4096")
    if a.split:
        e(f"s_cmp_eq_u32 s{S_MODE}, 1")
        e("s_cbranch_scc1 L_lhelp")
        h = ["L_lhelp:",
             f"    s_lshr_b32 s{S_T1}, s{S_QOV}, 17", f"    s_lshl_b32 s{S_T1}, s{S_T1}, 11",
             ]
        h = ["L_lhelp:", "    s_waitcnt vmcnt(24)",
             f"    s_lshr_b32 s{S_T1}, s{S_QOV}, 17", f"    s_lshl_b32 s{S_T1}, s{S_T1}, 9",
             f"    v_add_u32 v48, s{S_T1}, v6",
             f"    global_load_dwordx2 v[50:51], v48, s[22:23]"]
        for gq in range(4):
            h.append(f"    s_mov_b32 m0, {LDS_Q2 + gq*4096}")
            h.append(f"    s_add_u32 s{S_T1}, s{S_QOV}, {gq*4096}")
            for k in range(4):
                h.append(f"    buffer_load_dwordx4 v{V_DQ+k}, {sr(S_XSRD,4)}, s{S_T1} offen offset:{k*1024}{pol} lds")
        h += [f"    s_mov_b32 s{S_XSRD}, s26", f"    s_mov_b32 s{S_XSRD+1}, s27",
              f"    s_add_u32 s{S_NP}, s{S_CLV}, 15", f"    s_lshr_b32 s{S_NP}, s{S_NP}, 4",
              f"    v_cmp_gt_u32 vcc, s{S_NP}, v5", f"    v_cmp_gt_u32 s[32:33], s{S_NP}, v7",
              f"    v_mov_b32 v{V_BT2}, v{V_BT}", f"    v_mov_b32 v{V_BT2+1}, v{V_BT+1}"]
        for k in range(8): h.append(f"    v_add_u32 v{V_DK+k}, s{S_HD}, v{V_DK+k}")
        sub = Gen(a); job_common(sub); h += sub.o
        h += ["    s_waitcnt vmcnt(16)",
              "    v_lshlrev_b32 v50, 15, v50", "    v_lshlrev_b32 v51, 15, v51",
              f"    v_cndmask_b32 v{V_BT}, v61, v50, vcc", f"    v_cndmask_b32 v{V_BT+1}, v61, v51, s[32:33]",
              "    s_branch L_ljob"]
        g.ool += h
    e(f"s_mov_b32 s{S_XSRD}, s26"); e(f"s_mov_b32 s{S_XSRD+1}, s27")
    g.lab("L_lgo")
    e(f"s_min_u32 s{S_NP}, s{S_NT}, {LEAD}")
    e(f"s_add_u32 s{S_NP}, s{S_NP}, s{S_TB}")
    for (clmin, L) in reversed(a.table[1:]):
        e(f"s_cmp_ge_u32 s{S_KEY}, {clmin}")
        e(f"s_cbranch_scc1 L_var_{L}")
    def group(lims, srd, vb, sbase, sp0, sp1):
        if isinstance(lims, int): lims = [lims] * 8
        hs = [(p - lims[p] + 1) // 8 for p in range(8)]
        best = max(hs); p1 = hs.index(best); lag = -best
        for q in range(8):
            it = q >> 2; i = q & 3
            if i == 0: e(f"s_add_u32 m0, s{sbase}, {it*4096}")
            e(f"s_waitcnt vmcnt({lims[q]-1})")
            e(f"buffer_load_dwordx4 v{vb+i}, {sr(srd,4)}, s{sp0 if it == 0 else sp1} offen offset:{i*1024}{pol} lds")
            if q == p1:
                if lag:
                    e(f"v_subrev_u32 v27, {lag}, v{V_CNT}")
                    e(f"ds_write_b32 v{V_FLAG}, v27")
                else:
                    e(f"ds_write_b32 v{V_FLAG}, v{V_CNT}")
        e(f"v_add_u32 v{V_CNT}, 1, v{V_CNT}")
    for (clmin, L2) in a.table:
        base = L2 // 4; up = (L2 % 4) * 4
        lim16 = [base + 1] * up + [base] * (16 - up)
        LK = lim16[:8]; LV = lim16[8:]
        LT = min(a.tmax, max(base, int(round(L2 / 4.0 * a.tf))))
        L = L2
        g.lab(f"L_var_{L}")
        e(f"s_cmp_ge_u32 s{S_J}, s{S_NP}")
        e(f"s_cbranch_scc1 L_lp_{L}")
        g.lab(f"L_pk_{L}")
        e(f"v_readlane_b32 s{S_P0}, v{V_BT}, s{S_J}")
        e(f"v_readlane_b32 s{S_P1}, v{V_BT+1}, s{S_J}")
        e("s_nop 2")
        group(LK, S_KSRD, V_DK, S_LB, S_P0, S_P1)
        advance(S_J, S_CI, S_N, S_LB, 0)
        e(f"s_cmp_lt_u32 s{S_J}, s{S_NP}")
        e(f"s_cbranch_scc1 L_pk_{L}")
        g.lab(f"L_lp_{L}")
        e(f"s_cmp_ge_u32 s{S_J}, s{S_TE}")
        e(f"s_cbranch_scc1 L_tl_{L}")
        g.lab(f"L_lp2_{L}")
        e(f"v_readlane_b32 s{S_P2}, v{V_BT}, s{S_I}")
        e(f"v_readlane_b32 s{S_P3}, v{V_BT+1}, s{S_I}")
        e(f"v_readlane_b32 s{S_P0}, v{V_BT}, s{S_J}")
        e(f"v_readlane_b32 s{S_P1}, v{V_BT+1}, s{S_J}")
        g.lab(f"L_chk_{L}")
        e("s_waitcnt lgkmcnt(0)")
        e(f"v_readlane_b32 s{S_T1}, v{V_PT}, s{S_CI}")
        e(f"v_readlane_b32 s{S_T2}, v{V_PT}, s{S_CV}")
        e(f"ds_read_b32 v{V_PT}, v{V_DONE}")
        e(f"s_cmp_lt_u32 s{S_NV}, 4")
        e(f"s_cselect_b32 s{S_T2}, s{S_NV}, s{S_T2}")
        e(f"s_cmp_lt_u32 s{S_T2}, s{S_NV}")
        e(f"s_cbranch_scc1 L_chk_{L}")
        e(f"s_add_u32 s{S_T1}, s{S_T1}, 3")
        e(f"s_cmp_lt_u32 s{S_T1}, s{S_N}")
        e(f"s_cbranch_scc1 L_chk_{L}")
        group(LK, S_KSRD, V_DK, S_LB, S_P0, S_P1)
        advance(S_J, S_CI, S_N, S_LB, 0)
        group(LV, S_VSRD, V_DV, S_LBV, S_P2, S_P3)
        advance(S_I, S_CV, S_NV, S_LBV, 8192)
        e(f"s_cmp_lt_u32 s{S_J}, s{S_TE}")
        e(f"s_cbranch_scc1 L_lp2_{L}")
        g.lab(f"L_tl_{L}")
        e(f"v_readlane_b32 s{S_P2}, v{V_BT}, s{S_I}")
        e(f"v_readlane_b32 s{S_P3}, v{V_BT+1}, s{S_I}")
        g.lab(f"L_chv_{L}")
        e("s_waitcnt lgkmcnt(0)")
        e(f"v_readlane_b32 s{S_T2}, v{V_PT}, s{S_CV}")
        e(f"ds_read_b32 v{V_PT}, v{V_DONE}")
        e(f"s_cmp_lt_u32 s{S_NV}, 4")
        e(f"s_cselect_b32 s{S_T2}, s{S_NV}, s{S_T2}")
        e(f"s_cmp_lt_u32 s{S_T2}, s{S_NV}")
        e(f"s_cbranch_scc1 L_chv_{L}")
        group(LT, S_VSRD, V_DV, S_LBV, S_P2, S_P3)
        advance(S_I, S_CV, S_NV, S_LBV, 8192)
        e(f"s_cmp_lt_u32 s{S_I}, s{S_TE}")
        e(f"s_cbranch_scc1 L_tl_{L}")
        lag = (LT - 1) // 8
        for k in range(lag, -1, -1):
            e(f"s_waitcnt vmcnt({8*k})")
            if k:
                e(f"v_subrev_u32 v27, {k}, v{V_CNT}")
                e(f"ds_write_b32 v{V_FLAG}, v27")
            else:
                e(f"ds_write_b32 v{V_FLAG}, v{V_CNT}")
        e("s_branch L_ldone")
    g.lab("L_ldone")
    stamp(g, 4)
    e("s_branch L_red_a")
    if a.split:
        g.lab("L_ljob")
        opening("1")
        e("s_branch L_lgo")
    g.lab("L_consumer")
    if a.wstat:
        e("s_mov_b32 s10, 0"); e("s_mov_b32 s11, 0")
    e("s_barrier")
    if a.split:
        e(f"s_and_b32 s{S_P1}, s3, 30")
        e(f"s_lshl_b32 s{S_P1}, s{S_P1}, 2")
    else:
        e(f"s_lshl_b32 s{S_P1}, s3, 2")
    e(f"v_lshlrev_b32 v{V_FLAG}, 2, v{V_LANE}")
    e(f"v_add_u32 v{V_FLAG}, {LDS_FLAG}, v{V_FLAG}")
    e(f"s_sub_u32 s{S_CI}, s{S_W}, 1")
    e(f"s_lshl_b32 s{S_LB}, s{S_CI}, 15")
    e(f"v_lshrrev_b32 v3, 5, v{V_LANE}")
    e(f"v_and_b32 v4, 31, v{V_LANE}")
    e(f"s_add_u32 s{S_ROLE}, s{S_CI}, {2 - a.clast}")
    if a.clast != 2:
        e(f"s_cmp_ge_u32 s{S_ROLE}, 3")
        e(f"s_cselect_b32 s{S_T1}, 3, 0")
        e(f"s_sub_u32 s{S_ROLE}, s{S_ROLE}, s{S_T1}")
    e(f"s_lshl_b32 s{S_T1}, s{S_ROLE}, 8")
    e(f"s_add_u32 s{S_T1}, s{S_T1}, {LDS_FIN - LDS_FLAG}")
    e(f"v_add_u32 v{V_FIN}, s{S_T1}, v{V_FLAG}")
    e("v_lshrrev_b32 v48, 2, v47")
    e("v_lshl_add_u32 v49, v3, 2, v48")
    e("v_lshlrev_b32 v49, 8, v49")
    e("v_and_b32 v50, 1, v46")
    e("v_lshl_add_u32 v49, v50, 5, v49")
    e(f"v_and_b32 v50, 3, v{V_LANE}")
    e("v_lshl_add_u32 v49, v50, 3, v49")
    e(f"v_add_u32 v49, s{S_LB}, v49")
    e("v_add_u32 v49, 8192, v49")
    for db in range(4):
        e(f"v_xor_b32 v50, {db}, v48")
        e(f"v_lshl_add_u32 v{V_VA+db}, v50, 6, v49")
    e("s_waitcnt lgkmcnt(0)")
    if a.split: e(f"s_load_dwordx2 {sr(S_CL4,2)}, s[24:25], s{S_P1}")
    else: e(f"s_load_dword s{S_CL}, s[24:25], s{S_P1}")
    e(f"s_mov_b32 s{S_XSRD}, s26"); e(f"s_mov_b32 s{S_XSRD+1}, s27")
    e(f"s_mov_b32 s{S_XSRD+2}, {Q_BYTES}"); e(f"s_mov_b32 s{S_XSRD+3}, 0x20000")
    if a.split:
        e(f"s_mov_b32 s{S_KSRD}, s18"); e(f"s_mov_b32 s{S_KSRD+1}, s19")
        e(f"s_mov_b32 s{S_KSRD+2}, {KV_BYTES}"); e(f"s_mov_b32 s{S_KSRD+3}, 0x20000")
        e(f"s_mov_b32 s{S_VSRD}, s20"); e(f"s_mov_b32 s{S_VSRD+1}, s21")
        e(f"s_mov_b32 s{S_VSRD+2}, {KV_BYTES}"); e(f"s_mov_b32 s{S_VSRD+3}, 0x20000")
    e(f"s_cmp_eq_u32 s{S_ROLE}, 0")
    e(f"s_cselect_b32 s{S_T0}, 6, 12")
    reduce_setup(g, S_T0)
    e("v_and_b32 v48, 15, v4")
    e("v_xor_b32 v48, v48, v3")
    e("v_lshlrev_b32 v49, 8, v4")
    for st in range(8):
        e(f"v_xor_b32 v50, {2*st}, v48")
        e(f"v_lshl_add_u32 v50, v50, 4, v49")
        e(f"v_add_u32 v{V_KA+st}, s{S_LB}, v50")
    e(f"s_lshl_b32 s{S_T1}, s{S_W}, 8")
    e(f"v_add_u32 v{V_DONE}, s{S_T1}, v{V_FLAG}")
    e(f"v_mov_b32 v{V_R}, 0x{f32bits(R):08x}")
    e(f"s_mov_b32 s{S_C}, 0x{f32bits(c):08x}")
    e(f"s_mov_b32 s{S_C2}, s{S_C}"); e(f"s_mov_b32 s{S_C2+1}, s{S_C}")
    e("s_waitcnt lgkmcnt(0)")
    if a.split:
        decide(g)
        e(f"s_mov_b32 s{S_IMP}, 0")
    else:
        e(f"s_max_i32 s{S_CL}, s{S_CL}, 0")
        e(f"s_min_i32 s{S_CL}, s{S_CL}, 2048")
        e(f"s_mov_b32 s{S_TB}, 0")
        e(f"s_mov_b32 s{S_QSRC}, {LDS_Q}")
    if a.split:
        e(f"s_lshl_b32 s{S_T1}, s{S_SLOT}, 2")
        e(f"v_mov_b32 v62, s{S_T1}")
        e(f"s_lshl_b32 s{S_T1}, s{S_MODE}, 2")
        e(f"s_add_u32 s{S_T1}, s{S_T1}, s{S_ROLE}")
        e(f"s_cmp_eq_u32 s{S_T1}, 10")
        e(f"s_addc_u32 s{S_IMP}, 0, 0")
    g.lab("L_cjob")
    job_common(g)
    e(f"v_mov_b32 v{V_M}, 0x{f32bits(-3.0e38):08x}")
    e(f"v_mov_b32 v{V_L0}, 0"); e(f"v_mov_b32 v{V_L1}, 0")
    e(f"s_sub_u32 s{S_T1}, s{S_QSRC}, s{S_LB}")
    for st in range(8): e(f"v_add_u32 v{V_S+st}, s{S_T1}, v{V_KA+st}")
    for r in range(0, 128, 2):
        e(f"v_pk_mul_f32 {vr(V_O+r,2)}, {vr(V_L0,2)}, {vr(V_L0,2)}")
    e(f"s_add_u32 s{S_NVB}, s{S_NT}, 3")
    e(f"s_sub_u32 s{S_JM}, s{S_NT}, 1")
    e(f"s_sub_u32 s{S_T1}, s{S_TE}, 1")
    e(f"s_lshl_b32 s{S_T1}, s{S_T1}, 5")
    e(f"s_sub_i32 s{S_REM}, s{S_CL}, s{S_T1}")
    e(f"s_cmp_eq_u32 s{S_CL}, 0")
    e(f"s_cselect_b32 s{S_JM}, 0, s{S_JM}")
    e(f"v_lshrrev_b32 v48, 5, v{V_LANE}")
    e("v_lshlrev_b32 v48, 2, v48")
    e(f"v_sub_u32 v{V_REM}, s{S_REM}, v48")
    e(f"s_sub_u32 s{S_I}, s{S_CI}, s{S_SH}")
    e(f"s_cmp_lt_u32 s{S_CI}, s{S_SH}")
    e(f"s_cselect_b32 s{S_T1}, 3, 0")
    e(f"s_addc_u32 s{S_PAR}, 0, 0")
    e(f"s_add_u32 s{S_I}, s{S_I}, s{S_T1}")
    e(f"v_mov_b32 v{V_CNT}, s{S_PAR}")
    e(f"ds_write_b32 v{V_DONE}, v{V_CNT}")
    e(f"s_lshl_b32 s{S_T1}, s{S_PAR}, 1")
    e(f"s_add_u32 s{S_T1}, s{S_T1}, 1")
    e(f"v_mov_b32 v{V_CNT}, s{S_T1}")
    e(f"s_cmp_ge_u32 s{S_I}, s{S_NT}")
    e("s_cbranch_scc1 L_notiles")
    e(f"s_mov_b32 s{S_H}, 0")
    e(f"s_mov_b32 s{S_NEED}, 2")
    poll(g, "q")
    for qh in range(2):
        for st in range(8):
            e(f"ds_read_b128 {ar(A_Q+(qh*8+st)*4,4)}, v{V_S+st} offset:{qh*8192}")
        if qh == 0: e("s_waitcnt lgkmcnt(4)")
    need_k_first(g)
    e("s_waitcnt lgkmcnt(0)")
    poll(g, "k0")
    e(f"s_cmp_eq_u32 s{S_PAR}, 1")
    e("s_cbranch_scc1 L_start_b")
    first_tile(g, 0, "fa")
    g.lab("L_loop")
    iteration(g, 0, "a")
    g.lab("L_loop_b")
    iteration(g, 1, "b")
    e("s_branch L_loop")
    g.lab("L_start_b")
    first_tile(g, 1, "fb")
    e("s_branch L_loop_b")
    last_tile(g, 0, "a")
    last_tile(g, 1, "b")
    g.o += g.ool; g.ool = []
    g.lab("L_notiles")
    write_stats(g)
    ew_addrs(g)
    for idx in range(32): e(owrite(idx))
    g.lab("L_fin2")
    e(f"v_mov_b32 v{V_CNT}, 2")
    e("s_waitcnt lgkmcnt(0)")
    e(f"ds_write_b32 v{V_FIN}, v{V_CNT}")
    stamp(g, 4)
    e(f"s_cmp_eq_u32 s{S_ROLE}, 0")
    e("s_cbranch_scc1 L_red_a")
    e(f"s_cmp_eq_u32 s{S_ROLE}, 2")
    e("s_cbranch_scc1 L_red_c")
    if a.split:
        e(f"s_cmp_eq_u32 s{S_MODE}, 1")
        e("s_cbranch_scc1 L_reduce_b1")
        e(f"s_cmp_eq_u32 s{S_MODE}, 2")
        e("s_cbranch_scc1 L_reduce_b2")
    reduce_code(g, 4, "b", 0)
    g.lab("L_red_a")
    if a.split:
        e(f"s_cmp_eq_u32 s{S_MODE}, 1")
        e("s_cbranch_scc1 L_reduce_a1")
        e(f"s_cmp_eq_u32 s{S_MODE}, 2")
        e("s_cbranch_scc1 L_reduce_a2")
    reduce_code(g, 6, "a", 0)
    if a.split:
        for m in (1, 2):
            reduce_code(g, 4, "b", m)
            reduce_code(g, 6, "a", m)
    g.lab("L_red_c")
    if a.split:
        e(f"s_cmp_lg_u32 s{S_MODE}, 1")
        e("s_cbranch_scc1 L_out")
        g.lab("L_jobend")
        e("s_waitcnt vmcnt(0) lgkmcnt(0)")
        e("s_barrier")
        next_job(g)
        e(f"s_cmp_lg_u32 s{S_W}, 0")
        e("s_cbranch_scc1 L_cnext")
        e(f"s_lshl_b32 s{S_T1}, s{S_SLOT}, 2")
        e(f"v_mov_b32 v48, s{S_T1}")
        e("v_mov_b32 v49, 1")
        e("v_mov_b32 v50, 0")
        e("v_mov_b32 v51, 2")
        e("s_mov_b64 exec, 1")
        e("global_store_dword v48, v49, s[28:29] sc1")
        e("s_mov_b64 exec, -1")
        e(f"ds_write_b32 v{V_FLAG}, v51")
        for k in range(1, 7): e(f"ds_write_b32 v{V_FLAG}, v50 offset:{256*k}")
        e(f"v_mov_b32 v{V_BT}, v{V_BT2}"); e(f"v_mov_b32 v{V_BT+1}, v{V_BT2+1}")
        for k in range(8): e(f"v_subrev_u32 v{V_DK+k}, s{S_HD}, v{V_DK+k}")
        e(f"v_mov_b32 v{V_PT}, 0")
        job_common(g)
        e("s_waitcnt lgkmcnt(0)")
        e("s_barrier")
        e("s_branch L_ljob")
        g.lab("L_cnext")
        e("s_barrier")
        e("s_branch L_cjob")
    g.lab("L_out")
    if stamps:
        e("s_waitcnt vmcnt(0)")
        e("s_memrealtime s[98:99]")
        if a.wstat:
            e("s_mov_b32 s90, s10"); e("s_mov_b32 s91, 0"); e("s_mov_b32 s92, s11"); e("s_mov_b32 s93, 0")
        e("s_getreg_b32 s100, hwreg(HW_REG_XCC_ID)")
        e("s_getreg_b32 s101, hwreg(HW_REG_HW_ID)")
        e("s_lshl_b32 s3, s2, 2")
        e(f"s_add_u32 s3, s3, s{S_W}")
        e("s_lshl_b32 s3, s3, 6")
        e("v_mov_b32 v2, s3")
        e("s_waitcnt lgkmcnt(0)")
        for k in range(6):
            e(f"v_mov_b32 v4, s{88+2*k}")
            e(f"v_mov_b32 v5, s{89+2*k}")
            e(f"global_store_dwordx2 v2, v[4:5], s[30:31] offset:{8*k}")
            e("s_nop 1")
        e("v_mov_b32 v4, 0"); e("v_mov_b32 v5, 0")
        e("global_store_dwordx2 v2, v[4:5], s[30:31] offset:48")
        e("s_nop 1")
        e("v_mov_b32 v4, s100"); e("v_mov_b32 v5, s101")
        e("global_store_dwordx2 v2, v[4:5], s[30:31] offset:56")
    if spin:
        e(f"s_add_u32 s88, s88, {spin*100}")
        e("s_addc_u32 s89, s89, 0")
        g.lab("L_spin")
        e("s_memrealtime s[90:91]")
        e("s_waitcnt lgkmcnt(0)")
        e("s_sub_u32 s92, s90, s88")
        e("s_subb_u32 s93, s91, s89")
        e("s_cmp_lt_i32 s93, 0")
        e("s_cbranch_scc1 L_spin")
    g.lab("L_end")
    e("s_endpgm")
    out += g.o
    out += ['.section .rodata,"a"', ".p2align 6", f".amdhsa_kernel {NAME}",
        "  .amdhsa_next_free_vgpr 384", "  .amdhsa_next_free_sgpr 102", "  .amdhsa_accum_offset 256",
        "  .amdhsa_group_segment_fixed_size 0", "  .amdhsa_kernarg_size 64", "  .amdhsa_user_sgpr_count 2",
        "  .amdhsa_user_sgpr_kernarg_segment_ptr 1", "  .amdhsa_system_sgpr_workgroup_id_x 1",
        ".end_amdhsa_kernel", ""]
    return "\n".join(out)

def parse():
    ap = argparse.ArgumentParser()
    ap.add_argument("-L", type=int, default=20)
    ap.add_argument("--lin", default="")
    ap.add_argument("--nt", default="nt")
    ap.add_argument("--bonus", type=int, default=0)
    ap.add_argument("--clast", type=int, default=2)
    ap.add_argument("--lead", type=int, default=5)
    ap.add_argument("--tab", default="")
    ap.add_argument("--res", type=int, default=2)
    ap.add_argument("--tf", type=float, default=1.0)
    ap.add_argument("--tmax", type=int, default=32)
    ap.add_argument("--dry", type=int, default=0)
    ap.add_argument("--pf", type=int, default=2)
    ap.add_argument("--theta", type=int, default=1850)
    ap.add_argument("--ahead", type=int, default=10)
    ap.add_argument("--pstep", type=int, default=3)
    ap.add_argument("--pfirst", type=int, default=10)
    ap.add_argument("--lv", type=int, default=40)
    ap.add_argument("--split", type=int, default=0)
    ap.add_argument("--t0", type=int, default=56)
    ap.add_argument("--thetal", type=int, default=1800)
    ap.add_argument("--hs", type=int, default=280)
    ap.add_argument("--impat", type=int, default=18)
    ap.add_argument("--burst", type=int, default=4)
    ap.add_argument("--hmap", type=int, default=2)
    ap.add_argument("--hperm", default="76345210")
    ap.add_argument("--fine", type=float, default=19)
    ap.add_argument("--hpol", default="sc1")
    ap.add_argument("--cheat", type=int, default=0)
    ap.add_argument("--sigma", type=int, default=1700)
    ap.add_argument("--hb", type=int, default=150)
    ap.add_argument("--spin", type=int, default=0)
    ap.add_argument("--stamps", action="store_true")
    ap.add_argument("--estamps", action="store_true")
    ap.add_argument("--noload", action="store_true")
    ap.add_argument("--wstat", action="store_true")
    ap.add_argument("--stpol", default="")
    ap.add_argument("-o", default="standalone__paged_block_table_kv_pagedattention__sampling.s")
    a = ap.parse_args()
    if a.tab:
        a.table = [tuple(int(y) for y in x.split(":")) for x in a.tab.split(",")]
        a.table[0] = (0, a.table[0][1])
    elif a.lin:
        pts = [float(x) for x in a.lin.split(",")]
        tab = []
        for cl in range(1024, 2049):
            u = (cl - 1024) / 1024.0 * (len(pts) - 1)
            k = min(int(u), len(pts) - 2)
            Lf = pts[k] + (pts[k+1] - pts[k]) * (u - k)
            res = 4 if Lf < a.fine else a.res
            L = int(round(res * Lf)) * (4 // res)
            L = max(8, min(160, L))
            if not tab or tab[-1][1] < L: tab.append((cl, L))
        tab[0] = (0, tab[0][1])
        a.table = tab
    else:
        a.table = [(0, 4 * a.L)]
    a.table.append((4096, 4 * a.lv))
    assert not a.split or a.theta > 32 * (a.t0 + 2)
    return a

if __name__ == "__main__":
    a = parse()
    LEAD = a.lead
    open(a.o, "w").write(build(a))
```

```python
import sys, struct, math, argparse

NAME = "standalone__paged_block_table_kv_pagedattention__sampling_kernel"
KV_BYTES = 4100 * 32768
Q_BYTES = 32 * 32 * 16 * 128 * 2
LEAD = 6

def f32bits(x): return struct.unpack("<I", struct.pack("<f", x))[0]

class Gen:
    def __init__(self, a): self.o = []; self.a = a; self.ool = []
    def e(self, s): self.o.append("    " + s)
    def lab(self, s): self.o.append(s + ":")
    def c(self, s): self.o.append("    ; " + s)

LDS_Q = 98304
LDS_FLAG = 114688
LDS_DONE = LDS_FLAG + 256
LDS_FIN = LDS_FLAG + 1024
LDS_STAT = LDS_FLAG + 2048
LDS_Q2 = LDS_STAT + 2048
LDS_TOTAL = LDS_Q2 + 16384
LDS_NOSPLIT = LDS_Q2

S_KSRD = 4; S_VSRD = 8; S_XSRD = 12; S_BSRD = 76
S_C2 = 38; S_PAR = 47
S_CL4 = 40; S_KEY4 = 44; S_WSRD = 48
S_MODE, S_TB, S_CLO, S_HD, S_SLOT, S_QOV, S_SH, S_NVB, S_KEY, S_QSRC, S_IMP, S_CLV = 52, 53, 54, 55, 56, 57, 58, 59, 60, 61, 62, 63
S_TE = 77; S_G0 = 76; S_CUT = 46
V_BT2 = 62; V_REM = 28
S_P2, S_P3, S_J, S_LBV, S_CV, S_NV = 34, 35, 36, 37, 38, 39
S_CL, S_CLE, S_W, S_NT, S_NP, S_JM, S_REM, S_H = 64, 65, 66, 67, 68, 69, 70, 71
S_NEED, S_C, S_LB, S_I = 72, 73, 74, 75
S_DB, S_DC, S_OA, S_OB = 76, 77, 78, 79
S_P0, S_P1, S_T0, S_T1, S_T2 = 80, 81, 82, 83, 84
S_QO0, S_ROLE, S_CI, S_N = 85, 86, 87, 70
S_NK = S_N; S_FIRST = 71
V_LANE = 1
V_KA = 8; V_VA = 16
V_DK = 8; V_DV = 12; V_DQ = 16; V_BT = 20
V_FLAG = 22; V_CNT = 23; V_DONE = 24; V_PT = 25; V_FIN = 26
V_R = 27; V_M = 29; V_L0, V_L1 = 30, 31
V_T0, V_T1 = 32, 33
V_MA, V_MB = 34, 36
V_AL = [(38, 40), (42, 44)]
V_RA = 52; V_SA = 58; V_FP = 59; V_OV = 60
V_PP = [64, 80]; V_S = 96; V_O = 128
V_EW = 96
A_Q = 0; A_K = 64; A_V = 96

def vr(b, n): return f"v[{b}:{b+n-1}]"
def ar(b, n): return f"a[{b}:{b+n-1}]"
def sr(b, n): return f"s[{b}:{b+n-1}]"

def poll(g, tag, pre=False):
    if pre:
        g.e("s_waitcnt lgkmcnt(0)")
        g.e(f"v_readfirstlane_b32 s{S_H}, v{V_PT}")
    g.e(f"s_cmp_ge_i32 s{S_H}, s{S_NEED}")
    g.e(f"s_cbranch_scc0 L_poll_{tag}")
    g.lab(f"L_ok_{tag}")
    if g.a.wstat:
        acc = 10 if tag[0] == "k" else 11
        g.ool += [f"L_poll_{tag}:", "    s_memtime s[8:9]", f"L_poll2_{tag}:",
            f"    ds_read_b32 v{V_PT}, v{V_FLAG}", "    s_waitcnt lgkmcnt(0)",
            f"    v_readfirstlane_b32 s{S_H}, v{V_PT}", f"    s_cmp_ge_i32 s{S_H}, s{S_NEED}",
            f"    s_cbranch_scc0 L_poll2_{tag}", "    s_memtime s[100:101]", "    s_waitcnt lgkmcnt(0)",
            "    s_sub_u32 s100, s100, s8", f"    s_add_u32 s{acc}, s{acc}, s100", f"    s_branch L_ok_{tag}"]
        return
    g.ool += [f"L_poll_{tag}:",
        f"    ds_read_b32 v{V_PT}, v{V_FLAG}",
        "    s_waitcnt lgkmcnt(0)",
        f"    v_readfirstlane_b32 s{S_H}, v{V_PT}",
        f"    s_cmp_ge_i32 s{S_H}, s{S_NEED}",
        f"    s_cbranch_scc1 L_ok_{tag}",
        f"    s_branch L_poll_{tag}"]

def need_k_first(g):
    g.e(f"s_lshl_b32 s{S_NEED}, s{S_I}, 1")
    g.e(f"s_add_i32 s{S_NEED}, s{S_NEED}, {3 - LEAD}")
    g.e(f"s_add_u32 s{S_T1}, s{S_I}, 3")
    g.e(f"s_max_i32 s{S_NEED}, s{S_NEED}, s{S_T1}")
def need_k_next():
    return [f"s_lshl_b32 s{S_NEED}, s{S_I}, 1", f"s_add_i32 s{S_NEED}, s{S_NEED}, {9 - LEAD}",
            f"s_add_u32 s{S_T1}, s{S_I}, 6", f"s_max_i32 s{S_NEED}, s{S_NEED}, s{S_T1}"]
def need_v():
    return [f"s_lshl_b32 s{S_NEED}, s{S_I}, 1", f"s_add_u32 s{S_NEED}, s{S_NEED}, {4 + LEAD}",
            f"s_add_u32 s{S_T1}, s{S_I}, s{S_NVB}", f"s_min_i32 s{S_NEED}, s{S_NEED}, s{S_T1}"]

def k_reads(e): return [f"ds_read_b128 {ar(A_K+4*st,4)}, v{V_KA+st} offset:{e*16384}" for st in range(8)]
def v_reads(e):
    return [f"ds_read_b64_tr_b16 {ar(A_V+(db*2+ts)*4+2*u,2)}, v{V_VA+db} offset:{e*16384+ts*4096+u*2048}"
            for db in range(4) for ts in range(2) for u in range(2)]
def qk(st, qh):
    cc = "0" if st == 0 else vr(V_S+16*qh, 16)
    return f"v_mfma_f32_32x32x16_bf16 {vr(V_S+16*qh,16)}, {ar(A_K+4*st,4)}, {ar(A_Q+(qh*8+st)*4,4)}, {cc}"
def pv(e, db, ts, qh):
    o = vr(V_O + (db*2+qh)*16, 16)
    return f"v_mfma_f32_32x32x16_bf16 {o}, {ar(A_V+(db*2+ts)*4,4)}, {vr(V_PP[e]+(qh*2+ts)*4,4)}, {o}"
def owrite(idx):
    db = idx >> 3; jj = idx & 3
    return f"ds_write_b128 v{V_EW + 4*db + jj}, {vr(V_O+4*idx,4)} offset:{idx*1024}"
def resc(e, db, pk=False):
    out = []
    for qh in range(2):
        al = V_AL[e][qh]
        if pk:
            for k in range(0, 16, 2):
                r = V_O + (db*2+qh)*16 + k
                out.append(f"v_pk_mul_f32 {vr(r,2)}, {vr(r,2)}, {vr(al,2)} op_sel_hi:[1,0]")
        else:
            for k in range(16):
                r = V_O + (db*2+qh)*16 + k
                out.append(f"v_mul_f32 v{r}, v{r}, v{al}")
    return out
def lsum(e):
    s0, s1 = V_S, V_S + 16
    aa, ab = V_AL[e]
    o = [f"v_pk_add_f32 v[48:49], {vr(s0,2)}, {vr(s0+2,2)}", f"v_pk_add_f32 v[50:51], {vr(s1,2)}, {vr(s1+2,2)}"]
    for k in range(4, 16, 2):
        o.append(f"v_pk_add_f32 v[48:49], v[48:49], {vr(s0+k,2)}")
        o.append(f"v_pk_add_f32 v[50:51], v[50:51], {vr(s1+k,2)}")
    o += [f"v_fma_f32 v{V_L0}, v{V_L0}, v{aa}, v48", f"v_fma_f32 v{V_L1}, v{V_L1}, v{ab}, v50",
          f"v_add_f32 v{V_L0}, v{V_L0}, v49", f"v_add_f32 v{V_L1}, v{V_L1}, v51"]
    return o
def ew_addrs(g):
    for f in range(16):
        g.e(f"v_xor_b32 v48, {f}, v{V_LANE}")
        g.e(f"v_lshl_add_u32 v{V_EW+f}, v48, 4, s{S_LB}")

def qk_phase(g, fill):
    mf = [qk(st, qh) for st in range(8) for qh in range(2)]
    n = len(mf); k = 0
    for i, m in enumerate(mf):
        st = i >> 1
        if (i & 1) == 0:
            if st < 4: g.e(f"s_waitcnt lgkmcnt({7-st})")
            elif st == 4:
                g.e("s_waitcnt lgkmcnt(0)")
                g.e(f"ds_write_b32 v{V_DONE}, v{V_CNT}")
        g.e(m)
        upto = (len(fill) * (i + 1) + n - 1) // n
        while k < upto:
            g.e(fill[k]); k += 1

def softmax(g, e, tag, imask):
    aa, ab = V_AL[e]
    if imask: g.e(f"s_add_u32 s{S_T2}, s{S_I}, {imask}")
    g.e(f"s_cmp_lt_u32 s{S_T2 if imask else S_I}, s{S_JM}")
    g.e(f"s_cbranch_scc0 L_mask_{tag}")
    g.lab(f"L_nomask_{tag}")
    g.ool.append(f"L_mask_{tag}:")
    prs = ["vcc", "s[32:33]", "s[34:35]", "s[36:37]"]
    for j0 in range(0, 16, 4):
        for j in range(j0, j0 + 4):
            g.ool.append(f"    v_cmp_gt_i32 {prs[j & 3]}, v{V_REM}, {(j & 3) + 8 * (j >> 2)}")
        if True: g.ool.append("    s_nop 1")
        for j in range(j0, j0 + 4):
            for qh in range(2):
                r = V_S + 16*qh + j
                g.ool.append(f"    v_cndmask_b32 v{r}, v{V_R}, v{r}, {prs[j & 3]}")
    g.ool.append(f"    s_branch L_nomask_{tag}")
    s0, s1 = V_S, V_S + 16
    g.e(f"v_max3_f32 v{V_T0}, v{s0}, v{s0+1}, v{s0+2}")
    g.e(f"v_max3_f32 v{V_T1}, v{s1}, v{s1+1}, v{s1+2}")
    for k in range(3, 15, 2):
        g.e(f"v_max3_f32 v{V_T0}, v{V_T0}, v{s0+k}, v{s0+k+1}")
        g.e(f"v_max3_f32 v{V_T1}, v{V_T1}, v{s1+k}, v{s1+k+1}")
    g.e(f"v_max_f32 v{V_T0}, v{V_T0}, v{s0+15}")
    g.e(f"v_max_f32 v{V_T1}, v{V_T1}, v{s1+15}")
    g.e(f"v_add_u32 v{V_CNT}, 1, v{V_CNT}")
    g.e("s_nop 0")
    g.e(f"v_permlane32_swap_b32 v{V_T0}, v{V_T1}")
    g.e(f"v_max_f32 v{V_T0}, v{V_T0}, v{V_T1}")
    g.e(f"v_mul_f32 v{V_T0}, s{S_C}, v{V_T0}")
    g.e(f"v_max_f32 v{V_MA}, v{V_M}, v{V_T0}")
    g.e(f"v_sub_f32 v{V_T1}, v{V_M}, v{V_MA}")
    g.e(f"v_mov_b32 v{V_MB}, v{V_MA}")
    g.e(f"v_exp_f32 v{aa}, v{V_T1}")
    g.e(f"v_mov_b32 v{V_M}, v{V_MA}")
    g.e(f"v_permlane32_swap_b32 v{V_MA}, v{V_MB}")
    g.e(f"v_mov_b32 v{ab}, v{aa}")
    for j in range(0, 16, 2):
        for qh in range(2):
            r = V_S + 16*qh + j
            m = V_MA if qh == 0 else V_MB
            g.e(f"v_pk_fma_f32 {vr(r,2)}, {vr(r,2)}, {sr(S_C2,2)}, {vr(m,2)} op_sel_hi:[1,1,0] neg_lo:[0,0,1] neg_hi:[0,0,1]")
        if j == 0: g.e(f"v_permlane32_swap_b32 v{aa}, v{ab}")
    for j in range(16):
        for qh in range(2):
            r = V_S + 16*qh + j
            g.e(f"v_exp_f32 v{r}, v{r}")
    g.e(f"ds_read_b32 v{V_PT}, v{V_FLAG}")
    for ts in range(2):
        for r in range(4):
            for qh in range(2):
                src = V_S + 16*qh + 8*ts + 2*r
                g.e(f"v_cvt_pk_bf16_f32 v{V_PP[e] + (qh*2+ts)*4 + r}, v{src}, v{src+1}")

def iteration(g, e, tag):
    x = g.e
    g.c(f"---- iteration parity {e}")
    x(f"s_add_u32 s{S_T1}, s{S_I}, 3")
    x(f"s_cmp_ge_u32 s{S_T1}, s{S_NT}")
    x(f"s_cbranch_scc1 L_last_{tag}")
    poll(g, "k" + tag, True)
    for r in k_reads(1 - e): x(r)
    for r in resc(e, 0, True): x(r)
    qk_phase(g, resc(e, 1) + resc(e, 2) + resc(e, 3)[:26])
    for r in resc(e, 3)[26:]: x(r)
    for r in need_v(): x(r)
    softmax(g, 1 - e, tag, 3)
    poll(g, "v" + tag, True)
    rd = v_reads(e)
    for r in rd[:12]: x(r)
    ls = lsum(1 - e)
    for r in ls[:10]: x(r)
    x("s_waitcnt lgkmcnt(10)")
    for r in rd[12:]: x(r)
    for r in ls[10:]: x(r)
    x("s_waitcnt lgkmcnt(12)")
    for ts in range(2):
        for qh in range(2): x(pv(e, 0, ts, qh))
    x("s_waitcnt lgkmcnt(8)")
    for ts in range(2):
        for qh in range(2): x(pv(e, 1, ts, qh))
    x("s_waitcnt lgkmcnt(0)")
    x(f"ds_write_b32 v{V_DONE}, v{V_CNT}")
    x(f"s_add_u32 s{S_I}, s{S_I}, 3")
    for ts in range(2):
        for qh in range(2): x(pv(e, 2, ts, qh))
    x(f"v_add_u32 v{V_CNT}, 1, v{V_CNT}")
    for r in need_k_next(): x(r)
    x(pv(e, 3, 0, 0))
    if g.a.split:
      x(f"s_cmp_lg_u32 s{S_IMP}, 0")
      x(f"s_cbranch_scc1 L_imp_{tag}")
      g.lab(f"L_impr_{tag}")
      g.ool += [f"L_imp_{tag}:",
        f"    s_cmp_eq_u32 s{S_IMP}, 2",
        f"    s_cbranch_scc1 L_imp2_{tag}",
        f"    s_add_u32 s{S_T2}, s{S_I}, {g.a.impat}",
        f"    s_cmp_lt_u32 s{S_T2}, s{S_NT}",
        f"    s_cbranch_scc1 L_impr_{tag}",
        f"    global_load_dword v63, v62, s[28:29] sc1",
        f"    s_add_u32 s{S_IMP}, s{S_IMP}, 1",
        f"    s_branch L_impr_{tag}",
        f"L_imp2_{tag}:",
        "    s_waitcnt vmcnt(0)",
        f"    v_readfirstlane_b32 s{S_T2}, v63",
        f"    s_cmp_eq_u32 s{S_T2}, 0",
        f"    s_addc_u32 s{S_IMP}, 0, 0",
        f"    s_branch L_impr_{tag}"]
    x(pv(e, 3, 0, 1))
    x(f"ds_read_b32 v{V_PT}, v{V_FLAG}")
    x(pv(e, 3, 1, 0)); x(pv(e, 3, 1, 1))

def write_stats(g):
    e = g.e
    e(f"v_permlane32_swap_b32 v{V_L0}, v{V_L1}")
    e(f"v_lshlrev_b32 v48, 3, v{V_LANE}")
    e(f"s_lshl_b32 s{S_T1}, s{S_ROLE}, 9")
    e(f"s_add_u32 s{S_T1}, s{S_T1}, {LDS_STAT}")
    e(f"v_add_u32 v49, s{S_T1}, v48")
    e(f"v_mov_b32 v50, v{V_M}")
    e(f"v_add_f32 v51, v{V_L0}, v{V_L1}")
    e("ds_write_b64 v49, v[50:51]")

def last_tile(g, e, tag):
    x = g.e
    g.lab(f"L_last_{tag}")
    if g.a.estamps: x("s_memrealtime s[90:91]")
    if g.a.split:
      x(f"s_cmp_lg_u32 s{S_IMP}, 0")
      x(f"s_cbranch_scc1 L_impb_{tag}")
      g.lab(f"L_impbr_{tag}")
      g.ool += [f"L_impb_{tag}:",
        f"    global_load_dword v63, v62, s[28:29] sc1",
        "    s_waitcnt vmcnt(0)",
        f"    v_readfirstlane_b32 s{S_T2}, v63",
        f"    s_cmp_eq_u32 s{S_T2}, 0",
        f"    s_cbranch_scc1 L_impb_{tag}",
        f"    s_branch L_impbr_{tag}"]
    write_stats(g)
    x(f"v_mov_b32 v{V_CNT}, 1")
    for r in need_v(): x(r)
    x("s_waitcnt lgkmcnt(0)")
    x(f"ds_write_b32 v{V_FIN}, v{V_CNT}")
    ew_addrs(g)
    for db in range(4):
        for r in resc(e, db, True): x(r)
    if g.a.estamps: x("s_memrealtime s[92:93]")
    poll(g, "l" + tag)
    if g.a.estamps:
        x("s_memrealtime s[94:95]"); x("s_waitcnt lgkmcnt(0)")
    rd = v_reads(e)
    for r in rd[:12]: x(r)
    x("s_waitcnt lgkmcnt(10)")
    x(pv(e,0,0,0)); x(pv(e,0,0,1))
    for r in rd[12:]: x(r)
    x("s_waitcnt lgkmcnt(12)")
    x(pv(e,0,1,0)); x(pv(e,0,1,1))
    x("s_waitcnt lgkmcnt(8)")
    x(pv(e,1,0,0)); x("s_nop 3"); x(pv(e,1,0,1)); x("s_nop 3")
    x("s_waitcnt lgkmcnt(0)")
    w = 0
    for m in [pv(e,1,1,0), pv(e,1,1,1), pv(e,2,0,0), pv(e,2,0,1), pv(e,2,1,0), pv(e,2,1,1), pv(e,3,0,0), pv(e,3,0,1), pv(e,3,1,0), pv(e,3,1,1)]:
        x(m)
        x(owrite(w)); w += 1
        if w > 2:
            x(owrite(w)); w += 1
    while w < 32:
        if w == 24: x("s_nop 3")
        x(owrite(w)); w += 1
    x("s_branch L_fin2")

def first_tile(g, e, tag):
    x = g.e
    for r in k_reads(e): x(r)
    qk_phase(g, [])
    x("s_nop 7"); x("s_nop 1")
    softmax(g, e, tag, 0)
    for r in lsum(e): x(r)
    x(f"v_add_u32 v{V_CNT}, 1, v{V_CNT}")
    for r in need_k_next(): x(r)

def stamp(g, k):
    if g.a.stamps: g.e(f"s_memrealtime s[{88+2*k}:{89+2*k}]")

def decide(g):
    e = g.e; a = g.a
    if not a.split:
        e(f"s_cmp_eq_u32 s{S_CL}, 0")
        e(f"s_cselect_b32 s{S_KEY}, 2048, s{S_CL}")
        e(f"s_bfe_u32 s{S_T0}, s{S_QO0}, 0x2000e")
        e(f"s_cmp_eq_u32 s{S_T0}, 1")
        e(f"s_cselect_b32 s{S_T2}, {a.thetal}, -1")
        e(f"s_cselect_b32 s{S_T1}, {a.bonus}, 0")
        e(f"s_cmp_ge_u32 s{S_KEY}, s{S_T2}")
        e(f"s_cselect_b32 s{S_T1}, 4096, s{S_T1}")
        e(f"s_add_u32 s{S_KEY}, s{S_KEY}, s{S_T1}")
        e(f"s_mov_b32 s{S_TB}, 0")
        e(f"s_mov_b32 s{S_QSRC}, {LDS_Q}")
        return
    assert a.hmap == 2
    for p in range(2):
        e(f"s_max_i32 s{S_CL4+p}, s{S_CL4+p}, 0")
        e(f"s_min_i32 s{S_CL4+p}, s{S_CL4+p}, 2048")
    e(f"s_bitcmp1_b32 s3, 0")
    e(f"s_cselect_b32 s{S_CLO}, s{S_CL4+1}, s{S_CL4}")
    e(f"s_cselect_b32 s{S_T1}, s{S_CL4}, s{S_CL4+1}")
    e(f"s_cmp_eq_u32 s{S_CLO}, 0")
    e(f"s_cselect_b32 s{S_KEY}, 2048, s{S_CLO}")
    e(f"s_bfe_u32 s{S_T0}, s{S_QO0}, 0x2000e")
    e(f"s_cmp_eq_u32 s{S_T0}, 1")
    e(f"s_cselect_b32 s{S_CLV}, s{S_CLO}, s{S_T1}")
    e(f"s_cselect_b32 s{S_T1}, s{S_T1}, s{S_CLO}")
    e(f"s_cselect_b32 s{S_MODE}, 2, 1")
    e(f"s_cselect_b32 s{S_T2}, {a.thetal}, -1")
    e(f"s_bitcmp1_b32 s{S_T0}, 0")
    e(f"s_cselect_b32 s{S_MODE}, s{S_MODE}, 0")
    e(f"s_cmp_lt_u32 s{S_CLV}, {a.theta}")
    e(f"s_cselect_b32 s{S_MODE}, 0, s{S_MODE}")
    e(f"s_sub_u32 s{S_T1}, s{S_T1}, 1")
    e(f"s_cmp_ge_u32 s{S_T1}, {a.sigma}")
    e(f"s_cselect_b32 s{S_MODE}, 0, s{S_MODE}")
    e(f"s_cmp_ge_u32 s{S_KEY}, s{S_T2}")
    e(f"s_cselect_b32 s{S_KEY}, 4096, s{S_KEY}")
    e(f"s_mov_b32 s{S_QSRC}, {LDS_Q}")
    e(f"s_xor_b32 s{S_T2}, s3, 1")
    e(f"s_cmp_eq_u32 s{S_MODE}, 2")
    e(f"s_cselect_b32 s{S_T2}, s3, s{S_T2}")
    e(f"s_lshl1_add_u32 s{S_QOV}, s{S_T2}, s2")
    e(f"s_and_b32 s{S_QOV}, s{S_QOV}, 7")
    e(f"s_lshr_b32 s{S_SLOT}, s{S_QOV}, 2")
    e(f"s_lshl1_add_u32 s{S_SLOT}, s{S_T2}, s{S_SLOT}")
    e(f"s_bfe_u32 s{S_HD}, s{S_QO0}, 0x3000e")
    e(f"s_sub_u32 s{S_HD}, s{S_QOV}, s{S_HD}")
    e(f"s_lshl_b32 s{S_HD}, s{S_HD}, 8")
    e(f"s_lshl3_add_u32 s{S_QOV}, s{S_T2}, s{S_QOV}")
    e(f"s_lshl_b32 s{S_QOV}, s{S_QOV}, 14")
    e(f"s_add_u32 s{S_T2}, s{S_CLV}, {31 - 32*a.t0}")
    e(f"s_lshr_b32 s{S_T2}, s{S_T2}, 5")
    e(f"s_and_b32 s{S_T2}, s{S_T2}, 63")
    e(f"s_mul_i32 s{S_CUT}, s{S_T2}, 171")
    e(f"s_lshr_b32 s{S_CUT}, s{S_CUT}, 9")
    e(f"s_mul_i32 s{S_CUT}, s{S_CUT}, 3")
    e(f"s_sub_u32 s{S_CUT}, s{S_T2}, s{S_CUT}")
    e(f"s_add_u32 s{S_CUT}, s{S_CUT}, {a.t0}")
    e(f"s_lshl_b32 s{S_T2}, s{S_CUT}, 5")
    e(f"s_sub_u32 s{S_T2}, s{S_CLV}, s{S_T2}")
    e(f"s_add_u32 s{S_T2}, s{S_T2}, s{S_KEY}")
    e(f"s_mul_i32 s{S_T2}, s{S_T2}, {a.hs}")
    e(f"s_lshr_b32 s{S_T2}, s{S_T2}, 8")
    e(f"s_min_u32 s{S_T2}, s{S_T2}, 2048")
    e(f"s_cmp_eq_u32 s{S_MODE}, 1")
    e(f"s_cselect_b32 s{S_KEY}, s{S_T2}, s{S_KEY}")
    e(f"s_cselect_b32 s{S_CL}, s{S_CLV}, s{S_CLO}")
    e(f"s_cselect_b32 s{S_TB}, s{S_CUT}, 0")
    e(f"s_cselect_b32 s{S_QSRC}, {LDS_Q2}, s{S_QSRC}")

def job_common(g, first=False):
    e = g.e; a = g.a
    e(f"s_cmp_eq_u32 s{S_CL}, 0")
    e(f"s_cselect_b32 s{S_CLE}, 2048, s{S_CL}")
    e(f"s_add_u32 s{S_TE}, s{S_CLE}, 31")
    e(f"s_lshr_b32 s{S_TE}, s{S_TE}, 5")
    if a.split and not first:
        e(f"s_cmp_eq_u32 s{S_MODE}, 2")
        e(f"s_cselect_b32 s{S_TE}, s{S_CUT}, s{S_TE}")
    e(f"s_sub_u32 s{S_NT}, s{S_TE}, s{S_TB}")
    e(f"s_sub_u32 s{S_T1}, s{S_NT}, 1")
    e(f"s_mul_i32 s{S_T2}, s{S_T1}, 171")
    e(f"s_lshr_b32 s{S_T2}, s{S_T2}, 9")
    e(f"s_mul_i32 s{S_T2}, s{S_T2}, 3")
    e(f"s_sub_u32 s{S_T1}, s{S_T1}, s{S_T2}")
    e(f"s_sub_u32 s{S_SH}, {a.clast + 3}, s{S_T1}")
    e(f"s_cmp_ge_u32 s{S_SH}, 3")
    e(f"s_cselect_b32 s{S_T2}, 3, 0")
    e(f"s_sub_u32 s{S_SH}, s{S_SH}, s{S_T2}")

def next_job(g):
    e = g.e
    e(f"s_mov_b32 s{S_MODE}, 0")
    e(f"s_mov_b32 s{S_CL}, s{S_CLO}")
    e(f"s_mov_b32 s{S_TB}, 0")
    e(f"s_mov_b32 s{S_QSRC}, {LDS_Q}")

def reduce_setup(g, sg0):
    e = g.e
    cl = g.a.clast
    cA = (cl + 1) % 3
    e(f"s_mov_b32 s{S_G0}, s{sg0}")
    e("v_lshrrev_b32 v48, 2, v47")
    e("v_and_b32 v49, 3, v47")
    e("v_lshl_add_u32 v48, v48, 3, v49")
    e("v_lshlrev_b32 v48, 10, v48")
    if cA: e(f"v_add_u32 v48, {cA*32768}, v48")
    e("v_xor_b32 v49, v46, v47")
    for k in range(6):
        e(f"s_add_u32 s{S_OB}, s{sg0}, {k}")
        e(f"s_and_b32 s{S_T1}, s{S_OB}, 3")
        e(f"s_lshl_b32 s{S_T1}, s{S_T1}, 2")
        e(f"v_xor_b32 v50, s{S_T1}, v49")
        e(f"v_lshl_add_u32 v50, v50, 4, v48")
        e(f"s_lshr_b32 s{S_T1}, s{S_OB}, 3")
        e(f"s_lshl_b32 s{S_T1}, s{S_T1}, 12")
        e(f"s_bfe_u32 s{S_T2}, s{S_OB}, 0x10002")
        e(f"s_lshl_b32 s{S_T2}, s{S_T2}, 8")
        e(f"s_add_u32 s{S_T1}, s{S_T1}, s{S_T2}")
        e(f"v_add_u32 v{V_RA+k}, s{S_T1}, v50")
    e(f"s_lshl_b32 s{S_T1}, s{sg0}, 5")
    e(f"s_add_u32 s{S_T1}, s{S_T1}, {LDS_STAT}")
    e(f"v_lshlrev_b32 v{V_SA}, 3, v46")
    e(f"v_add_u32 v{V_SA}, s{S_T1}, v{V_SA}")
    e(f"v_min_u32 v{V_FP}, 2, v{V_LANE}")
    e(f"v_lshlrev_b32 v{V_FP}, 8, v{V_FP}")
    e(f"v_add_u32 v{V_FP}, {LDS_FIN}, v{V_FP}")
    e(f"s_lshl_b32 s{S_T1}, s{sg0}, 10")
    e(f"s_add_u32 s{S_OA}, s{S_QO0}, s{S_T1}")
    e(f"s_add_u32 s{S_OB}, s{S_OA}, 4096")
    e(f"v_lshlrev_b32 v{V_OV}, 4, v{V_LANE}")

def reduce_code(g, NG, tag, mode):
    e = g.e; a = g.a
    tag = f"{tag}{mode}"
    cC = a.clast; cA = (cC + 1) % 3; cB = (cC + 2) % 3
    dB = ((cB - cA) * 32768) & 0xffffffff; dC = ((cC - cB) * 32768) & 0xffffffff
    dR = ((cA - cC) * 32768) & 0xffffffff
    V_ST = 100; V_G = 64; V_ACC = 136; V_IN = 184
    T = 232; VP = 238; VT = 239; XS = 240; G4 = 32
    g.lab(f"L_reduce_{tag}")
    e(f"ds_read_b32 v{VP}, v{V_FP}")
    e("s_waitcnt lgkmcnt(0)")
    e(f"v_readlane_b32 s{S_T0}, v{VP}, 0")
    e(f"v_readlane_b32 s{S_T1}, v{VP}, 1")
    e(f"v_readlane_b32 s{S_T2}, v{VP}, 2")
    e(f"s_min_u32 s{S_T1}, s{S_T1}, s{S_T2}")
    e(f"s_min_u32 s{S_T0}, s{S_T0}, s{S_T1}")
    e(f"s_cmp_lt_u32 s{S_T0}, 1")
    e(f"s_cbranch_scc1 L_reduce_{tag}")
    if a.estamps: e("s_memrealtime s[90:91]")
    if mode:
        e(f"s_mov_b32 s{S_WSRD}, s30"); e(f"s_mov_b32 s{S_WSRD+1}, s31")
        e(f"s_mov_b32 s{S_WSRD+2}, {80*65536}"); e(f"s_mov_b32 s{S_WSRD+3}, 0x20000")
        e(f"s_lshl_b32 s{S_P0}, s{S_SLOT}, 16")
        e(f"s_add_u32 s{S_P0}, s{S_P0}, 0x100000")
        e(f"s_lshl_b32 s{S_T1}, s{S_G0}, 9")
        e(f"s_add_u32 s{S_P1}, s{S_P0}, s{S_T1}")
        e(f"s_add_u32 s{S_P1}, s{S_P1}, 32768")
        e(f"s_lshl_b32 s{S_T1}, s{S_G0}, 11")
        e(f"s_add_u32 s{S_P0}, s{S_P0}, s{S_T1}")
        e(f"v_lshlrev_b32 v{VT}, 3, v{V_LANE}")
    if mode == 2:
        for k in range(NG):
            e(f"buffer_load_dwordx2 {vr(XS+2*k,2)}, v{VT}, {sr(S_WSRD,4)}, s{S_P1} offen offset:{k*512} {a.hpol}")
        for k in range(NG):
            for hh in range(2):
                e(f"buffer_load_dwordx4 {vr(V_ACC+k*8+hh*4,4)}, v{V_OV}, {sr(S_WSRD,4)}, s{S_P0} offen offset:{(k&1)*2048+hh*1024} {a.hpol}")
            if k & 1: e(f"s_add_u32 s{S_P0}, s{S_P0}, 4096")
    def rd_part():
        for k in range(NG):
            for hh in range(2):
                e(f"ds_read_b128 {vr(V_IN + k*8 + hh*4, 4)}, v{V_RA+k} offset:{hh*512}")
    for k in range(NG):
        for ro in range(3):
            e(f"ds_read_b64 {vr(V_ST + (k*3+ro)*2, 2)}, v{V_SA} offset:{k*32 + ro*512}")
        if k == 3 and NG > 4: e("s_waitcnt lgkmcnt(4)")
    e("s_waitcnt lgkmcnt(0)")
    def st(k, ro, x): return V_ST + (k*3+ro)*2 + x
    for k in range(NG): e(f"v_max3_f32 v{T+k}, v{st(k,0,0)}, v{st(k,1,0)}, v{st(k,2,0)}")
    if mode == 2:
        e(f"s_waitcnt vmcnt({2*NG})")
        for k in range(NG): e(f"v_max_f32 v{T+k}, v{T+k}, v{XS+2*k}")
        for k in range(NG): e(f"v_sub_f32 v{G4+2*k}, v{XS+2*k}, v{T+k}")
    if mode == 1:
        for k in range(NG): e(f"v_mov_b32 v{XS+2*k}, v{T+k}")
    for k in range(NG):
        for ro in range(3): e(f"v_sub_f32 v{V_G+(k*3+ro)*2}, v{st(k,ro,0)}, v{T+k}")
    if mode == 2:
        for k in range(NG): e(f"v_exp_f32 v{G4+2*k}, v{G4+2*k}")
    for k in range(NG):
        for ro in range(3): e(f"v_exp_f32 v{V_G+(k*3+ro)*2}, v{V_G+(k*3+ro)*2}")
    if mode == 2:
        for k in range(NG): e(f"v_mul_f32 v{G4+2*k}, v{G4+2*k}, v{XS+2*k+1}")
        for k in range(NG): e(f"v_fma_f32 v{T+k}, v{V_G+k*6}, v{st(k,0,1)}, v{G4+2*k}")
    else:
        for k in range(NG): e(f"v_mul_f32 v{T+k}, v{V_G+k*6}, v{st(k,0,1)}")
    for ro in range(1, 3):
        for k in range(NG): e(f"v_fma_f32 v{T+k}, v{V_G+(k*3+ro)*2}, v{st(k,ro,1)}, v{T+k}")
    if mode == 1:
        for k in range(NG): e(f"v_mov_b32 v{XS+2*k+1}, v{T+k}")
        for k in range(NG):
            e(f"buffer_store_dwordx2 {vr(XS+2*k,2)}, v{VT}, {sr(S_WSRD,4)}, s{S_P1} offen offset:{k*512} {a.hpol}")
    for k in range(NG): e(f"v_rcp_f32 v{T+k}, v{T+k}")
    e("s_nop 0")
    for k in range(NG):
        for ro in range(3): e(f"v_mul_f32 v{V_G+(k*3+ro)*2}, v{V_G+(k*3+ro)*2}, v{T+k}")
    if mode == 2:
        for k in range(NG): e(f"v_mul_f32 v{G4+2*k}, v{G4+2*k}, v{T+k}")
    def acck(k, ro, first):
        for x in range(0, 8, 2):
            d = V_ACC + k*8 + x; s_ = V_IN + k*8 + x; f = V_G + (k*3 + ro)*2
            if first: e(f"v_pk_mul_f32 {vr(d,2)}, {vr(s_,2)}, {vr(f,2)} op_sel_hi:[1,0]")
            else: e(f"v_pk_fma_f32 {vr(d,2)}, {vr(s_,2)}, {vr(f,2)}, {vr(d,2)} op_sel_hi:[1,0,1]")
    def waitfin(lane, lab):
        g.lab(lab)
        e(f"ds_read_b32 v{VP}, v{V_FP}")
        e("s_waitcnt lgkmcnt(0)")
        e(f"v_readlane_b32 s{S_T2}, v{VP}, {lane}")
        e(f"s_cmp_lt_u32 s{S_T2}, 2")
        e(f"s_cbranch_scc1 {lab}")
    waitfin(0, f"L_rpa_{tag}")
    rd_part()
    for k in range(NG): e(f"v_add_u32 v{V_RA+k}, 0x{dB:x}, v{V_RA+k}")
    if mode == 2:
        e("s_waitcnt vmcnt(0)")
        for k in range(NG):
            for x in range(0, 8, 2):
                d = V_ACC + k*8 + x
                e(f"v_pk_mul_f32 {vr(d,2)}, {vr(d,2)}, {vr(G4+2*k,2)} op_sel_hi:[1,0]")
    for k in range(NG):
        e(f"s_waitcnt lgkmcnt({2*(NG-1-k)})"); acck(k, 0, mode != 2)
    waitfin(1, f"L_rpb_{tag}")
    rd_part()
    for k in range(NG): e(f"v_add_u32 v{V_RA+k}, 0x{dC:x}, v{V_RA+k}")
    for k in range(NG):
        e(f"s_waitcnt lgkmcnt({2*(NG-1-k)})"); acck(k, 1, False)
    if a.estamps: e("s_memrealtime s[92:93]")
    waitfin(2, f"L_rpc_{tag}")
    rd_part()
    for k in range(NG):
        e(f"s_waitcnt lgkmcnt({2*(NG-1-k)})")
        acck(k, 2, False)
        if mode == 1:
            for hh in range(2):
                e(f"buffer_store_dwordx4 {vr(V_ACC+k*8+hh*4,4)}, v{V_OV}, {sr(S_WSRD,4)}, s{S_P0} offen offset:{(k&1)*2048+hh*1024} {a.hpol}")
            if k & 1: e(f"s_add_u32 s{S_P0}, s{S_P0}, 4096")
        else:
            for x in range(4):
                e(f"v_cvt_pk_bf16_f32 v{V_ST + k*4 + x}, v{V_ACC + k*8 + 2*x}, v{V_ACC + k*8 + 2*x + 1}")
            so = S_OA if k < 4 else S_OB
            e(f"buffer_store_dwordx4 {vr(V_ST + k*4, 4)}, v{V_OV}, {sr(S_XSRD,4)}, s{so} offen offset:{(k&3)*1024} {a.stpol}")
    if mode == 1:
        for k in range(NG): e(f"v_add_u32 v{V_RA+k}, 0x{dR:x}, v{V_RA+k}")
        e("s_branch L_jobend")
    else:
        if a.estamps: e("s_memrealtime s[94:95]")
        e("s_branch L_out")

def build(a):
    g = Gen(a); e = g.e
    stamps, spin = a.stamps, a.spin
    pol = (" " + a.nt) if a.nt else ""
    c = (128 ** -0.5) * math.log2(math.e)
    R = -1e9 * math.sqrt(128.0)
    hdr = open("standalone__paged_block_table_kv_pagedattention__sampling.s.ref").read().split("\n")
    head = [l for l in hdr if l.startswith(";") and "@launch" not in l and "Override launch" not in l and "grid=ceil" not in l]
    out = head + [f"; @launch grid=(256,1,1) block=(256,1,1) lds={LDS_TOTAL if a.split else LDS_NOSPLIT}",
        '.amdgcn_target "amdgcn-amd-amdhsa--gfx950"', ".text", f".globl {NAME}", ".p2align 8",
        f".type {NAME},@function", f"{NAME}:"]
    e("s_cmp_ge_u32 s2, 256")
    e("s_cbranch_scc1 L_end")
    e("s_load_dwordx16 s[16:31], s[0:1], 0")
    if spin or stamps: e("s_memrealtime s[88:89]")
    e("v_lshrrev_b32 v2, 6, v0")
    e(f"v_and_b32 v{V_LANE}, 63, v0")
    e(f"v_readfirstlane_b32 s{S_W}, v2")
    e("s_lshr_b32 s3, s2, 3")
    if a.hmap == 1: e(f"s_add_u32 s{S_T0}, s2, s3")
    elif a.hmap == 2: e(f"s_lshl1_add_u32 s{S_T0}, s3, s2")
    elif a.hmap == 3:
        e(f"s_lshl1_add_u32 s{S_T0}, s3, s2"); e(f"s_add_u32 s{S_T0}, s{S_T0}, 1")
    elif a.hmap >= 4:
        e(f"s_and_b32 s{S_T0}, s2, 7"); e(f"s_lshl_b32 s{S_T0}, s{S_T0}, 2")
        e(f"s_lshr_b32 s{S_T0}, 0x{a.hperm}, s{S_T0}")
    e(f"s_and_b32 s{S_T0}, s{S_T0}, 7")
    e(f"s_lshl3_add_u32 s{S_QO0}, s3, s{S_T0}")
    e(f"s_lshl_b32 s{S_QO0}, s{S_QO0}, 14")
    e(f"v_lshrrev_b32 v46, 4, v{V_LANE}")
    e(f"v_and_b32 v47, 15, v{V_LANE}")
    e(f"s_cmp_lg_u32 s{S_W}, 0")
    e("s_cbranch_scc1 L_consumer")
    e(f"v_lshlrev_b32 v6, 3, v{V_LANE}")
    e(f"s_lshl_b32 s{S_P0}, s3, 9")
    e(f"s_lshl_b32 s{S_P1}, s3, 2")
    e(f"s_movk_i32 s{S_BSRD+2}, 0x4000"); e(f"s_mov_b32 s{S_BSRD+3}, 0x20000")
    e(f"s_mov_b32 s{S_XSRD+2}, {Q_BYTES}"); e(f"s_mov_b32 s{S_XSRD+3}, 0x20000")
    e(f"s_mov_b32 s{S_KSRD+2}, {KV_BYTES}"); e(f"s_mov_b32 s{S_KSRD+3}, 0x20000")
    e("v_xor_b32 v52, v47, v46")
    for k in range(4):
        if k: e(f"v_xor_b32 v53, {4*k}, v52")
        e(f"v_lshlrev_b32 v{48+k}, 4, v{53 if k else 52}")
        e(f"v_lshl_add_u32 v{V_DQ+k}, v46, 8, v{48+k}")
    e("s_waitcnt lgkmcnt(0)")
    stamp(g, 1)
    e(f"s_mov_b32 s{S_BSRD}, s22"); e(f"s_mov_b32 s{S_BSRD+1}, s23")
    e(f"s_load_dword s{S_CL}, s[24:25], s{S_P1}")
    e(f"buffer_load_dwordx2 {vr(V_BT,2)}, v6, {sr(S_BSRD,4)}, s{S_P0} offen")
    e(f"s_mov_b32 s{S_XSRD}, s16"); e(f"s_mov_b32 s{S_XSRD+1}, s17")
    for gq in range(4):
        e(f"s_mov_b32 m0, {LDS_Q + gq*4096}")
        e(f"s_add_u32 s{S_T1}, s{S_QO0}, {gq*4096}")
        for k in range(4):
            e(f"buffer_load_dwordx4 v{V_DQ+k}, {sr(S_XSRD,4)}, s{S_T1} offen offset:{k*1024}{pol} lds")
    e(f"s_mov_b32 s{S_KSRD}, s18"); e(f"s_mov_b32 s{S_KSRD+1}, s19")
    e(f"s_lshl_b32 s{S_T2}, s{S_T0}, 8")
    e(f"v_lshlrev_b32 v54, 11, v46")
    e(f"v_add_u32 v54, s{S_T2}, v54")
    e(f"v_add_u32 v{V_DK}, v54, v48")
    for k in range(1, 4):
        e(f"v_add_u32 v53, {k*7168}, v54")
        e(f"v_add_u32 v{V_DK+k}, v53, v{48+k}")
    e(f"v_lshlrev_b32 v5, 1, v{V_LANE}")
    e("v_add_u32 v7, 1, v5")
    e(f"v_mov_b32 v61, {KV_BYTES}")
    e(f"s_mov_b32 s{S_TB}, 0")
    e("s_waitcnt lgkmcnt(0)")
    e(f"s_max_i32 s{S_CL}, s{S_CL}, 0")
    e(f"s_min_i32 s{S_CL}, s{S_CL}, 2048")
    job_common(g, True)
    e(f"s_add_u32 s{S_NP}, s{S_CLE}, 15")
    e(f"s_lshr_b32 s{S_NP}, s{S_NP}, 4")
    if a.noload: e(f"s_mov_b32 s{S_NP}, 0")
    e(f"v_cmp_gt_u32 vcc, s{S_NP}, v5")
    e(f"v_cmp_gt_u32 s[32:33], s{S_NP}, v7")
    e("s_waitcnt vmcnt(16)")
    stamp(g, 2)
    e(f"v_lshlrev_b32 v{V_BT}, 15, v{V_BT}")
    e(f"v_lshlrev_b32 v{V_BT+1}, 15, v{V_BT+1}")
    e(f"v_cndmask_b32 v{V_BT}, v61, v{V_BT}, vcc")
    e(f"v_cndmask_b32 v{V_BT+1}, v61, v{V_BT+1}, s[32:33]")
    def advance(si, sc, sn, sb, extra):
        e(f"s_add_u32 s{si}, s{si}, 1")
        e(f"s_add_u32 s{sc}, s{sc}, 1")
        e(f"s_add_u32 s{sb}, s{sb}, 32768")
        e(f"s_add_u32 s{S_T1}, s{sn}, 2")
        e(f"s_lshl_b32 s{S_T2}, s{S_T1}, 13")
        e(f"s_and_b32 s{S_T2}, s{S_T2}, 16384")
        if extra: e(f"s_add_u32 s{S_T2}, s{S_T2}, {extra}")
        e(f"s_cmp_eq_u32 s{sc}, 3")
        e(f"s_cselect_b32 s{sc}, 0, s{sc}")
        e(f"s_cselect_b32 s{sn}, s{S_T1}, s{sn}")
        e(f"s_cselect_b32 s{sb}, s{S_T2}, s{sb}")
    def opening(tag):
        e(f"s_lshl_b32 s{S_LB}, s{S_SH}, 15")
        e(f"s_mov_b32 s{S_J}, s{S_TB}"); e(f"s_mov_b32 s{S_CI}, s{S_SH}"); e(f"s_mov_b32 s{S_NK}, 0")
        e(f"s_min_u32 s{S_NP}, s{S_NT}, {a.burst}")
        e(f"s_add_u32 s{S_T1}, s{S_NP}, 2")
        e(f"v_mov_b32 v{V_CNT}, s{S_T1}")
        e(f"s_add_u32 s{S_NP}, s{S_NP}, s{S_TB}")
        g.lab(f"L_burst{tag}")
        e(f"v_readlane_b32 s{S_P0}, v{V_BT}, s{S_J}")
        e(f"v_readlane_b32 s{S_P1}, v{V_BT+1}, s{S_J}")
        e("s_nop 2")
        for it in range(2):
            e(f"s_add_u32 m0, s{S_LB}, {it*4096}")
            e("s_nop 0")
            for i in range(4):
                e(f"buffer_load_dwordx4 v{V_DK+i}, {sr(S_KSRD,4)}, s{S_P0 if it == 0 else S_P1} offen offset:{i*1024}{pol} lds")
        advance(S_J, S_CI, S_N, S_LB, 0)
        e(f"s_cmp_lt_u32 s{S_J}, s{S_NP}")
        e(f"s_cbranch_scc1 L_burst{tag}")
        stamp(g, 3)
        e(f"s_mov_b32 s{S_I}, s{S_TB}"); e(f"s_mov_b32 s{S_CV}, s{S_SH}"); e(f"s_mov_b32 s{S_NV}, 0")
        e(f"s_lshl_b32 s{S_LBV}, s{S_SH}, 15")
        e(f"s_add_u32 s{S_LBV}, s{S_LBV}, 8192")
    opening("0")
    if a.split:
        e(f"s_and_b32 s{S_P1}, s3, 30")
        e(f"s_lshl_b32 s{S_P1}, s{S_P1}, 2")
        e(f"s_load_dwordx2 {sr(S_CL4,2)}, s[24:25], s{S_P1}")
    e(f"v_lshlrev_b32 v{V_FLAG}, 2, v{V_LANE}")
    e(f"v_add_u32 v{V_FLAG}, {LDS_FLAG}, v{V_FLAG}")
    e("v_mov_b32 v53, 0")
    for k in range(7): e(f"ds_write_b32 v{V_FLAG}, v53 offset:{256*k}")
    e(f"s_mov_b32 s{S_VSRD}, s20"); e(f"s_mov_b32 s{S_VSRD+1}, s21")
    e(f"s_mov_b32 s{S_VSRD+2}, {KV_BYTES}"); e(f"s_mov_b32 s{S_VSRD+3}, 0x20000")
    e("v_lshlrev_b32 v53, 2, v46")
    e("v_xor_b32 v53, v47, v53")
    e(f"v_lshl_add_u32 v{V_DV}, v53, 4, v54")
    for k in range(1, 4): e(f"v_add_u32 v{V_DV+k}, {k*7168}, v{V_DV}")
    e(f"v_min_u32 v{V_DONE}, 2, v{V_LANE}")
    e(f"v_lshlrev_b32 v{V_DONE}, 8, v{V_DONE}")
    e(f"v_add_u32 v{V_FP}, {LDS_FIN}, v{V_DONE}")
    e(f"v_add_u32 v{V_DONE}, {LDS_DONE}, v{V_DONE}")
    e(f"v_mov_b32 v{V_PT}, 0")
    if a.split: e(f"v_mov_b32 v{V_BT2}, 0")
    e("s_waitcnt lgkmcnt(0)")
    e("s_barrier")
    decide(g)
    if a.split:
        e(f"s_cmp_eq_u32 s{S_MODE}, 2")
        e(f"s_cselect_b32 s{S_TE}, s{S_CUT}, s{S_TE}")
        e(f"s_sub_u32 s{S_NT}, s{S_TE}, s{S_TB}")
    cA = (a.clast + 1) % 3
    e("v_lshrrev_b32 v48, 2, v47")
    e("v_and_b32 v49, 3, v47")
    e("v_lshl_add_u32 v48, v48, 3, v49")
    e("v_lshlrev_b32 v48, 10, v48")
    e("v_mov_b32 v51, v52")
    for k in range(6):
        cst = cA*32768 + ((k >> 2) & 1) * 256
        if k & 3: e(f"v_xor_b32 v50, {4*(k&3)}, v51")
        e(f"v_lshl_add_u32 v{V_RA+k}, v{50 if k & 3 else 51}, 4, v48")
        if cst: e(f"v_add_u32 v{V_RA+k}, {cst}, v{V_RA+k}")
    e(f"v_lshlrev_b32 v{V_SA}, 3, v46")
    e(f"v_add_u32 v{V_SA}, {LDS_STAT}, v{V_SA}")
    e(f"v_lshlrev_b32 v{V_OV}, 4, v{V_LANE}")
    e(f"s_mov_b32 s{S_G0}, 0")
    e(f"s_mov_b32 s{S_OA}, s{S_QO0}")
    e(f"s_add_u32 s{S_OB}, s{S_QO0}, 4096")
    if a.split:
        e(f"s_cmp_eq_u32 s{S_MODE}, 1")
        e("s_cbranch_scc1 L_lhelp")
        h = ["L_lhelp:",
             f"    s_lshr_b32 s{S_T1}, s{S_QOV}, 17", f"    s_lshl_b32 s{S_T1}, s{S_T1}, 11",
             ]
        h = ["L_lhelp:", "    s_waitcnt vmcnt(24)",
             f"    s_lshr_b32 s{S_T1}, s{S_QOV}, 17", f"    s_lshl_b32 s{S_T1}, s{S_T1}, 9",
             f"    v_add_u32 v48, s{S_T1}, v6",
             f"    global_load_dwordx2 v[50:51], v48, s[22:23]"]
        for gq in range(4):
            h.append(f"    s_mov_b32 m0, {LDS_Q2 + gq*4096}")
            h.append(f"    s_add_u32 s{S_T1}, s{S_QOV}, {gq*4096}")
            for k in range(4):
                h.append(f"    buffer_load_dwordx4 v{V_DQ+k}, {sr(S_XSRD,4)}, s{S_T1} offen offset:{k*1024}{pol} lds")
        h += [f"    s_mov_b32 s{S_XSRD}, s26", f"    s_mov_b32 s{S_XSRD+1}, s27",
              f"    s_add_u32 s{S_NP}, s{S_CLV}, 15", f"    s_lshr_b32 s{S_NP}, s{S_NP}, 4",
              f"    v_cmp_gt_u32 vcc, s{S_NP}, v5", f"    v_cmp_gt_u32 s[32:33], s{S_NP}, v7",
              f"    v_mov_b32 v{V_BT2}, v{V_BT}", f"    v_mov_b32 v{V_BT2+1}, v{V_BT+1}"]
        for k in range(8): h.append(f"    v_add_u32 v{V_DK+k}, s{S_HD}, v{V_DK+k}")
        sub = Gen(a); job_common(sub); h += sub.o
        h += ["    s_waitcnt vmcnt(16)",
              "    v_lshlrev_b32 v50, 15, v50", "    v_lshlrev_b32 v51, 15, v51",
              f"    v_cndmask_b32 v{V_BT}, v61, v50, vcc", f"    v_cndmask_b32 v{V_BT+1}, v61, v51, s[32:33]",
              "    s_branch L_ljob"]
        g.ool += h
    e(f"s_mov_b32 s{S_XSRD}, s26"); e(f"s_mov_b32 s{S_XSRD+1}, s27")
    g.lab("L_lgo")
    e(f"s_min_u32 s{S_NP}, s{S_NT}, {LEAD}")
    e(f"s_add_u32 s{S_NP}, s{S_NP}, s{S_TB}")
    for (clmin, L) in reversed(a.table[1:]):
        e(f"s_cmp_ge_u32 s{S_KEY}, {clmin}")
        e(f"s_cbranch_scc1 L_var_{L}")
    def group(lims, srd, vb, sbase, sp0, sp1):
        if isinstance(lims, int): lims = [lims] * 8
        hs = [(p - lims[p] + 1) // 8 for p in range(8)]
        best = max(hs); p1 = hs.index(best); lag = -best
        for q in range(8):
            it = q >> 2; i = q & 3
            if i == 0: e(f"s_add_u32 m0, s{sbase}, {it*4096}")
            e(f"s_waitcnt vmcnt({lims[q]-1})")
            e(f"buffer_load_dwordx4 v{vb+i}, {sr(srd,4)}, s{sp0 if it == 0 else sp1} offen offset:{i*1024}{pol} lds")
            if q == p1:
                if lag:
                    e(f"v_subrev_u32 v27, {lag}, v{V_CNT}")
                    e(f"ds_write_b32 v{V_FLAG}, v27")
                else:
                    e(f"ds_write_b32 v{V_FLAG}, v{V_CNT}")
        e(f"v_add_u32 v{V_CNT}, 1, v{V_CNT}")
    for (clmin, L2) in a.table:
        base = L2 // 4; up = (L2 % 4) * 4
        lim16 = [base + 1] * up + [base] * (16 - up)
        LK = lim16[:8]; LV = lim16[8:]
        LT = min(a.tmax, max(base, int(round(L2 / 4.0 * a.tf))))
        L = L2
        g.lab(f"L_var_{L}")
        e(f"s_cmp_ge_u32 s{S_J}, s{S_NP}")
        e(f"s_cbranch_scc1 L_lp_{L}")
        g.lab(f"L_pk_{L}")
        e(f"v_readlane_b32 s{S_P0}, v{V_BT}, s{S_J}")
        e(f"v_readlane_b32 s{S_P1}, v{V_BT+1}, s{S_J}")
        e("s_nop 2")
        group(LK, S_KSRD, V_DK, S_LB, S_P0, S_P1)
        advance(S_J, S_CI, S_N, S_LB, 0)
        e(f"s_cmp_lt_u32 s{S_J}, s{S_NP}")
        e(f"s_cbranch_scc1 L_pk_{L}")
        g.lab(f"L_lp_{L}")
        e(f"s_cmp_ge_u32 s{S_J}, s{S_TE}")
        e(f"s_cbranch_scc1 L_tl_{L}")
        g.lab(f"L_lp2_{L}")
        e(f"v_readlane_b32 s{S_P2}, v{V_BT}, s{S_I}")
        e(f"v_readlane_b32 s{S_P3}, v{V_BT+1}, s{S_I}")
        e(f"v_readlane_b32 s{S_P0}, v{V_BT}, s{S_J}")
        e(f"v_readlane_b32 s{S_P1}, v{V_BT+1}, s{S_J}")
        g.lab(f"L_chk_{L}")
        e("s_waitcnt lgkmcnt(0)")
        e(f"v_readlane_b32 s{S_T1}, v{V_PT}, s{S_CI}")
        e(f"v_readlane_b32 s{S_T2}, v{V_PT}, s{S_CV}")
        e(f"ds_read_b32 v{V_PT}, v{V_DONE}")
        e(f"s_cmp_lt_u32 s{S_NV}, 4")
        e(f"s_cselect_b32 s{S_T2}, s{S_NV}, s{S_T2}")
        e(f"s_cmp_lt_u32 s{S_T2}, s{S_NV}")
        e(f"s_cbranch_scc1 L_chk_{L}")
        e(f"s_add_u32 s{S_T1}, s{S_T1}, 3")
        e(f"s_cmp_lt_u32 s{S_T1}, s{S_N}")
        e(f"s_cbranch_scc1 L_chk_{L}")
        group(LK, S_KSRD, V_DK, S_LB, S_P0, S_P1)
        advance(S_J, S_CI, S_N, S_LB, 0)
        group(LV, S_VSRD, V_DV, S_LBV, S_P2, S_P3)
        advance(S_I, S_CV, S_NV, S_LBV, 8192)
        e(f"s_cmp_lt_u32 s{S_J}, s{S_TE}")
        e(f"s_cbranch_scc1 L_lp2_{L}")
        g.lab(f"L_tl_{L}")
        e(f"v_readlane_b32 s{S_P2}, v{V_BT}, s{S_I}")
        e(f"v_readlane_b32 s{S_P3}, v{V_BT+1}, s{S_I}")
        g.lab(f"L_chv_{L}")
        e("s_waitcnt lgkmcnt(0)")
        e(f"v_readlane_b32 s{S_T2}, v{V_PT}, s{S_CV}")
        e(f"ds_read_b32 v{V_PT}, v{V_DONE}")
        e(f"s_cmp_lt_u32 s{S_NV}, 4")
        e(f"s_cselect_b32 s{S_T2}, s{S_NV}, s{S_T2}")
        e(f"s_cmp_lt_u32 s{S_T2}, s{S_NV}")
        e(f"s_cbranch_scc1 L_chv_{L}")
        group(LT, S_VSRD, V_DV, S_LBV, S_P2, S_P3)
        advance(S_I, S_CV, S_NV, S_LBV, 8192)
        e(f"s_cmp_lt_u32 s{S_I}, s{S_TE}")
        e(f"s_cbranch_scc1 L_tl_{L}")
        lag = (LT - 1) // 8
        for k in range(lag, -1, -1):
            e(f"s_waitcnt vmcnt({8*k})")
            if k:
                e(f"v_subrev_u32 v27, {k}, v{V_CNT}")
                e(f"ds_write_b32 v{V_FLAG}, v27")
            else:
                e(f"ds_write_b32 v{V_FLAG}, v{V_CNT}")
        e("s_branch L_ldone")
    g.lab("L_ldone")
    stamp(g, 4)
    e("s_branch L_red_a")
    if a.split:
        g.lab("L_ljob")
        opening("1")
        e("s_branch L_lgo")
    g.lab("L_consumer")
    if a.wstat:
        e("s_mov_b32 s10, 0"); e("s_mov_b32 s11, 0")
    e("s_barrier")
    if a.split:
        e(f"s_and_b32 s{S_P1}, s3, 30")
        e(f"s_lshl_b32 s{S_P1}, s{S_P1}, 2")
    else:
        e(f"s_lshl_b32 s{S_P1}, s3, 2")
    e(f"v_lshlrev_b32 v{V_FLAG}, 2, v{V_LANE}")
    e(f"v_add_u32 v{V_FLAG}, {LDS_FLAG}, v{V_FLAG}")
    e(f"s_sub_u32 s{S_CI}, s{S_W}, 1")
    e(f"s_lshl_b32 s{S_LB}, s{S_CI}, 15")
    e(f"v_lshrrev_b32 v3, 5, v{V_LANE}")
    e(f"v_and_b32 v4, 31, v{V_LANE}")
    e(f"s_add_u32 s{S_ROLE}, s{S_CI}, {2 - a.clast}")
    if a.clast != 2:
        e(f"s_cmp_ge_u32 s{S_ROLE}, 3")
        e(f"s_cselect_b32 s{S_T1}, 3, 0")
        e(f"s_sub_u32 s{S_ROLE}, s{S_ROLE}, s{S_T1}")
    e(f"s_lshl_b32 s{S_T1}, s{S_ROLE}, 8")
    e(f"s_add_u32 s{S_T1}, s{S_T1}, {LDS_FIN - LDS_FLAG}")
    e(f"v_add_u32 v{V_FIN}, s{S_T1}, v{V_FLAG}")
    e("v_lshrrev_b32 v48, 2, v47")
    e("v_lshl_add_u32 v49, v3, 2, v48")
    e("v_lshlrev_b32 v49, 8, v49")
    e("v_and_b32 v50, 1, v46")
    e("v_lshl_add_u32 v49, v50, 5, v49")
    e(f"v_and_b32 v50, 3, v{V_LANE}")
    e("v_lshl_add_u32 v49, v50, 3, v49")
    e(f"v_add_u32 v49, s{S_LB}, v49")
    e("v_add_u32 v49, 8192, v49")
    for db in range(4):
        e(f"v_xor_b32 v50, {db}, v48")
        e(f"v_lshl_add_u32 v{V_VA+db}, v50, 6, v49")
    e("s_waitcnt lgkmcnt(0)")
    if a.split: e(f"s_load_dwordx2 {sr(S_CL4,2)}, s[24:25], s{S_P1}")
    else: e(f"s_load_dword s{S_CL}, s[24:25], s{S_P1}")
    e(f"s_mov_b32 s{S_XSRD}, s26"); e(f"s_mov_b32 s{S_XSRD+1}, s27")
    e(f"s_mov_b32 s{S_XSRD+2}, {Q_BYTES}"); e(f"s_mov_b32 s{S_XSRD+3}, 0x20000")
    if a.split:
        e(f"s_mov_b32 s{S_KSRD}, s18"); e(f"s_mov_b32 s{S_KSRD+1}, s19")
        e(f"s_mov_b32 s{S_KSRD+2}, {KV_BYTES}"); e(f"s_mov_b32 s{S_KSRD+3}, 0x20000")
        e(f"s_mov_b32 s{S_VSRD}, s20"); e(f"s_mov_b32 s{S_VSRD+1}, s21")
        e(f"s_mov_b32 s{S_VSRD+2}, {KV_BYTES}"); e(f"s_mov_b32 s{S_VSRD+3}, 0x20000")
    e(f"s_cmp_eq_u32 s{S_ROLE}, 0")
    e(f"s_cselect_b32 s{S_T0}, 6, 12")
    reduce_setup(g, S_T0)
    e("v_and_b32 v48, 15, v4")
    e("v_xor_b32 v48, v48, v3")
    e("v_lshlrev_b32 v49, 8, v4")
    for st in range(8):
        e(f"v_xor_b32 v50, {2*st}, v48")
        e(f"v_lshl_add_u32 v50, v50, 4, v49")
        e(f"v_add_u32 v{V_KA+st}, s{S_LB}, v50")
    e(f"s_lshl_b32 s{S_T1}, s{S_W}, 8")
    e(f"v_add_u32 v{V_DONE}, s{S_T1}, v{V_FLAG}")
    e(f"v_mov_b32 v{V_R}, 0x{f32bits(R):08x}")
    e(f"s_mov_b32 s{S_C}, 0x{f32bits(c):08x}")
    e(f"s_mov_b32 s{S_C2}, s{S_C}"); e(f"s_mov_b32 s{S_C2+1}, s{S_C}")
    e("s_waitcnt lgkmcnt(0)")
    if a.split:
        decide(g)
        e(f"s_mov_b32 s{S_IMP}, 0")
    else:
        e(f"s_max_i32 s{S_CL}, s{S_CL}, 0")
        e(f"s_min_i32 s{S_CL}, s{S_CL}, 2048")
        e(f"s_mov_b32 s{S_TB}, 0")
        e(f"s_mov_b32 s{S_QSRC}, {LDS_Q}")
    if a.split:
        e(f"s_lshl_b32 s{S_T1}, s{S_SLOT}, 2")
        e(f"v_mov_b32 v62, s{S_T1}")
        e(f"s_lshl_b32 s{S_T1}, s{S_MODE}, 2")
        e(f"s_add_u32 s{S_T1}, s{S_T1}, s{S_ROLE}")
        e(f"s_cmp_eq_u32 s{S_T1}, 10")
        e(f"s_addc_u32 s{S_IMP}, 0, 0")
    g.lab("L_cjob")
    job_common(g)
    e(f"v_mov_b32 v{V_M}, 0x{f32bits(-3.0e38):08x}")
    e(f"v_mov_b32 v{V_L0}, 0"); e(f"v_mov_b32 v{V_L1}, 0")
    e(f"s_sub_u32 s{S_T1}, s{S_QSRC}, s{S_LB}")
    for st in range(8): e(f"v_add_u32 v{V_S+st}, s{S_T1}, v{V_KA+st}")
    for r in range(0, 128, 2):
        e(f"v_pk_mul_f32 {vr(V_O+r,2)}, {vr(V_L0,2)}, {vr(V_L0,2)}")
    e(f"s_add_u32 s{S_NVB}, s{S_NT}, 3")
    e(f"s_sub_u32 s{S_JM}, s{S_NT}, 1")
    e(f"s_sub_u32 s{S_T1}, s{S_TE}, 1")
    e(f"s_lshl_b32 s{S_T1}, s{S_T1}, 5")
    e(f"s_sub_i32 s{S_REM}, s{S_CL}, s{S_T1}")
    e(f"s_cmp_eq_u32 s{S_CL}, 0")
    e(f"s_cselect_b32 s{S_JM}, 0, s{S_JM}")
    e(f"v_lshrrev_b32 v48, 5, v{V_LANE}")
    e("v_lshlrev_b32 v48, 2, v48")
    e(f"v_sub_u32 v{V_REM}, s{S_REM}, v48")
    e(f"s_sub_u32 s{S_I}, s{S_CI}, s{S_SH}")
    e(f"s_cmp_lt_u32 s{S_CI}, s{S_SH}")
    e(f"s_cselect_b32 s{S_T1}, 3, 0")
    e(f"s_addc_u32 s{S_PAR}, 0, 0")
    e(f"s_add_u32 s{S_I}, s{S_I}, s{S_T1}")
    e(f"v_mov_b32 v{V_CNT}, s{S_PAR}")
    e(f"ds_write_b32 v{V_DONE}, v{V_CNT}")
    e(f"s_lshl_b32 s{S_T1}, s{S_PAR}, 1")
    e(f"s_add_u32 s{S_T1}, s{S_T1}, 1")
    e(f"v_mov_b32 v{V_CNT}, s{S_T1}")
    e(f"s_cmp_ge_u32 s{S_I}, s{S_NT}")
    e("s_cbranch_scc1 L_notiles")
    e(f"s_mov_b32 s{S_H}, 0")
    e(f"s_mov_b32 s{S_NEED}, 2")
    poll(g, "q")
    for qh in range(2):
        for st in range(8):
            e(f"ds_read_b128 {ar(A_Q+(qh*8+st)*4,4)}, v{V_S+st} offset:{qh*8192}")
        if qh == 0: e("s_waitcnt lgkmcnt(4)")
    need_k_first(g)
    e("s_waitcnt lgkmcnt(0)")
    poll(g, "k0")
    e(f"s_cmp_eq_u32 s{S_PAR}, 1")
    e("s_cbranch_scc1 L_start_b")
    first_tile(g, 0, "fa")
    g.lab("L_loop")
    iteration(g, 0, "a")
    g.lab("L_loop_b")
    iteration(g, 1, "b")
    e("s_branch L_loop")
    g.lab("L_start_b")
    first_tile(g, 1, "fb")
    e("s_branch L_loop_b")
    last_tile(g, 0, "a")
    last_tile(g, 1, "b")
    g.o += g.ool; g.ool = []
    g.lab("L_notiles")
    write_stats(g)
    ew_addrs(g)
    for idx in range(32): e(owrite(idx))
    g.lab("L_fin2")
    e(f"v_mov_b32 v{V_CNT}, 2")
    e("s_waitcnt lgkmcnt(0)")
    e(f"ds_write_b32 v{V_FIN}, v{V_CNT}")
    stamp(g, 4)
    e(f"s_cmp_eq_u32 s{S_ROLE}, 0")
    e("s_cbranch_scc1 L_red_a")
    e(f"s_cmp_eq_u32 s{S_ROLE}, 2")
    e("s_cbranch_scc1 L_red_c")
    if a.split:
        e(f"s_cmp_eq_u32 s{S_MODE}, 1")
        e("s_cbranch_scc1 L_reduce_b1")
        e(f"s_cmp_eq_u32 s{S_MODE}, 2")
        e("s_cbranch_scc1 L_reduce_b2")
    reduce_code(g, 4, "b", 0)
    g.lab("L_red_a")
    if a.split:
        e(f"s_cmp_eq_u32 s{S_MODE}, 1")
        e("s_cbranch_scc1 L_reduce_a1")
        e(f"s_cmp_eq_u32 s{S_MODE}, 2")
        e("s_cbranch_scc1 L_reduce_a2")
    reduce_code(g, 6, "a", 0)
    if a.split:
        for m in (1, 2):
            reduce_code(g, 4, "b", m)
            reduce_code(g, 6, "a", m)
    g.lab("L_red_c")
    if a.split:
        e(f"s_cmp_lg_u32 s{S_MODE}, 1")
        e("s_cbranch_scc1 L_out")
        g.lab("L_jobend")
        e("s_waitcnt vmcnt(0) lgkmcnt(0)")
        e("s_barrier")
        next_job(g)
        e(f"s_cmp_lg_u32 s{S_W}, 0")
        e("s_cbranch_scc1 L_cnext")
        e(f"s_lshl_b32 s{S_T1}, s{S_SLOT}, 2")
        e(f"v_mov_b32 v48, s{S_T1}")
        e("v_mov_b32 v49, 1")
        e("v_mov_b32 v50, 0")
        e("v_mov_b32 v51, 2")
        e("s_mov_b64 exec, 1")
        e("global_store_dword v48, v49, s[28:29] sc1")
        e("s_mov_b64 exec, -1")
        e(f"ds_write_b32 v{V_FLAG}, v51")
        for k in range(1, 7): e(f"ds_write_b32 v{V_FLAG}, v50 offset:{256*k}")
        e(f"v_mov_b32 v{V_BT}, v{V_BT2}"); e(f"v_mov_b32 v{V_BT+1}, v{V_BT2+1}")
        for k in range(8): e(f"v_subrev_u32 v{V_DK+k}, s{S_HD}, v{V_DK+k}")
        e(f"v_mov_b32 v{V_PT}, 0")
        job_common(g)
        e("s_waitcnt lgkmcnt(0)")
        e("s_barrier")
        e("s_branch L_ljob")
        g.lab("L_cnext")
        e("s_barrier")
        e("s_branch L_cjob")
    g.lab("L_out")
    if a.dbg:
        e("s_waitcnt vmcnt(0)")
        e("s_memrealtime s[98:99]")
        e("s_getreg_b32 s100, hwreg(HW_REG_XCC_ID)")
        e("s_waitcnt lgkmcnt(0)")
        e("s_mov_b64 exec, 1")
        e("v_mov_b32 v2, 0")
        e("s_not_b32 s101, s88"); e("v_mov_b32 v4, s101"); e("global_atomic_umax v2, v4, s[28:29]")
        e("v_mov_b32 v5, s98"); e("global_atomic_umax v2, v5, s[28:29] offset:4")
        e(f"s_cmp_lg_u32 s{S_W}, 0"); e("s_cbranch_scc1 L_end")
        e("s_sub_u32 s101, s94, s88"); e("v_mov_b32 v6, s101"); e("global_atomic_umax v2, v6, s[28:29] offset:8")
        e("global_atomic_add v2, v6, s[28:29] offset:12")
        e("v_mov_b32 v7, s96"); e("global_atomic_umax v2, v7, s[28:29] offset:16")
        e("s_sub_u32 s101, s96, s88"); e("v_mov_b32 v8, s101"); e("global_atomic_add v2, v8, s[28:29] offset:20")
        e("v_mov_b32 v9, s88"); e("global_atomic_umax v2, v9, s[28:29] offset:24")
        e("s_cmp_ge_u32 s2, 8"); e("s_cbranch_scc1 L_end")
        e("s_lshl_b32 s101, s2, 2"); e("v_mov_b32 v3, s101"); e("s_and_b32 s100, s100, 15"); e("v_mov_b32 v10, s100")
        e("global_store_dword v3, v10, s[28:29] offset:32")
    elif stamps:
        e("s_waitcnt vmcnt(0)")
        e("s_memrealtime s[98:99]")
        if a.wstat:
            e("s_mov_b32 s90, s10"); e("s_mov_b32 s91, 0"); e("s_mov_b32 s92, s11"); e("s_mov_b32 s93, 0")
        e("s_getreg_b32 s100, hwreg(HW_REG_XCC_ID)")
        e("s_getreg_b32 s101, hwreg(HW_REG_HW_ID)")
        e("s_lshl_b32 s3, s2, 2")
        e(f"s_add_u32 s3, s3, s{S_W}")
        e("s_lshl_b32 s3, s3, 6")
        e("v_mov_b32 v2, s3")
        e("s_waitcnt lgkmcnt(0)")
        for k in range(6):
            e(f"v_mov_b32 v4, s{88+2*k}")
            e(f"v_mov_b32 v5, s{89+2*k}")
            e(f"global_store_dwordx2 v2, v[4:5], s[30:31] offset:{8*k}")
            e("s_nop 1")
        e("v_mov_b32 v4, 0"); e("v_mov_b32 v5, 0")
        e("global_store_dwordx2 v2, v[4:5], s[30:31] offset:48")
        e("s_nop 1")
        e("v_mov_b32 v4, s100"); e("v_mov_b32 v5, s101")
        e("global_store_dwordx2 v2, v[4:5], s[30:31] offset:56")
    if spin:
        e(f"s_add_u32 s88, s88, {spin*100}")
        e("s_addc_u32 s89, s89, 0")
        g.lab("L_spin")
        e("s_memrealtime s[90:91]")
        e("s_waitcnt lgkmcnt(0)")
        e("s_sub_u32 s92, s90, s88")
        e("s_subb_u32 s93, s91, s89")
        e("s_cmp_lt_i32 s93, 0")
        e("s_cbranch_scc1 L_spin")
    g.lab("L_end")
    e("s_endpgm")
    out += g.o
    out += ['.section .rodata,"a"', ".p2align 6", f".amdhsa_kernel {NAME}",
        "  .amdhsa_next_free_vgpr 384", "  .amdhsa_next_free_sgpr 102", "  .amdhsa_accum_offset 256",
        "  .amdhsa_group_segment_fixed_size 0", "  .amdhsa_kernarg_size 64", "  .amdhsa_user_sgpr_count 2",
        "  .amdhsa_user_sgpr_kernarg_segment_ptr 1", "  .amdhsa_system_sgpr_workgroup_id_x 1",
        ".end_amdhsa_kernel", ""]
    return "\n".join(out)

def parse():
    ap = argparse.ArgumentParser()
    ap.add_argument("-L", type=int, default=20)
    ap.add_argument("--lin", default="")
    ap.add_argument("--nt", default="nt")
    ap.add_argument("--bonus", type=int, default=0)
    ap.add_argument("--clast", type=int, default=2)
    ap.add_argument("--lead", type=int, default=5)
    ap.add_argument("--tab", default="")
    ap.add_argument("--res", type=int, default=2)
    ap.add_argument("--tf", type=float, default=1.0)
    ap.add_argument("--tmax", type=int, default=32)
    ap.add_argument("--dry", type=int, default=0)
    ap.add_argument("--pf", type=int, default=2)
    ap.add_argument("--theta", type=int, default=1850)
    ap.add_argument("--ahead", type=int, default=10)
    ap.add_argument("--pstep", type=int, default=3)
    ap.add_argument("--pfirst", type=int, default=10)
    ap.add_argument("--lv", type=int, default=40)
    ap.add_argument("--split", type=int, default=0)
    ap.add_argument("--t0", type=int, default=56)
    ap.add_argument("--thetal", type=int, default=1800)
    ap.add_argument("--hs", type=int, default=280)
    ap.add_argument("--impat", type=int, default=18)
    ap.add_argument("--burst", type=int, default=4)
    ap.add_argument("--hmap", type=int, default=2)
    ap.add_argument("--dbg", action="store_true")
    ap.add_argument("--hperm", default="76345210")
    ap.add_argument("--fine", type=float, default=19)
    ap.add_argument("--hpol", default="sc1")
    ap.add_argument("--cheat", type=int, default=0)
    ap.add_argument("--sigma", type=int, default=1700)
    ap.add_argument("--hb", type=int, default=150)
    ap.add_argument("--spin", type=int, default=0)
    ap.add_argument("--stamps", action="store_true")
    ap.add_argument("--estamps", action="store_true")
    ap.add_argument("--noload", action="store_true")
    ap.add_argument("--wstat", action="store_true")
    ap.add_argument("--stpol", default="")
    ap.add_argument("-o", default="standalone__paged_block_table_kv_pagedattention__sampling.s")
    a = ap.parse_args()
    if a.tab:
        a.table = [tuple(int(y) for y in x.split(":")) for x in a.tab.split(",")]
        a.table[0] = (0, a.table[0][1])
    elif a.lin:
        pts = [float(x) for x in a.lin.split(",")]
        tab = []
        for cl in range(1024, 2049):
            u = (cl - 1024) / 1024.0 * (len(pts) - 1)
            k = min(int(u), len(pts) - 2)
            Lf = pts[k] + (pts[k+1] - pts[k]) * (u - k)
            res = 4 if Lf < a.fine else a.res
            L = int(round(res * Lf)) * (4 // res)
            L = max(8, min(160, L))
            if not tab or tab[-1][1] < L: tab.append((cl, L))
        tab[0] = (0, tab[0][1])
        a.table = tab
    else:
        a.table = [(0, 4 * a.L)]
    a.table.append((4096, 4 * a.lv))
    assert not a.split or a.theta > 32 * (a.t0 + 2)
    return a

if __name__ == "__main__":
    a = parse()
    LEAD = a.lead
    open(a.o, "w").write(build(a))
```

```python
import sys, struct, math, argparse

NAME = "standalone__paged_block_table_kv_pagedattention__sampling_kernel"
KV_BYTES = 4100 * 32768
Q_BYTES = 32 * 32 * 16 * 128 * 2
LEAD = 6

def f32bits(x): return struct.unpack("<I", struct.pack("<f", x))[0]

class Gen:
    def __init__(self, a): self.o = []; self.a = a; self.ool = []
    def e(self, s): self.o.append("    " + s)
    def lab(self, s): self.o.append(s + ":")
    def c(self, s): self.o.append("    ; " + s)

LDS_Q = 98304
LDS_FLAG = 114688
LDS_DONE = LDS_FLAG + 256
LDS_FIN = LDS_FLAG + 1024
LDS_STAT = LDS_FLAG + 2048
LDS_Q2 = LDS_STAT + 2048
LDS_TOTAL = LDS_Q2 + 16384
LDS_NOSPLIT = LDS_Q2

S_KSRD = 4; S_VSRD = 8; S_XSRD = 12; S_BSRD = 76
S_C2 = 38; S_PAR = 47
S_CL4 = 40; S_KEY4 = 44; S_WSRD = 48
S_MODE, S_TB, S_CLO, S_HD, S_SLOT, S_QOV, S_SH, S_NVB, S_KEY, S_QSRC, S_IMP, S_CLV = 52, 53, 54, 55, 56, 57, 58, 59, 60, 61, 62, 63
S_TE = 77; S_G0 = 76; S_CUT = 46
V_BT2 = 62; V_REM = 28
S_P2, S_P3, S_J, S_LBV, S_CV, S_NV = 34, 35, 36, 37, 38, 39
S_CL, S_CLE, S_W, S_NT, S_NP, S_JM, S_REM, S_H = 64, 65, 66, 67, 68, 69, 70, 71
S_NEED, S_C, S_LB, S_I = 72, 73, 74, 75
S_DB, S_DC, S_OA, S_OB = 76, 77, 78, 79
S_P0, S_P1, S_T0, S_T1, S_T2 = 80, 81, 82, 83, 84
S_QO0, S_ROLE, S_CI, S_N = 85, 86, 87, 70
S_NK = S_N; S_FIRST = 71
V_LANE = 1
V_KA = 8; V_VA = 16
V_DK = 8; V_DV = 12; V_DQ = 16; V_BT = 20
V_FLAG = 22; V_CNT = 23; V_DONE = 24; V_PT = 25; V_FIN = 26
V_R = 27; V_M = 29; V_L0, V_L1 = 30, 31
V_T0, V_T1 = 32, 33
V_MA, V_MB = 34, 36
V_AL = [(38, 40), (42, 44)]
V_RA = 52; V_SA = 58; V_FP = 59; V_OV = 60
V_PP = [64, 80]; V_S = 96; V_O = 128
V_EW = 96
A_Q = 0; A_K = 64; A_V = 96

def vr(b, n): return f"v[{b}:{b+n-1}]"
def ar(b, n): return f"a[{b}:{b+n-1}]"
def sr(b, n): return f"s[{b}:{b+n-1}]"

def poll(g, tag, pre=False):
    if pre:
        g.e("s_waitcnt lgkmcnt(0)")
        g.e(f"v_readfirstlane_b32 s{S_H}, v{V_PT}")
    g.e(f"s_cmp_ge_i32 s{S_H}, s{S_NEED}")
    g.e(f"s_cbranch_scc0 L_poll_{tag}")
    g.lab(f"L_ok_{tag}")
    if g.a.wstat:
        acc = 10 if tag[0] == "k" else 11
        g.ool += [f"L_poll_{tag}:", "    s_memtime s[8:9]", f"L_poll2_{tag}:",
            f"    ds_read_b32 v{V_PT}, v{V_FLAG}", "    s_waitcnt lgkmcnt(0)",
            f"    v_readfirstlane_b32 s{S_H}, v{V_PT}", f"    s_cmp_ge_i32 s{S_H}, s{S_NEED}",
            f"    s_cbranch_scc0 L_poll2_{tag}", "    s_memtime s[100:101]", "    s_waitcnt lgkmcnt(0)",
            "    s_sub_u32 s100, s100, s8", f"    s_add_u32 s{acc}, s{acc}, s100", f"    s_branch L_ok_{tag}"]
        return
    g.ool += [f"L_poll_{tag}:",
        f"    ds_read_b32 v{V_PT}, v{V_FLAG}",
        "    s_waitcnt lgkmcnt(0)",
        f"    v_readfirstlane_b32 s{S_H}, v{V_PT}",
        f"    s_cmp_ge_i32 s{S_H}, s{S_NEED}",
        f"    s_cbranch_scc1 L_ok_{tag}",
        f"    s_branch L_poll_{tag}"]

def need_k_first(g):
    g.e(f"s_lshl_b32 s{S_NEED}, s{S_I}, 1")
    g.e(f"s_add_i32 s{S_NEED}, s{S_NEED}, {3 - LEAD}")
    g.e(f"s_add_u32 s{S_T1}, s{S_I}, 3")
    g.e(f"s_max_i32 s{S_NEED}, s{S_NEED}, s{S_T1}")
def need_k_next():
    return [f"s_lshl_b32 s{S_NEED}, s{S_I}, 1", f"s_add_i32 s{S_NEED}, s{S_NEED}, {9 - LEAD}",
            f"s_add_u32 s{S_T1}, s{S_I}, 6", f"s_max_i32 s{S_NEED}, s{S_NEED}, s{S_T1}"]
def need_v():
    return [f"s_lshl_b32 s{S_NEED}, s{S_I}, 1", f"s_add_u32 s{S_NEED}, s{S_NEED}, {4 + LEAD}",
            f"s_add_u32 s{S_T1}, s{S_I}, s{S_NVB}", f"s_min_i32 s{S_NEED}, s{S_NEED}, s{S_T1}"]

def k_reads(e): return [f"ds_read_b128 {ar(A_K+4*st,4)}, v{V_KA+st} offset:{e*16384}" for st in range(8)]
def v_reads(e):
    return [f"ds_read_b64_tr_b16 {ar(A_V+(db*2+ts)*4+2*u,2)}, v{V_VA+db} offset:{e*16384+ts*4096+u*2048}"
            for db in range(4) for ts in range(2) for u in range(2)]
def qk(st, qh):
    cc = "0" if st == 0 else vr(V_S+16*qh, 16)
    return f"v_mfma_f32_32x32x16_bf16 {vr(V_S+16*qh,16)}, {ar(A_K+4*st,4)}, {ar(A_Q+(qh*8+st)*4,4)}, {cc}"
def pv(e, db, ts, qh):
    o = vr(V_O + (db*2+qh)*16, 16)
    return f"v_mfma_f32_32x32x16_bf16 {o}, {ar(A_V+(db*2+ts)*4,4)}, {vr(V_PP[e]+(qh*2+ts)*4,4)}, {o}"
def owrite(idx):
    db = idx >> 3; jj = idx & 3
    return f"ds_write_b128 v{V_EW + 4*db + jj}, {vr(V_O+4*idx,4)} offset:{idx*1024}"
def resc(e, db, pk=False):
    out = []
    for qh in range(2):
        al = V_AL[e][qh]
        if pk:
            for k in range(0, 16, 2):
                r = V_O + (db*2+qh)*16 + k
                out.append(f"v_pk_mul_f32 {vr(r,2)}, {vr(r,2)}, {vr(al,2)} op_sel_hi:[1,0]")
        else:
            for k in range(16):
                r = V_O + (db*2+qh)*16 + k
                out.append(f"v_mul_f32 v{r}, v{r}, v{al}")
    return out
def lsum(e):
    s0, s1 = V_S, V_S + 16
    aa, ab = V_AL[e]
    o = [f"v_pk_add_f32 v[48:49], {vr(s0,2)}, {vr(s0+2,2)}", f"v_pk_add_f32 v[50:51], {vr(s1,2)}, {vr(s1+2,2)}"]
    for k in range(4, 16, 2):
        o.append(f"v_pk_add_f32 v[48:49], v[48:49], {vr(s0+k,2)}")
        o.append(f"v_pk_add_f32 v[50:51], v[50:51], {vr(s1+k,2)}")
    o += [f"v_fma_f32 v{V_L0}, v{V_L0}, v{aa}, v48", f"v_fma_f32 v{V_L1}, v{V_L1}, v{ab}, v50",
          f"v_add_f32 v{V_L0}, v{V_L0}, v49", f"v_add_f32 v{V_L1}, v{V_L1}, v51"]
    return o
def ew_addrs(g):
    for f in range(16):
        g.e(f"v_xor_b32 v48, {f}, v{V_LANE}")
        g.e(f"v_lshl_add_u32 v{V_EW+f}, v48, 4, s{S_LB}")

def qk_phase(g, fill):
    mf = [qk(st, qh) for st in range(8) for qh in range(2)]
    n = len(mf); k = 0
    for i, m in enumerate(mf):
        st = i >> 1
        if (i & 1) == 0:
            if st < 4: g.e(f"s_waitcnt lgkmcnt({7-st})")
            elif st == 4:
                g.e("s_waitcnt lgkmcnt(0)")
                g.e(f"ds_write_b32 v{V_DONE}, v{V_CNT}")
        g.e(m)
        upto = (len(fill) * (i + 1) + n - 1) // n
        while k < upto:
            g.e(fill[k]); k += 1

def softmax(g, e, tag, imask):
    aa, ab = V_AL[e]
    if imask: g.e(f"s_add_u32 s{S_T2}, s{S_I}, {imask}")
    g.e(f"s_cmp_lt_u32 s{S_T2 if imask else S_I}, s{S_JM}")
    g.e(f"s_cbranch_scc0 L_mask_{tag}")
    g.lab(f"L_nomask_{tag}")
    g.ool.append(f"L_mask_{tag}:")
    prs = ["vcc", "s[32:33]", "s[34:35]", "s[36:37]"]
    for j0 in range(0, 16, 4):
        for j in range(j0, j0 + 4):
            g.ool.append(f"    v_cmp_gt_i32 {prs[j & 3]}, v{V_REM}, {(j & 3) + 8 * (j >> 2)}")
        if True: g.ool.append("    s_nop 1")
        for j in range(j0, j0 + 4):
            for qh in range(2):
                r = V_S + 16*qh + j
                g.ool.append(f"    v_cndmask_b32 v{r}, v{V_R}, v{r}, {prs[j & 3]}")
    g.ool.append(f"    s_branch L_nomask_{tag}")
    s0, s1 = V_S, V_S + 16
    g.e(f"v_max3_f32 v{V_T0}, v{s0}, v{s0+1}, v{s0+2}")
    g.e(f"v_max3_f32 v{V_T1}, v{s1}, v{s1+1}, v{s1+2}")
    for k in range(3, 15, 2):
        g.e(f"v_max3_f32 v{V_T0}, v{V_T0}, v{s0+k}, v{s0+k+1}")
        g.e(f"v_max3_f32 v{V_T1}, v{V_T1}, v{s1+k}, v{s1+k+1}")
    g.e(f"v_max_f32 v{V_T0}, v{V_T0}, v{s0+15}")
    g.e(f"v_max_f32 v{V_T1}, v{V_T1}, v{s1+15}")
    g.e(f"v_add_u32 v{V_CNT}, 1, v{V_CNT}")
    g.e("s_nop 0")
    g.e(f"v_permlane32_swap_b32 v{V_T0}, v{V_T1}")
    g.e(f"v_max_f32 v{V_T0}, v{V_T0}, v{V_T1}")
    g.e(f"v_mul_f32 v{V_T0}, s{S_C}, v{V_T0}")
    g.e(f"v_max_f32 v{V_MA}, v{V_M}, v{V_T0}")
    g.e(f"v_sub_f32 v{V_T1}, v{V_M}, v{V_MA}")
    g.e(f"v_mov_b32 v{V_MB}, v{V_MA}")
    g.e(f"v_exp_f32 v{aa}, v{V_T1}")
    g.e(f"v_mov_b32 v{V_M}, v{V_MA}")
    g.e(f"v_permlane32_swap_b32 v{V_MA}, v{V_MB}")
    g.e(f"v_mov_b32 v{ab}, v{aa}")
    for j in range(0, 16, 2):
        for qh in range(2):
            r = V_S + 16*qh + j
            m = V_MA if qh == 0 else V_MB
            g.e(f"v_pk_fma_f32 {vr(r,2)}, {vr(r,2)}, {sr(S_C2,2)}, {vr(m,2)} op_sel_hi:[1,1,0] neg_lo:[0,0,1] neg_hi:[0,0,1]")
        if j == 0: g.e(f"v_permlane32_swap_b32 v{aa}, v{ab}")
    for j in range(16):
        for qh in range(2):
            r = V_S + 16*qh + j
            g.e(f"v_exp_f32 v{r}, v{r}")
    g.e(f"ds_read_b32 v{V_PT}, v{V_FLAG}")
    for ts in range(2):
        for r in range(4):
            for qh in range(2):
                src = V_S + 16*qh + 8*ts + 2*r
                g.e(f"v_cvt_pk_bf16_f32 v{V_PP[e] + (qh*2+ts)*4 + r}, v{src}, v{src+1}")

def iteration(g, e, tag):
    x = g.e
    g.c(f"---- iteration parity {e}")
    x(f"s_add_u32 s{S_T1}, s{S_I}, 3")
    x(f"s_cmp_ge_u32 s{S_T1}, s{S_NT}")
    x(f"s_cbranch_scc1 L_last_{tag}")
    poll(g, "k" + tag, True)
    for r in k_reads(1 - e): x(r)
    for r in resc(e, 0, True): x(r)
    qk_phase(g, resc(e, 1) + resc(e, 2) + resc(e, 3)[:26])
    for r in resc(e, 3)[26:]: x(r)
    for r in need_v(): x(r)
    softmax(g, 1 - e, tag, 3)
    poll(g, "v" + tag, True)
    rd = v_reads(e)
    for r in rd[:12]: x(r)
    ls = lsum(1 - e)
    for r in ls[:10]: x(r)
    x("s_waitcnt lgkmcnt(10)")
    for r in rd[12:]: x(r)
    for r in ls[10:]: x(r)
    x("s_waitcnt lgkmcnt(12)")
    for ts in range(2):
        for qh in range(2): x(pv(e, 0, ts, qh))
    x("s_waitcnt lgkmcnt(8)")
    for ts in range(2):
        for qh in range(2): x(pv(e, 1, ts, qh))
    x("s_waitcnt lgkmcnt(0)")
    x(f"ds_write_b32 v{V_DONE}, v{V_CNT}")
    x(f"s_add_u32 s{S_I}, s{S_I}, 3")
    for ts in range(2):
        for qh in range(2): x(pv(e, 2, ts, qh))
    x(f"v_add_u32 v{V_CNT}, 1, v{V_CNT}")
    for r in need_k_next(): x(r)
    x(pv(e, 3, 0, 0))
    if g.a.split:
      x(f"s_cmp_lg_u32 s{S_IMP}, 0")
      x(f"s_cbranch_scc1 L_imp_{tag}")
      g.lab(f"L_impr_{tag}")
      g.ool += [f"L_imp_{tag}:",
        f"    s_cmp_eq_u32 s{S_IMP}, 2",
        f"    s_cbranch_scc1 L_imp2_{tag}",
        f"    s_add_u32 s{S_T2}, s{S_I}, {g.a.impat}",
        f"    s_cmp_lt_u32 s{S_T2}, s{S_NT}",
        f"    s_cbranch_scc1 L_impr_{tag}",
        f"    global_load_dword v63, v62, s[28:29] sc1",
        f"    s_add_u32 s{S_IMP}, s{S_IMP}, 1",
        f"    s_branch L_impr_{tag}",
        f"L_imp2_{tag}:",
        "    s_waitcnt vmcnt(0)",
        f"    v_readfirstlane_b32 s{S_T2}, v63",
        f"    s_cmp_eq_u32 s{S_T2}, 0",
        f"    s_addc_u32 s{S_IMP}, 0, 0",
        f"    s_branch L_impr_{tag}"]
    x(pv(e, 3, 0, 1))
    x(f"ds_read_b32 v{V_PT}, v{V_FLAG}")
    x(pv(e, 3, 1, 0)); x(pv(e, 3, 1, 1))

def write_stats(g):
    e = g.e
    e(f"v_permlane32_swap_b32 v{V_L0}, v{V_L1}")
    e(f"v_lshlrev_b32 v48, 3, v{V_LANE}")
    e(f"s_lshl_b32 s{S_T1}, s{S_ROLE}, 9")
    e(f"s_add_u32 s{S_T1}, s{S_T1}, {LDS_STAT}")
    e(f"v_add_u32 v49, s{S_T1}, v48")
    e(f"v_mov_b32 v50, v{V_M}")
    e(f"v_add_f32 v51, v{V_L0}, v{V_L1}")
    e("ds_write_b64 v49, v[50:51]")

def last_tile(g, e, tag):
    x = g.e
    g.lab(f"L_last_{tag}")
    if g.a.estamps: x("s_memrealtime s[90:91]")
    if g.a.split:
      x(f"s_cmp_lg_u32 s{S_IMP}, 0")
      x(f"s_cbranch_scc1 L_impb_{tag}")
      g.lab(f"L_impbr_{tag}")
      g.ool += [f"L_impb_{tag}:",
        f"    global_load_dword v63, v62, s[28:29] sc1",
        "    s_waitcnt vmcnt(0)",
        f"    v_readfirstlane_b32 s{S_T2}, v63",
        f"    s_cmp_eq_u32 s{S_T2}, 0",
        f"    s_cbranch_scc1 L_impb_{tag}",
        f"    s_branch L_impbr_{tag}"]
    write_stats(g)
    x(f"v_mov_b32 v{V_CNT}, 1")
    for r in need_v(): x(r)
    x("s_waitcnt lgkmcnt(0)")
    x(f"ds_write_b32 v{V_FIN}, v{V_CNT}")
    ew_addrs(g)
    for db in range(4):
        for r in resc(e, db, True): x(r)
    if g.a.estamps: x("s_memrealtime s[92:93]")
    poll(g, "l" + tag)
    if g.a.estamps:
        x("s_memrealtime s[94:95]"); x("s_waitcnt lgkmcnt(0)")
    rd = v_reads(e)
    for r in rd[:12]: x(r)
    x("s_waitcnt lgkmcnt(10)")
    x(pv(e,0,0,0)); x(pv(e,0,0,1))
    for r in rd[12:]: x(r)
    x("s_waitcnt lgkmcnt(12)")
    x(pv(e,0,1,0)); x(pv(e,0,1,1))
    x("s_waitcnt lgkmcnt(8)")
    x(pv(e,1,0,0)); x("s_nop 3"); x(pv(e,1,0,1)); x("s_nop 3")
    x("s_waitcnt lgkmcnt(0)")
    w = 0
    for m in [pv(e,1,1,0), pv(e,1,1,1), pv(e,2,0,0), pv(e,2,0,1), pv(e,2,1,0), pv(e,2,1,1), pv(e,3,0,0), pv(e,3,0,1), pv(e,3,1,0), pv(e,3,1,1)]:
        x(m)
        x(owrite(w)); w += 1
        if w > 2:
            x(owrite(w)); w += 1
    while w < 32:
        if w == 24: x("s_nop 3")
        x(owrite(w)); w += 1
    x("s_branch L_fin2")

def first_tile(g, e, tag):
    x = g.e
    for r in k_reads(e): x(r)
    qk_phase(g, [])
    x("s_nop 7"); x("s_nop 1")
    softmax(g, e, tag, 0)
    for r in lsum(e): x(r)
    x(f"v_add_u32 v{V_CNT}, 1, v{V_CNT}")
    for r in need_k_next(): x(r)

def stamp(g, k):
    if g.a.stamps: g.e(f"s_memrealtime s[{88+2*k}:{89+2*k}]")

def decide(g):
    e = g.e; a = g.a
    if not a.split:
        e(f"s_cmp_eq_u32 s{S_CL}, 0")
        e(f"s_cselect_b32 s{S_KEY}, 2048, s{S_CL}")
        e(f"s_bfe_u32 s{S_T0}, s{S_QO0}, 0x2000e")
        e(f"s_cmp_eq_u32 s{S_T0}, 1")
        e(f"s_cselect_b32 s{S_T2}, {a.thetal}, -1")
        e(f"s_cselect_b32 s{S_T1}, {a.bonus}, 0")
        e(f"s_cmp_ge_u32 s{S_KEY}, s{S_T2}")
        e(f"s_cselect_b32 s{S_T1}, 4096, s{S_T1}")
        e(f"s_add_u32 s{S_KEY}, s{S_KEY}, s{S_T1}")
        e(f"s_mov_b32 s{S_TB}, 0")
        e(f"s_mov_b32 s{S_QSRC}, {LDS_Q}")
        return
    assert a.hmap == 2
    for p in range(2):
        e(f"s_max_i32 s{S_CL4+p}, s{S_CL4+p}, 0")
        e(f"s_min_i32 s{S_CL4+p}, s{S_CL4+p}, 2048")
    e(f"s_bitcmp1_b32 s3, 0")
    e(f"s_cselect_b32 s{S_CLO}, s{S_CL4+1}, s{S_CL4}")
    e(f"s_cselect_b32 s{S_T1}, s{S_CL4}, s{S_CL4+1}")
    e(f"s_cmp_eq_u32 s{S_CLO}, 0")
    e(f"s_cselect_b32 s{S_KEY}, 2048, s{S_CLO}")
    e(f"s_bfe_u32 s{S_T0}, s{S_QO0}, 0x2000e")
    e(f"s_cmp_eq_u32 s{S_T0}, 1")
    e(f"s_cselect_b32 s{S_CLV}, s{S_CLO}, s{S_T1}")
    e(f"s_cselect_b32 s{S_T1}, s{S_T1}, s{S_CLO}")
    e(f"s_cselect_b32 s{S_MODE}, 2, 1")
    e(f"s_cselect_b32 s{S_T2}, {a.thetal}, -1")
    e(f"s_bitcmp1_b32 s{S_T0}, 0")
    e(f"s_cselect_b32 s{S_MODE}, s{S_MODE}, 0")
    e(f"s_cmp_lt_u32 s{S_CLV}, {a.theta}")
    e(f"s_cselect_b32 s{S_MODE}, 0, s{S_MODE}")
    e(f"s_sub_u32 s{S_T1}, s{S_T1}, 1")
    e(f"s_cmp_ge_u32 s{S_T1}, {a.sigma}")
    e(f"s_cselect_b32 s{S_MODE}, 0, s{S_MODE}")
    e(f"s_cmp_ge_u32 s{S_KEY}, s{S_T2}")
    e(f"s_cselect_b32 s{S_KEY}, 4096, s{S_KEY}")
    e(f"s_mov_b32 s{S_QSRC}, {LDS_Q}")
    e(f"s_xor_b32 s{S_T2}, s3, 1")
    e(f"s_cmp_eq_u32 s{S_MODE}, 2")
    e(f"s_cselect_b32 s{S_T2}, s3, s{S_T2}")
    e(f"s_lshl1_add_u32 s{S_QOV}, s{S_T2}, s2")
    e(f"s_and_b32 s{S_QOV}, s{S_QOV}, 7")
    e(f"s_lshr_b32 s{S_SLOT}, s{S_QOV}, 2")
    e(f"s_lshl1_add_u32 s{S_SLOT}, s{S_T2}, s{S_SLOT}")
    e(f"s_bfe_u32 s{S_HD}, s{S_QO0}, 0x3000e")
    e(f"s_sub_u32 s{S_HD}, s{S_QOV}, s{S_HD}")
    e(f"s_lshl_b32 s{S_HD}, s{S_HD}, 8")
    e(f"s_lshl3_add_u32 s{S_QOV}, s{S_T2}, s{S_QOV}")
    e(f"s_lshl_b32 s{S_QOV}, s{S_QOV}, 14")
    e(f"s_add_u32 s{S_T2}, s{S_CLV}, {31 - 32*a.t0}")
    e(f"s_lshr_b32 s{S_T2}, s{S_T2}, 5")
    e(f"s_and_b32 s{S_T2}, s{S_T2}, 63")
    e(f"s_mul_i32 s{S_CUT}, s{S_T2}, 171")
    e(f"s_lshr_b32 s{S_CUT}, s{S_CUT}, 9")
    e(f"s_mul_i32 s{S_CUT}, s{S_CUT}, 3")
    e(f"s_sub_u32 s{S_CUT}, s{S_T2}, s{S_CUT}")
    e(f"s_add_u32 s{S_CUT}, s{S_CUT}, {a.t0}")
    e(f"s_lshl_b32 s{S_T2}, s{S_CUT}, 5")
    e(f"s_sub_u32 s{S_T2}, s{S_CLV}, s{S_T2}")
    e(f"s_add_u32 s{S_T2}, s{S_T2}, s{S_KEY}")
    e(f"s_mul_i32 s{S_T2}, s{S_T2}, {a.hs}")
    e(f"s_lshr_b32 s{S_T2}, s{S_T2}, 8")
    e(f"s_min_u32 s{S_T2}, s{S_T2}, 2048")
    e(f"s_cmp_eq_u32 s{S_MODE}, 1")
    e(f"s_cselect_b32 s{S_KEY}, s{S_T2}, s{S_KEY}")
    e(f"s_cselect_b32 s{S_CL}, s{S_CLV}, s{S_CLO}")
    e(f"s_cselect_b32 s{S_TB}, s{S_CUT}, 0")
    e(f"s_cselect_b32 s{S_QSRC}, {LDS_Q2}, s{S_QSRC}")

def job_common(g, first=False):
    e = g.e; a = g.a
    e(f"s_cmp_eq_u32 s{S_CL}, 0")
    e(f"s_cselect_b32 s{S_CLE}, 2048, s{S_CL}")
    e(f"s_add_u32 s{S_TE}, s{S_CLE}, 31")
    e(f"s_lshr_b32 s{S_TE}, s{S_TE}, 5")
    if a.split and not first:
        e(f"s_cmp_eq_u32 s{S_MODE}, 2")
        e(f"s_cselect_b32 s{S_TE}, s{S_CUT}, s{S_TE}")
    e(f"s_sub_u32 s{S_NT}, s{S_TE}, s{S_TB}")
    e(f"s_sub_u32 s{S_T1}, s{S_NT}, 1")
    e(f"s_mul_i32 s{S_T2}, s{S_T1}, 171")
    e(f"s_lshr_b32 s{S_T2}, s{S_T2}, 9")
    e(f"s_mul_i32 s{S_T2}, s{S_T2}, 3")
    e(f"s_sub_u32 s{S_T1}, s{S_T1}, s{S_T2}")
    e(f"s_sub_u32 s{S_SH}, {a.clast + 3}, s{S_T1}")
    e(f"s_cmp_ge_u32 s{S_SH}, 3")
    e(f"s_cselect_b32 s{S_T2}, 3, 0")
    e(f"s_sub_u32 s{S_SH}, s{S_SH}, s{S_T2}")

def next_job(g):
    e = g.e
    e(f"s_mov_b32 s{S_MODE}, 0")
    e(f"s_mov_b32 s{S_CL}, s{S_CLO}")
    e(f"s_mov_b32 s{S_TB}, 0")
    e(f"s_mov_b32 s{S_QSRC}, {LDS_Q}")

def reduce_setup(g, sg0):
    e = g.e
    cl = g.a.clast
    cA = (cl + 1) % 3
    e(f"s_mov_b32 s{S_G0}, s{sg0}")
    e("v_lshrrev_b32 v48, 2, v47")
    e("v_and_b32 v49, 3, v47")
    e("v_lshl_add_u32 v48, v48, 3, v49")
    e("v_lshlrev_b32 v48, 10, v48")
    if cA: e(f"v_add_u32 v48, {cA*32768}, v48")
    e("v_xor_b32 v49, v46, v47")
    for k in range(6):
        e(f"s_add_u32 s{S_OB}, s{sg0}, {k}")
        e(f"s_and_b32 s{S_T1}, s{S_OB}, 3")
        e(f"s_lshl_b32 s{S_T1}, s{S_T1}, 2")
        e(f"v_xor_b32 v50, s{S_T1}, v49")
        e(f"v_lshl_add_u32 v50, v50, 4, v48")
        e(f"s_lshr_b32 s{S_T1}, s{S_OB}, 3")
        e(f"s_lshl_b32 s{S_T1}, s{S_T1}, 12")
        e(f"s_bfe_u32 s{S_T2}, s{S_OB}, 0x10002")
        e(f"s_lshl_b32 s{S_T2}, s{S_T2}, 8")
        e(f"s_add_u32 s{S_T1}, s{S_T1}, s{S_T2}")
        e(f"v_add_u32 v{V_RA+k}, s{S_T1}, v50")
    e(f"s_lshl_b32 s{S_T1}, s{sg0}, 5")
    e(f"s_add_u32 s{S_T1}, s{S_T1}, {LDS_STAT}")
    e(f"v_lshlrev_b32 v{V_SA}, 3, v46")
    e(f"v_add_u32 v{V_SA}, s{S_T1}, v{V_SA}")
    e(f"v_min_u32 v{V_FP}, 2, v{V_LANE}")
    e(f"v_lshlrev_b32 v{V_FP}, 8, v{V_FP}")
    e(f"v_add_u32 v{V_FP}, {LDS_FIN}, v{V_FP}")
    e(f"s_lshl_b32 s{S_T1}, s{sg0}, 10")
    e(f"s_add_u32 s{S_OA}, s{S_QO0}, s{S_T1}")
    e(f"s_add_u32 s{S_OB}, s{S_OA}, 4096")
    e(f"v_lshlrev_b32 v{V_OV}, 4, v{V_LANE}")

def reduce_code(g, NG, tag, mode):
    e = g.e; a = g.a
    tag = f"{tag}{mode}"
    cC = a.clast; cA = (cC + 1) % 3; cB = (cC + 2) % 3
    dB = ((cB - cA) * 32768) & 0xffffffff; dC = ((cC - cB) * 32768) & 0xffffffff
    dR = ((cA - cC) * 32768) & 0xffffffff
    V_ST = 100; V_G = 64; V_ACC = 136; V_IN = 184
    T = 232; VP = 238; VT = 239; XS = 240; G4 = 32
    g.lab(f"L_reduce_{tag}")
    e(f"ds_read_b32 v{VP}, v{V_FP}")
    e("s_waitcnt lgkmcnt(0)")
    e(f"v_readlane_b32 s{S_T0}, v{VP}, 0")
    e(f"v_readlane_b32 s{S_T1}, v{VP}, 1")
    e(f"v_readlane_b32 s{S_T2}, v{VP}, 2")
    e(f"s_min_u32 s{S_T1}, s{S_T1}, s{S_T2}")
    e(f"s_min_u32 s{S_T0}, s{S_T0}, s{S_T1}")
    e(f"s_cmp_lt_u32 s{S_T0}, 1")
    e(f"s_cbranch_scc1 L_reduce_{tag}")
    if a.estamps: e("s_memrealtime s[90:91]")
    if mode:
        e(f"s_mov_b32 s{S_WSRD}, s30"); e(f"s_mov_b32 s{S_WSRD+1}, s31")
        e(f"s_mov_b32 s{S_WSRD+2}, {80*65536}"); e(f"s_mov_b32 s{S_WSRD+3}, 0x20000")
        e(f"s_lshl_b32 s{S_P0}, s{S_SLOT}, 16")
        e(f"s_add_u32 s{S_P0}, s{S_P0}, 0x100000")
        e(f"s_lshl_b32 s{S_T1}, s{S_G0}, 9")
        e(f"s_add_u32 s{S_P1}, s{S_P0}, s{S_T1}")
        e(f"s_add_u32 s{S_P1}, s{S_P1}, 32768")
        e(f"s_lshl_b32 s{S_T1}, s{S_G0}, 11")
        e(f"s_add_u32 s{S_P0}, s{S_P0}, s{S_T1}")
        e(f"v_lshlrev_b32 v{VT}, 3, v{V_LANE}")
    if mode == 2:
        for k in range(NG):
            e(f"buffer_load_dwordx2 {vr(XS+2*k,2)}, v{VT}, {sr(S_WSRD,4)}, s{S_P1} offen offset:{k*512} {a.hpol}")
        for k in range(NG):
            for hh in range(2):
                e(f"buffer_load_dwordx4 {vr(V_ACC+k*8+hh*4,4)}, v{V_OV}, {sr(S_WSRD,4)}, s{S_P0} offen offset:{(k&1)*2048+hh*1024} {a.hpol}")
            if k & 1: e(f"s_add_u32 s{S_P0}, s{S_P0}, 4096")
    def rd_part():
        for k in range(NG):
            for hh in range(2):
                e(f"ds_read_b128 {vr(V_IN + k*8 + hh*4, 4)}, v{V_RA+k} offset:{hh*512}")
    for k in range(NG):
        for ro in range(3):
            e(f"ds_read_b64 {vr(V_ST + (k*3+ro)*2, 2)}, v{V_SA} offset:{k*32 + ro*512}")
        if k == 3 and NG > 4: e("s_waitcnt lgkmcnt(4)")
    e("s_waitcnt lgkmcnt(0)")
    def st(k, ro, x): return V_ST + (k*3+ro)*2 + x
    for k in range(NG): e(f"v_max3_f32 v{T+k}, v{st(k,0,0)}, v{st(k,1,0)}, v{st(k,2,0)}")
    if mode == 2:
        e(f"s_waitcnt vmcnt({2*NG})")
        for k in range(NG): e(f"v_max_f32 v{T+k}, v{T+k}, v{XS+2*k}")
        for k in range(NG): e(f"v_sub_f32 v{G4+2*k}, v{XS+2*k}, v{T+k}")
    if mode == 1:
        for k in range(NG): e(f"v_mov_b32 v{XS+2*k}, v{T+k}")
    for k in range(NG):
        for ro in range(3): e(f"v_sub_f32 v{V_G+(k*3+ro)*2}, v{st(k,ro,0)}, v{T+k}")
    if mode == 2:
        for k in range(NG): e(f"v_exp_f32 v{G4+2*k}, v{G4+2*k}")
    for k in range(NG):
        for ro in range(3): e(f"v_exp_f32 v{V_G+(k*3+ro)*2}, v{V_G+(k*3+ro)*2}")
    if mode == 2:
        for k in range(NG): e(f"v_mul_f32 v{G4+2*k}, v{G4+2*k}, v{XS+2*k+1}")
        for k in range(NG): e(f"v_fma_f32 v{T+k}, v{V_G+k*6}, v{st(k,0,1)}, v{G4+2*k}")
    else:
        for k in range(NG): e(f"v_mul_f32 v{T+k}, v{V_G+k*6}, v{st(k,0,1)}")
    for ro in range(1, 3):
        for k in range(NG): e(f"v_fma_f32 v{T+k}, v{V_G+(k*3+ro)*2}, v{st(k,ro,1)}, v{T+k}")
    if mode == 1:
        for k in range(NG): e(f"v_mov_b32 v{XS+2*k+1}, v{T+k}")
        for k in range(NG):
            e(f"buffer_store_dwordx2 {vr(XS+2*k,2)}, v{VT}, {sr(S_WSRD,4)}, s{S_P1} offen offset:{k*512} {a.hpol}")
    for k in range(NG): e(f"v_rcp_f32 v{T+k}, v{T+k}")
    e("s_nop 0")
    for k in range(NG):
        for ro in range(3): e(f"v_mul_f32 v{V_G+(k*3+ro)*2}, v{V_G+(k*3+ro)*2}, v{T+k}")
    if mode == 2:
        for k in range(NG): e(f"v_mul_f32 v{G4+2*k}, v{G4+2*k}, v{T+k}")
    def acck(k, ro, first):
        for x in range(0, 8, 2):
            d = V_ACC + k*8 + x; s_ = V_IN + k*8 + x; f = V_G + (k*3 + ro)*2
            if first: e(f"v_pk_mul_f32 {vr(d,2)}, {vr(s_,2)}, {vr(f,2)} op_sel_hi:[1,0]")
            else: e(f"v_pk_fma_f32 {vr(d,2)}, {vr(s_,2)}, {vr(f,2)}, {vr(d,2)} op_sel_hi:[1,0,1]")
    def waitfin(lane, lab):
        g.lab(lab)
        e(f"ds_read_b32 v{VP}, v{V_FP}")
        e("s_waitcnt lgkmcnt(0)")
        e(f"v_readlane_b32 s{S_T2}, v{VP}, {lane}")
        e(f"s_cmp_lt_u32 s{S_T2}, 2")
        e(f"s_cbranch_scc1 {lab}")
    waitfin(0, f"L_rpa_{tag}")
    rd_part()
    for k in range(NG): e(f"v_add_u32 v{V_RA+k}, 0x{dB:x}, v{V_RA+k}")
    if mode == 2:
        e("s_waitcnt vmcnt(0)")
        for k in range(NG):
            for x in range(0, 8, 2):
                d = V_ACC + k*8 + x
                e(f"v_pk_mul_f32 {vr(d,2)}, {vr(d,2)}, {vr(G4+2*k,2)} op_sel_hi:[1,0]")
    for k in range(NG):
        e(f"s_waitcnt lgkmcnt({2*(NG-1-k)})"); acck(k, 0, mode != 2)
    waitfin(1, f"L_rpb_{tag}")
    rd_part()
    for k in range(NG): e(f"v_add_u32 v{V_RA+k}, 0x{dC:x}, v{V_RA+k}")
    for k in range(NG):
        e(f"s_waitcnt lgkmcnt({2*(NG-1-k)})"); acck(k, 1, False)
    if a.estamps: e("s_memrealtime s[92:93]")
    waitfin(2, f"L_rpc_{tag}")
    rd_part()
    for k in range(NG):
        e(f"s_waitcnt lgkmcnt({2*(NG-1-k)})")
        acck(k, 2, False)
        if mode == 1:
            for hh in range(2):
                e(f"buffer_store_dwordx4 {vr(V_ACC+k*8+hh*4,4)}, v{V_OV}, {sr(S_WSRD,4)}, s{S_P0} offen offset:{(k&1)*2048+hh*1024} {a.hpol}")
            if k & 1: e(f"s_add_u32 s{S_P0}, s{S_P0}, 4096")
        else:
            for x in range(4):
                e(f"v_cvt_pk_bf16_f32 v{V_ST + k*4 + x}, v{V_ACC + k*8 + 2*x}, v{V_ACC + k*8 + 2*x + 1}")
            so = S_OA if k < 4 else S_OB
            e(f"buffer_store_dwordx4 {vr(V_ST + k*4, 4)}, v{V_OV}, {sr(S_XSRD,4)}, s{so} offen offset:{(k&3)*1024} {a.stpol}")
    if mode == 1:
        for k in range(NG): e(f"v_add_u32 v{V_RA+k}, 0x{dR:x}, v{V_RA+k}")
        e("s_branch L_jobend")
    else:
        if a.estamps: e("s_memrealtime s[94:95]")
        e("s_branch L_out")

def build(a):
    g = Gen(a); e = g.e
    stamps, spin = a.stamps, a.spin
    pol = (" " + a.nt) if a.nt else ""
    c = (128 ** -0.5) * math.log2(math.e)
    R = -1e9 * math.sqrt(128.0)
    hdr = open("standalone__paged_block_table_kv_pagedattention__sampling.s.ref").read().split("\n")
    head = [l for l in hdr if l.startswith(";") and "@launch" not in l and "Override launch" not in l and "grid=ceil" not in l]
    out = head + [f"; @launch grid=(256,1,1) block=(256,1,1) lds={LDS_TOTAL if a.split else LDS_NOSPLIT}",
        '.amdgcn_target "amdgcn-amd-amdhsa--gfx950"', ".text", f".globl {NAME}", ".p2align 8",
        f".type {NAME},@function", f"{NAME}:"]
    e("s_cmp_ge_u32 s2, 256")
    e("s_cbranch_scc1 L_end")
    e("s_load_dwordx16 s[16:31], s[0:1], 0")
    if spin or stamps: e("s_memrealtime s[88:89]")
    e("v_lshrrev_b32 v2, 6, v0")
    e(f"v_and_b32 v{V_LANE}, 63, v0")
    e(f"v_readfirstlane_b32 s{S_W}, v2")
    e("s_lshr_b32 s3, s2, 3")
    if a.hmap == 1: e(f"s_add_u32 s{S_T0}, s2, s3")
    elif a.hmap == 2: e(f"s_lshl1_add_u32 s{S_T0}, s3, s2")
    elif a.hmap == 3:
        e(f"s_lshl1_add_u32 s{S_T0}, s3, s2"); e(f"s_add_u32 s{S_T0}, s{S_T0}, 1")
    elif a.hmap >= 4:
        e(f"s_and_b32 s{S_T0}, s2, 7"); e(f"s_lshl_b32 s{S_T0}, s{S_T0}, 2")
        e(f"s_lshr_b32 s{S_T0}, 0x{a.hperm}, s{S_T0}")
    e(f"s_and_b32 s{S_T0}, s{S_T0}, 7")
    e(f"s_lshl3_add_u32 s{S_QO0}, s3, s{S_T0}")
    e(f"s_lshl_b32 s{S_QO0}, s{S_QO0}, 14")
    e(f"v_lshrrev_b32 v46, 4, v{V_LANE}")
    e(f"v_and_b32 v47, 15, v{V_LANE}")
    e(f"s_cmp_lg_u32 s{S_W}, 0")
    e("s_cbranch_scc1 L_consumer")
    e(f"v_lshlrev_b32 v6, 3, v{V_LANE}")
    e(f"s_lshl_b32 s{S_P0}, s3, 9")
    e(f"s_lshl_b32 s{S_P1}, s3, 2")
    e(f"s_movk_i32 s{S_BSRD+2}, 0x4000"); e(f"s_mov_b32 s{S_BSRD+3}, 0x20000")
    e(f"s_mov_b32 s{S_XSRD+2}, {Q_BYTES}"); e(f"s_mov_b32 s{S_XSRD+3}, 0x20000")
    e(f"s_mov_b32 s{S_KSRD+2}, {KV_BYTES}"); e(f"s_mov_b32 s{S_KSRD+3}, 0x20000")
    e("v_xor_b32 v52, v47, v46")
    for k in range(4):
        if k: e(f"v_xor_b32 v53, {4*k}, v52")
        e(f"v_lshlrev_b32 v{48+k}, 4, v{53 if k else 52}")
        e(f"v_lshl_add_u32 v{V_DQ+k}, v46, 8, v{48+k}")
    e("s_waitcnt lgkmcnt(0)")
    stamp(g, 1)
    e(f"s_mov_b32 s{S_BSRD}, s22"); e(f"s_mov_b32 s{S_BSRD+1}, s23")
    e(f"s_load_dword s{S_CL}, s[24:25], s{S_P1}")
    e(f"buffer_load_dwordx2 {vr(V_BT,2)}, v6, {sr(S_BSRD,4)}, s{S_P0} offen")
    e(f"s_mov_b32 s{S_XSRD}, s16"); e(f"s_mov_b32 s{S_XSRD+1}, s17")
    for gq in range(4):
        e(f"s_mov_b32 m0, {LDS_Q + gq*4096}")
        e(f"s_add_u32 s{S_T1}, s{S_QO0}, {gq*4096}")
        for k in range(4):
            e(f"buffer_load_dwordx4 v{V_DQ+k}, {sr(S_XSRD,4)}, s{S_T1} offen offset:{k*1024}{pol} lds")
    e(f"s_mov_b32 s{S_KSRD}, s18"); e(f"s_mov_b32 s{S_KSRD+1}, s19")
    e(f"s_lshl_b32 s{S_T2}, s{S_T0}, 8")
    e(f"v_lshlrev_b32 v54, 11, v46")
    e(f"v_add_u32 v54, s{S_T2}, v54")
    e(f"v_add_u32 v{V_DK}, v54, v48")
    for k in range(1, 4):
        e(f"v_add_u32 v53, {k*7168}, v54")
        e(f"v_add_u32 v{V_DK+k}, v53, v{48+k}")
    e(f"v_lshlrev_b32 v5, 1, v{V_LANE}")
    e("v_add_u32 v7, 1, v5")
    e(f"v_mov_b32 v61, {KV_BYTES}")
    e(f"s_mov_b32 s{S_TB}, 0")
    e("s_waitcnt lgkmcnt(0)")
    e(f"s_max_i32 s{S_CL}, s{S_CL}, 0")
    e(f"s_min_i32 s{S_CL}, s{S_CL}, 2048")
    job_common(g, True)
    e(f"s_add_u32 s{S_NP}, s{S_CLE}, 15")
    e(f"s_lshr_b32 s{S_NP}, s{S_NP}, 4")
    if a.noload: e(f"s_mov_b32 s{S_NP}, 0")
    e(f"v_cmp_gt_u32 vcc, s{S_NP}, v5")
    e(f"v_cmp_gt_u32 s[32:33], s{S_NP}, v7")
    e("s_waitcnt vmcnt(16)")
    stamp(g, 2)
    e(f"v_lshlrev_b32 v{V_BT}, 15, v{V_BT}")
    e(f"v_lshlrev_b32 v{V_BT+1}, 15, v{V_BT+1}")
    e(f"v_cndmask_b32 v{V_BT}, v61, v{V_BT}, vcc")
    e(f"v_cndmask_b32 v{V_BT+1}, v61, v{V_BT+1}, s[32:33]")
    def advance(si, sc, sn, sb, extra):
        e(f"s_add_u32 s{si}, s{si}, 1")
        e(f"s_add_u32 s{sc}, s{sc}, 1")
        e(f"s_add_u32 s{sb}, s{sb}, 32768")
        e(f"s_add_u32 s{S_T1}, s{sn}, 2")
        e(f"s_lshl_b32 s{S_T2}, s{S_T1}, 13")
        e(f"s_and_b32 s{S_T2}, s{S_T2}, 16384")
        if extra: e(f"s_add_u32 s{S_T2}, s{S_T2}, {extra}")
        e(f"s_cmp_eq_u32 s{sc}, 3")
        e(f"s_cselect_b32 s{sc}, 0, s{sc}")
        e(f"s_cselect_b32 s{sn}, s{S_T1}, s{sn}")
        e(f"s_cselect_b32 s{sb}, s{S_T2}, s{sb}")
    def opening(tag):
        e(f"s_lshl_b32 s{S_LB}, s{S_SH}, 15")
        e(f"s_mov_b32 s{S_J}, s{S_TB}"); e(f"s_mov_b32 s{S_CI}, s{S_SH}"); e(f"s_mov_b32 s{S_NK}, 0")
        e(f"s_min_u32 s{S_NP}, s{S_NT}, {a.burst}")
        e(f"s_add_u32 s{S_T1}, s{S_NP}, 2")
        e(f"v_mov_b32 v{V_CNT}, s{S_T1}")
        e(f"s_add_u32 s{S_NP}, s{S_NP}, s{S_TB}")
        g.lab(f"L_burst{tag}")
        e(f"v_readlane_b32 s{S_P0}, v{V_BT}, s{S_J}")
        e(f"v_readlane_b32 s{S_P1}, v{V_BT+1}, s{S_J}")
        e("s_nop 2")
        for it in range(2):
            e(f"s_add_u32 m0, s{S_LB}, {it*4096}")
            e("s_nop 0")
            for i in range(4):
                e(f"buffer_load_dwordx4 v{V_DK+i}, {sr(S_KSRD,4)}, s{S_P0 if it == 0 else S_P1} offen offset:{i*1024}{pol} lds")
        advance(S_J, S_CI, S_N, S_LB, 0)
        e(f"s_cmp_lt_u32 s{S_J}, s{S_NP}")
        e(f"s_cbranch_scc1 L_burst{tag}")
        stamp(g, 3)
        e(f"s_mov_b32 s{S_I}, s{S_TB}"); e(f"s_mov_b32 s{S_CV}, s{S_SH}"); e(f"s_mov_b32 s{S_NV}, 0")
        e(f"s_lshl_b32 s{S_LBV}, s{S_SH}, 15")
        e(f"s_add_u32 s{S_LBV}, s{S_LBV}, 8192")
    opening("0")
    if a.split:
        e(f"s_and_b32 s{S_P1}, s3, 30")
        e(f"s_lshl_b32 s{S_P1}, s{S_P1}, 2")
        e(f"s_load_dwordx2 {sr(S_CL4,2)}, s[24:25], s{S_P1}")
    e(f"v_lshlrev_b32 v{V_FLAG}, 2, v{V_LANE}")
    e(f"v_add_u32 v{V_FLAG}, {LDS_FLAG}, v{V_FLAG}")
    e("v_mov_b32 v53, 0")
    for k in range(7): e(f"ds_write_b32 v{V_FLAG}, v53 offset:{256*k}")
    e(f"s_mov_b32 s{S_VSRD}, s20"); e(f"s_mov_b32 s{S_VSRD+1}, s21")
    e(f"s_mov_b32 s{S_VSRD+2}, {KV_BYTES}"); e(f"s_mov_b32 s{S_VSRD+3}, 0x20000")
    e("v_lshlrev_b32 v53, 2, v46")
    e("v_xor_b32 v53, v47, v53")
    e(f"v_lshl_add_u32 v{V_DV}, v53, 4, v54")
    for k in range(1, 4): e(f"v_add_u32 v{V_DV+k}, {k*7168}, v{V_DV}")
    e(f"v_min_u32 v{V_DONE}, 2, v{V_LANE}")
    e(f"v_lshlrev_b32 v{V_DONE}, 8, v{V_DONE}")
    e(f"v_add_u32 v{V_FP}, {LDS_FIN}, v{V_DONE}")
    e(f"v_add_u32 v{V_DONE}, {LDS_DONE}, v{V_DONE}")
    e(f"v_mov_b32 v{V_PT}, 0")
    if a.split: e(f"v_mov_b32 v{V_BT2}, 0")
    e("s_waitcnt lgkmcnt(0)")
    e("s_barrier")
    decide(g)
    if a.split:
        e(f"s_cmp_eq_u32 s{S_MODE}, 2")
        e(f"s_cselect_b32 s{S_TE}, s{S_CUT}, s{S_TE}")
        e(f"s_sub_u32 s{S_NT}, s{S_TE}, s{S_TB}")
    cA = (a.clast + 1) % 3
    e("v_lshrrev_b32 v48, 2, v47")
    e("v_and_b32 v49, 3, v47")
    e("v_lshl_add_u32 v48, v48, 3, v49")
    e("v_lshlrev_b32 v48, 10, v48")
    e("v_mov_b32 v51, v52")
    for k in range(6):
        cst = cA*32768 + ((k >> 2) & 1) * 256
        if k & 3: e(f"v_xor_b32 v50, {4*(k&3)}, v51")
        e(f"v_lshl_add_u32 v{V_RA+k}, v{50 if k & 3 else 51}, 4, v48")
        if cst: e(f"v_add_u32 v{V_RA+k}, {cst}, v{V_RA+k}")
    e(f"v_lshlrev_b32 v{V_SA}, 3, v46")
    e(f"v_add_u32 v{V_SA}, {LDS_STAT}, v{V_SA}")
    e(f"v_lshlrev_b32 v{V_OV}, 4, v{V_LANE}")
    e(f"s_mov_b32 s{S_G0}, 0")
    e(f"s_mov_b32 s{S_OA}, s{S_QO0}")
    e(f"s_add_u32 s{S_OB}, s{S_QO0}, 4096")
    if a.split:
        e(f"s_cmp_eq_u32 s{S_MODE}, 1")
        e("s_cbranch_scc1 L_lhelp")
        h = ["L_lhelp:",
             f"    s_lshr_b32 s{S_T1}, s{S_QOV}, 17", f"    s_lshl_b32 s{S_T1}, s{S_T1}, 11",
             ]
        h = ["L_lhelp:", "    s_waitcnt vmcnt(24)",
             f"    s_lshr_b32 s{S_T1}, s{S_QOV}, 17", f"    s_lshl_b32 s{S_T1}, s{S_T1}, 9",
             f"    v_add_u32 v48, s{S_T1}, v6",
             f"    global_load_dwordx2 v[50:51], v48, s[22:23]"]
        for gq in range(4):
            h.append(f"    s_mov_b32 m0, {LDS_Q2 + gq*4096}")
            h.append(f"    s_add_u32 s{S_T1}, s{S_QOV}, {gq*4096}")
            for k in range(4):
                h.append(f"    buffer_load_dwordx4 v{V_DQ+k}, {sr(S_XSRD,4)}, s{S_T1} offen offset:{k*1024}{pol} lds")
        h += [f"    s_mov_b32 s{S_XSRD}, s26", f"    s_mov_b32 s{S_XSRD+1}, s27",
              f"    s_add_u32 s{S_NP}, s{S_CLV}, 15", f"    s_lshr_b32 s{S_NP}, s{S_NP}, 4",
              f"    v_cmp_gt_u32 vcc, s{S_NP}, v5", f"    v_cmp_gt_u32 s[32:33], s{S_NP}, v7",
              f"    v_mov_b32 v{V_BT2}, v{V_BT}", f"    v_mov_b32 v{V_BT2+1}, v{V_BT+1}"]
        for k in range(8): h.append(f"    v_add_u32 v{V_DK+k}, s{S_HD}, v{V_DK+k}")
        sub = Gen(a); job_common(sub); h += sub.o
        h += ["    s_waitcnt vmcnt(16)",
              "    v_lshlrev_b32 v50, 15, v50", "    v_lshlrev_b32 v51, 15, v51",
              f"    v_cndmask_b32 v{V_BT}, v61, v50, vcc", f"    v_cndmask_b32 v{V_BT+1}, v61, v51, s[32:33]",
              "    s_branch L_ljob"]
        g.ool += h
    e(f"s_mov_b32 s{S_XSRD}, s26"); e(f"s_mov_b32 s{S_XSRD+1}, s27")
    g.lab("L_lgo")
    e(f"s_min_u32 s{S_NP}, s{S_NT}, {LEAD}")
    e(f"s_add_u32 s{S_NP}, s{S_NP}, s{S_TB}")
    for (clmin, L) in reversed(a.table[1:]):
        e(f"s_cmp_ge_u32 s{S_KEY}, {clmin}")
        e(f"s_cbranch_scc1 L_var_{L}")
    def group(lims, srd, vb, sbase, sp0, sp1):
        if isinstance(lims, int): lims = [lims] * 8
        hs = [(p - lims[p] + 1) // 8 for p in range(8)]
        best = max(hs); p1 = hs.index(best); lag = -best
        for q in range(8):
            it = q >> 2; i = q & 3
            if i == 0: e(f"s_add_u32 m0, s{sbase}, {it*4096}")
            e(f"s_waitcnt vmcnt({lims[q]-1})")
            e(f"buffer_load_dwordx4 v{vb+i}, {sr(srd,4)}, s{sp0 if it == 0 else sp1} offen offset:{i*1024}{pol} lds")
            if q == p1:
                if lag:
                    e(f"v_subrev_u32 v27, {lag}, v{V_CNT}")
                    e(f"ds_write_b32 v{V_FLAG}, v27")
                else:
                    e(f"ds_write_b32 v{V_FLAG}, v{V_CNT}")
        e(f"v_add_u32 v{V_CNT}, 1, v{V_CNT}")
    for (clmin, L2) in a.table:
        base = L2 // 4; up = (L2 % 4) * 4
        lim16 = [base + 1] * up + [base] * (16 - up)
        LK = lim16[:8]; LV = lim16[8:]
        LT = min(a.tmax, max(base, int(round(L2 / 4.0 * a.tf))))
        L = L2
        g.lab(f"L_var_{L}")
        e(f"s_cmp_ge_u32 s{S_J}, s{S_NP}")
        e(f"s_cbranch_scc1 L_lp_{L}")
        g.lab(f"L_pk_{L}")
        e(f"v_readlane_b32 s{S_P0}, v{V_BT}, s{S_J}")
        e(f"v_readlane_b32 s{S_P1}, v{V_BT+1}, s{S_J}")
        e("s_nop 2")
        group(LK, S_KSRD, V_DK, S_LB, S_P0, S_P1)
        advance(S_J, S_CI, S_N, S_LB, 0)
        e(f"s_cmp_lt_u32 s{S_J}, s{S_NP}")
        e(f"s_cbranch_scc1 L_pk_{L}")
        g.lab(f"L_lp_{L}")
        e(f"s_cmp_ge_u32 s{S_J}, s{S_TE}")
        e(f"s_cbranch_scc1 L_tl_{L}")
        g.lab(f"L_lp2_{L}")
        e(f"v_readlane_b32 s{S_P2}, v{V_BT}, s{S_I}")
        e(f"v_readlane_b32 s{S_P3}, v{V_BT+1}, s{S_I}")
        e(f"v_readlane_b32 s{S_P0}, v{V_BT}, s{S_J}")
        e(f"v_readlane_b32 s{S_P1}, v{V_BT+1}, s{S_J}")
        g.lab(f"L_chk_{L}")
        e("s_waitcnt lgkmcnt(0)")
        e(f"v_readlane_b32 s{S_T1}, v{V_PT}, s{S_CI}")
        e(f"v_readlane_b32 s{S_T2}, v{V_PT}, s{S_CV}")
        e(f"ds_read_b32 v{V_PT}, v{V_DONE}")
        e(f"s_cmp_lt_u32 s{S_NV}, 4")
        e(f"s_cselect_b32 s{S_T2}, s{S_NV}, s{S_T2}")
        e(f"s_cmp_lt_u32 s{S_T2}, s{S_NV}")
        e(f"s_cbranch_scc1 L_chk_{L}")
        e(f"s_add_u32 s{S_T1}, s{S_T1}, 3")
        e(f"s_cmp_lt_u32 s{S_T1}, s{S_N}")
        e(f"s_cbranch_scc1 L_chk_{L}")
        group(LK, S_KSRD, V_DK, S_LB, S_P0, S_P1)
        advance(S_J, S_CI, S_N, S_LB, 0)
        group(LV, S_VSRD, V_DV, S_LBV, S_P2, S_P3)
        advance(S_I, S_CV, S_NV, S_LBV, 8192)
        e(f"s_cmp_lt_u32 s{S_J}, s{S_TE}")
        e(f"s_cbranch_scc1 L_lp2_{L}")
        g.lab(f"L_tl_{L}")
        e(f"v_readlane_b32 s{S_P2}, v{V_BT}, s{S_I}")
        e(f"v_readlane_b32 s{S_P3}, v{V_BT+1}, s{S_I}")
        g.lab(f"L_chv_{L}")
        e("s_waitcnt lgkmcnt(0)")
        e(f"v_readlane_b32 s{S_T2}, v{V_PT}, s{S_CV}")
        e(f"ds_read_b32 v{V_PT}, v{V_DONE}")
        e(f"s_cmp_lt_u32 s{S_NV}, 4")
        e(f"s_cselect_b32 s{S_T2}, s{S_NV}, s{S_T2}")
        e(f"s_cmp_lt_u32 s{S_T2}, s{S_NV}")
        e(f"s_cbranch_scc1 L_chv_{L}")
        group(LT, S_VSRD, V_DV, S_LBV, S_P2, S_P3)
        advance(S_I, S_CV, S_NV, S_LBV, 8192)
        e(f"s_cmp_lt_u32 s{S_I}, s{S_TE}")
        e(f"s_cbranch_scc1 L_tl_{L}")
        lag = (LT - 1) // 8
        for k in range(lag, -1, -1):
            e(f"s_waitcnt vmcnt({8*k})")
            if k:
                e(f"v_subrev_u32 v27, {k}, v{V_CNT}")
                e(f"ds_write_b32 v{V_FLAG}, v27")
            else:
                e(f"ds_write_b32 v{V_FLAG}, v{V_CNT}")
        e("s_branch L_ldone")
    g.lab("L_ldone")
    stamp(g, 4)
    e("s_branch L_red_a")
    if a.split:
        g.lab("L_ljob")
        opening("1")
        e("s_branch L_lgo")
    g.lab("L_consumer")
    if a.wstat:
        e("s_mov_b32 s10, 0"); e("s_mov_b32 s11, 0")
    e("s_barrier")
    if a.split:
        e(f"s_and_b32 s{S_P1}, s3, 30")
        e(f"s_lshl_b32 s{S_P1}, s{S_P1}, 2")
    else:
        e(f"s_lshl_b32 s{S_P1}, s3, 2")
    e(f"v_lshlrev_b32 v{V_FLAG}, 2, v{V_LANE}")
    e(f"v_add_u32 v{V_FLAG}, {LDS_FLAG}, v{V_FLAG}")
    e(f"s_sub_u32 s{S_CI}, s{S_W}, 1")
    e(f"s_lshl_b32 s{S_LB}, s{S_CI}, 15")
    e(f"v_lshrrev_b32 v3, 5, v{V_LANE}")
    e(f"v_and_b32 v4, 31, v{V_LANE}")
    e(f"s_add_u32 s{S_ROLE}, s{S_CI}, {2 - a.clast}")
    if a.clast != 2:
        e(f"s_cmp_ge_u32 s{S_ROLE}, 3")
        e(f"s_cselect_b32 s{S_T1}, 3, 0")
        e(f"s_sub_u32 s{S_ROLE}, s{S_ROLE}, s{S_T1}")
    e(f"s_lshl_b32 s{S_T1}, s{S_ROLE}, 8")
    e(f"s_add_u32 s{S_T1}, s{S_T1}, {LDS_FIN - LDS_FLAG}")
    e(f"v_add_u32 v{V_FIN}, s{S_T1}, v{V_FLAG}")
    e("v_lshrrev_b32 v48, 2, v47")
    e("v_lshl_add_u32 v49, v3, 2, v48")
    e("v_lshlrev_b32 v49, 8, v49")
    e("v_and_b32 v50, 1, v46")
    e("v_lshl_add_u32 v49, v50, 5, v49")
    e(f"v_and_b32 v50, 3, v{V_LANE}")
    e("v_lshl_add_u32 v49, v50, 3, v49")
    e(f"v_add_u32 v49, s{S_LB}, v49")
    e("v_add_u32 v49, 8192, v49")
    for db in range(4):
        e(f"v_xor_b32 v50, {db}, v48")
        e(f"v_lshl_add_u32 v{V_VA+db}, v50, 6, v49")
    e("s_waitcnt lgkmcnt(0)")
    if a.split: e(f"s_load_dwordx2 {sr(S_CL4,2)}, s[24:25], s{S_P1}")
    else: e(f"s_load_dword s{S_CL}, s[24:25], s{S_P1}")
    e(f"s_mov_b32 s{S_XSRD}, s26"); e(f"s_mov_b32 s{S_XSRD+1}, s27")
    e(f"s_mov_b32 s{S_XSRD+2}, {Q_BYTES}"); e(f"s_mov_b32 s{S_XSRD+3}, 0x20000")
    if a.split:
        e(f"s_mov_b32 s{S_KSRD}, s18"); e(f"s_mov_b32 s{S_KSRD+1}, s19")
        e(f"s_mov_b32 s{S_KSRD+2}, {KV_BYTES}"); e(f"s_mov_b32 s{S_KSRD+3}, 0x20000")
        e(f"s_mov_b32 s{S_VSRD}, s20"); e(f"s_mov_b32 s{S_VSRD+1}, s21")
        e(f"s_mov_b32 s{S_VSRD+2}, {KV_BYTES}"); e(f"s_mov_b32 s{S_VSRD+3}, 0x20000")
    e(f"s_cmp_eq_u32 s{S_ROLE}, 0")
    e(f"s_cselect_b32 s{S_T0}, 6, 12")
    reduce_setup(g, S_T0)
    e("v_and_b32 v48, 15, v4")
    e("v_xor_b32 v48, v48, v3")
    e("v_lshlrev_b32 v49, 8, v4")
    for st in range(8):
        e(f"v_xor_b32 v50, {2*st}, v48")
        e(f"v_lshl_add_u32 v50, v50, 4, v49")
        e(f"v_add_u32 v{V_KA+st}, s{S_LB}, v50")
    e(f"s_lshl_b32 s{S_T1}, s{S_W}, 8")
    e(f"v_add_u32 v{V_DONE}, s{S_T1}, v{V_FLAG}")
    e(f"v_mov_b32 v{V_R}, 0x{f32bits(R):08x}")
    e(f"s_mov_b32 s{S_C}, 0x{f32bits(c):08x}")
    e(f"s_mov_b32 s{S_C2}, s{S_C}"); e(f"s_mov_b32 s{S_C2+1}, s{S_C}")
    e("s_waitcnt lgkmcnt(0)")
    if a.split:
        decide(g)
        e(f"s_mov_b32 s{S_IMP}, 0")
    else:
        e(f"s_max_i32 s{S_CL}, s{S_CL}, 0")
        e(f"s_min_i32 s{S_CL}, s{S_CL}, 2048")
        e(f"s_mov_b32 s{S_TB}, 0")
        e(f"s_mov_b32 s{S_QSRC}, {LDS_Q}")
    if a.split:
        e(f"s_lshl_b32 s{S_T1}, s{S_SLOT}, 2")
        e(f"v_mov_b32 v62, s{S_T1}")
        e(f"s_lshl_b32 s{S_T1}, s{S_MODE}, 2")
        e(f"s_add_u32 s{S_T1}, s{S_T1}, s{S_ROLE}")
        e(f"s_cmp_eq_u32 s{S_T1}, 10")
        e(f"s_addc_u32 s{S_IMP}, 0, 0")
    g.lab("L_cjob")
    job_common(g)
    e(f"v_mov_b32 v{V_M}, 0x{f32bits(-3.0e38):08x}")
    e(f"v_mov_b32 v{V_L0}, 0"); e(f"v_mov_b32 v{V_L1}, 0")
    e(f"s_sub_u32 s{S_T1}, s{S_QSRC}, s{S_LB}")
    for st in range(8): e(f"v_add_u32 v{V_S+st}, s{S_T1}, v{V_KA+st}")
    for r in range(0, 128, 2):
        e(f"v_pk_mul_f32 {vr(V_O+r,2)}, {vr(V_L0,2)}, {vr(V_L0,2)}")
    e(f"s_add_u32 s{S_NVB}, s{S_NT}, 3")
    e(f"s_sub_u32 s{S_JM}, s{S_NT}, 1")
    e(f"s_sub_u32 s{S_T1}, s{S_TE}, 1")
    e(f"s_lshl_b32 s{S_T1}, s{S_T1}, 5")
    e(f"s_sub_i32 s{S_REM}, s{S_CL}, s{S_T1}")
    e(f"s_cmp_eq_u32 s{S_CL}, 0")
    e(f"s_cselect_b32 s{S_JM}, 0, s{S_JM}")
    e(f"v_lshrrev_b32 v48, 5, v{V_LANE}")
    e("v_lshlrev_b32 v48, 2, v48")
    e(f"v_sub_u32 v{V_REM}, s{S_REM}, v48")
    e(f"s_sub_u32 s{S_I}, s{S_CI}, s{S_SH}")
    e(f"s_cmp_lt_u32 s{S_CI}, s{S_SH}")
    e(f"s_cselect_b32 s{S_T1}, 3, 0")
    e(f"s_addc_u32 s{S_PAR}, 0, 0")
    e(f"s_add_u32 s{S_I}, s{S_I}, s{S_T1}")
    e(f"v_mov_b32 v{V_CNT}, s{S_PAR}")
    e(f"ds_write_b32 v{V_DONE}, v{V_CNT}")
    e(f"s_lshl_b32 s{S_T1}, s{S_PAR}, 1")
    e(f"s_add_u32 s{S_T1}, s{S_T1}, 1")
    e(f"v_mov_b32 v{V_CNT}, s{S_T1}")
    e(f"s_cmp_ge_u32 s{S_I}, s{S_NT}")
    e("s_cbranch_scc1 L_notiles")
    e(f"s_mov_b32 s{S_H}, 0")
    e(f"s_mov_b32 s{S_NEED}, 2")
    poll(g, "q")
    for qh in range(2):
        for st in range(8):
            e(f"ds_read_b128 {ar(A_Q+(qh*8+st)*4,4)}, v{V_S+st} offset:{qh*8192}")
        if qh == 0: e("s_waitcnt lgkmcnt(4)")
    need_k_first(g)
    e("s_waitcnt lgkmcnt(0)")
    poll(g, "k0")
    e(f"s_cmp_eq_u32 s{S_PAR}, 1")
    e("s_cbranch_scc1 L_start_b")
    first_tile(g, 0, "fa")
    g.lab("L_loop")
    iteration(g, 0, "a")
    g.lab("L_loop_b")
    iteration(g, 1, "b")
    e("s_branch L_loop")
    g.lab("L_start_b")
    first_tile(g, 1, "fb")
    e("s_branch L_loop_b")
    last_tile(g, 0, "a")
    last_tile(g, 1, "b")
    g.o += g.ool; g.ool = []
    g.lab("L_notiles")
    write_stats(g)
    ew_addrs(g)
    for idx in range(32): e(owrite(idx))
    g.lab("L_fin2")
    e(f"v_mov_b32 v{V_CNT}, 2")
    e("s_waitcnt lgkmcnt(0)")
    e(f"ds_write_b32 v{V_FIN}, v{V_CNT}")
    stamp(g, 4)
    e(f"s_cmp_eq_u32 s{S_ROLE}, 0")
    e("s_cbranch_scc1 L_red_a")
    e(f"s_cmp_eq_u32 s{S_ROLE}, 2")
    e("s_cbranch_scc1 L_red_c")
    if a.split:
        e(f"s_cmp_eq_u32 s{S_MODE}, 1")
        e("s_cbranch_scc1 L_reduce_b1")
        e(f"s_cmp_eq_u32 s{S_MODE}, 2")
        e("s_cbranch_scc1 L_reduce_b2")
    reduce_code(g, 4, "b", 0)
    g.lab("L_red_a")
    if a.split:
        e(f"s_cmp_eq_u32 s{S_MODE}, 1")
        e("s_cbranch_scc1 L_reduce_a1")
        e(f"s_cmp_eq_u32 s{S_MODE}, 2")
        e("s_cbranch_scc1 L_reduce_a2")
    reduce_code(g, 6, "a", 0)
    if a.split:
        for m in (1, 2):
            reduce_code(g, 4, "b", m)
            reduce_code(g, 6, "a", m)
    g.lab("L_red_c")
    if a.split:
        e(f"s_cmp_lg_u32 s{S_MODE}, 1")
        e("s_cbranch_scc1 L_out")
        g.lab("L_jobend")
        e("s_waitcnt vmcnt(0) lgkmcnt(0)")
        e("s_barrier")
        next_job(g)
        e(f"s_cmp_lg_u32 s{S_W}, 0")
        e("s_cbranch_scc1 L_cnext")
        e(f"s_lshl_b32 s{S_T1}, s{S_SLOT}, 2")
        e(f"v_mov_b32 v48, s{S_T1}")
        e("v_mov_b32 v49, 1")
        e("v_mov_b32 v50, 0")
        e("v_mov_b32 v51, 2")
        e("s_mov_b64 exec, 1")
        e("global_store_dword v48, v49, s[28:29] sc1")
        e("s_mov_b64 exec, -1")
        e(f"ds_write_b32 v{V_FLAG}, v51")
        for k in range(1, 7): e(f"ds_write_b32 v{V_FLAG}, v50 offset:{256*k}")
        e(f"v_mov_b32 v{V_BT}, v{V_BT2}"); e(f"v_mov_b32 v{V_BT+1}, v{V_BT2+1}")
        for k in range(8): e(f"v_subrev_u32 v{V_DK+k}, s{S_HD}, v{V_DK+k}")
        e(f"v_mov_b32 v{V_PT}, 0")
        job_common(g)
        e("s_waitcnt lgkmcnt(0)")
        e("s_barrier")
        e("s_branch L_ljob")
        g.lab("L_cnext")
        e("s_barrier")
        e("s_branch L_cjob")
    g.lab("L_out")
    if a.dbg:
        e(f"s_cmp_lg_u32 s{S_W}, 0"); e("s_cbranch_scc1 L_end")
        e("s_waitcnt vmcnt(0)")
        e("s_memrealtime s[98:99]")
        e("s_getreg_b32 s100, hwreg(HW_REG_XCC_ID)")
        e("s_waitcnt lgkmcnt(0)")
        e("s_mov_b64 exec, 1")
        for r in (90, 92, 94, 96, 98): e(f"s_sub_u32 s{r}, s{r}, s88")
        e("s_and_b32 s100, s100, 15")
        def put(idx, sreg):
            e(f"v_mov_b32 v4, s{sreg}"); e(f"global_store_dword v2, v4, s[28:29] offset:{4*idx}"); e("s_nop 1")
        e("v_mov_b32 v2, 0")
        e("s_cmp_eq_u32 s2, 88"); e("s_cbranch_scc0 L_d1")
        put(8, 90); put(9, 92); put(10, 94); put(11, 100)
        g.lab("L_d1")
        e("s_cmp_eq_u32 s2, 200"); e("s_cbranch_scc0 L_d2")
        put(12, 96); put(13, 94)
        g.lab("L_d2")
        e("s_cmp_eq_u32 s2, 130"); e("s_cbranch_scc0 L_d3")
        put(14, 96); put(15, 98)
        g.lab("L_d3")
        e("s_lshr_b32 s101, s2, 3"); e("s_cmp_eq_u32 s101, 11"); e("s_cbranch_scc0 L_end")
        e("s_and_b32 s101, s2, 7"); e("s_lshl_b32 s101, s101, 2"); e("v_mov_b32 v2, s101")
        put(0, 98)
    elif stamps:
        e("s_waitcnt vmcnt(0)")
        e("s_memrealtime s[98:99]")
        if a.wstat:
            e("s_mov_b32 s90, s10"); e("s_mov_b32 s91, 0"); e("s_mov_b32 s92, s11"); e("s_mov_b32 s93, 0")
        e("s_getreg_b32 s100, hwreg(HW_REG_XCC_ID)")
        e("s_getreg_b32 s101, hwreg(HW_REG_HW_ID)")
        e("s_lshl_b32 s3, s2, 2")
        e(f"s_add_u32 s3, s3, s{S_W}")
        e("s_lshl_b32 s3, s3, 6")
        e("v_mov_b32 v2, s3")
        e("s_waitcnt lgkmcnt(0)")
        for k in range(6):
            e(f"v_mov_b32 v4, s{88+2*k}")
            e(f"v_mov_b32 v5, s{89+2*k}")
            e(f"global_store_dwordx2 v2, v[4:5], s[30:31] offset:{8*k}")
            e("s_nop 1")
        e("v_mov_b32 v4, 0"); e("v_mov_b32 v5, 0")
        e("global_store_dwordx2 v2, v[4:5], s[30:31] offset:48")
        e("s_nop 1")
        e("v_mov_b32 v4, s100"); e("v_mov_b32 v5, s101")
        e("global_store_dwordx2 v2, v[4:5], s[30:31] offset:56")
    if spin:
        e(f"s_add_u32 s88, s88, {spin*100}")
        e("s_addc_u32 s89, s89, 0")
        g.lab("L_spin")
        e("s_memrealtime s[90:91]")
        e("s_waitcnt lgkmcnt(0)")
        e("s_sub_u32 s92, s90, s88")
        e("s_subb_u32 s93, s91, s89")
        e("s_cmp_lt_i32 s93, 0")
        e("s_cbranch_scc1 L_spin")
    g.lab("L_end")
    e("s_endpgm")
    out += g.o
    out += ['.section .rodata,"a"', ".p2align 6", f".amdhsa_kernel {NAME}",
        "  .amdhsa_next_free_vgpr 384", "  .amdhsa_next_free_sgpr 102", "  .amdhsa_accum_offset 256",
        "  .amdhsa_group_segment_fixed_size 0", "  .amdhsa_kernarg_size 64", "  .amdhsa_user_sgpr_count 2",
        "  .amdhsa_user_sgpr_kernarg_segment_ptr 1", "  .amdhsa_system_sgpr_workgroup_id_x 1",
        ".end_amdhsa_kernel", ""]
    return "\n".join(out)

def parse():
    ap = argparse.ArgumentParser()
    ap.add_argument("-L", type=int, default=20)
    ap.add_argument("--lin", default="")
    ap.add_argument("--nt", default="nt")
    ap.add_argument("--bonus", type=int, default=0)
    ap.add_argument("--clast", type=int, default=2)
    ap.add_argument("--lead", type=int, default=5)
    ap.add_argument("--tab", default="")
    ap.add_argument("--res", type=int, default=2)
    ap.add_argument("--tf", type=float, default=1.0)
    ap.add_argument("--tmax", type=int, default=32)
    ap.add_argument("--dry", type=int, default=0)
    ap.add_argument("--pf", type=int, default=2)
    ap.add_argument("--theta", type=int, default=1850)
    ap.add_argument("--ahead", type=int, default=10)
    ap.add_argument("--pstep", type=int, default=3)
    ap.add_argument("--pfirst", type=int, default=10)
    ap.add_argument("--lv", type=int, default=40)
    ap.add_argument("--split", type=int, default=0)
    ap.add_argument("--t0", type=int, default=56)
    ap.add_argument("--thetal", type=int, default=1800)
    ap.add_argument("--hs", type=int, default=280)
    ap.add_argument("--impat", type=int, default=18)
    ap.add_argument("--burst", type=int, default=4)
    ap.add_argument("--hmap", type=int, default=2)
    ap.add_argument("--dbg", action="store_true")
    ap.add_argument("--hperm", default="76345210")
    ap.add_argument("--fine", type=float, default=19)
    ap.add_argument("--hpol", default="sc1")
    ap.add_argument("--cheat", type=int, default=0)
    ap.add_argument("--sigma", type=int, default=1700)
    ap.add_argument("--hb", type=int, default=150)
    ap.add_argument("--spin", type=int, default=0)
    ap.add_argument("--stamps", action="store_true")
    ap.add_argument("--estamps", action="store_true")
    ap.add_argument("--noload", action="store_true")
    ap.add_argument("--wstat", action="store_true")
    ap.add_argument("--stpol", default="")
    ap.add_argument("-o", default="standalone__paged_block_table_kv_pagedattention__sampling.s")
    a = ap.parse_args()
    if a.tab:
        a.table = [tuple(int(y) for y in x.split(":")) for x in a.tab.split(",")]
        a.table[0] = (0, a.table[0][1])
    elif a.lin:
        pts = [float(x) for x in a.lin.split(",")]
        tab = []
        for cl in range(1024, 2049):
            u = (cl - 1024) / 1024.0 * (len(pts) - 1)
            k = min(int(u), len(pts) - 2)
            Lf = pts[k] + (pts[k+1] - pts[k]) * (u - k)
            res = 4 if Lf < a.fine else a.res
            L = int(round(res * Lf)) * (4 // res)
            L = max(8, min(160, L))
            if not tab or tab[-1][1] < L: tab.append((cl, L))
        tab[0] = (0, tab[0][1])
        a.table = tab
    else:
        a.table = [(0, 4 * a.L)]
    a.table.append((4096, 4 * a.lv))
    assert not a.split or a.theta > 32 * (a.t0 + 2)
    return a

if __name__ == "__main__":
    a = parse()
    LEAD = a.lead
    open(a.o, "w").write(build(a))
```

```python
import sys, struct, math, argparse

NAME = "standalone__paged_block_table_kv_pagedattention__sampling_kernel"
KV_BYTES = 4100 * 32768
Q_BYTES = 32 * 32 * 16 * 128 * 2
LEAD = 6

def f32bits(x): return struct.unpack("<I", struct.pack("<f", x))[0]

class Gen:
    def __init__(self, a): self.o = []; self.a = a; self.ool = []
    def e(self, s): self.o.append("    " + s)
    def lab(self, s): self.o.append(s + ":")
    def c(self, s): self.o.append("    ; " + s)

LDS_Q = 98304
LDS_FLAG = 114688
LDS_DONE = LDS_FLAG + 256
LDS_FIN = LDS_FLAG + 1024
LDS_STAT = LDS_FLAG + 2048
LDS_Q2 = LDS_STAT + 2048
LDS_TOTAL = LDS_Q2 + 16384
LDS_NOSPLIT = LDS_Q2

S_KSRD = 4; S_VSRD = 8; S_XSRD = 12; S_BSRD = 76
S_C2 = 38; S_PAR = 47
S_CL4 = 40; S_KEY4 = 44; S_WSRD = 48
S_MODE, S_TB, S_CLO, S_HD, S_SLOT, S_QOV, S_SH, S_NVB, S_KEY, S_QSRC, S_IMP, S_CLV = 52, 53, 54, 55, 56, 57, 58, 59, 60, 61, 62, 63
S_TE = 77; S_G0 = 76; S_CUT = 46
V_BT2 = 62; V_REM = 28
S_P2, S_P3, S_J, S_LBV, S_CV, S_NV = 34, 35, 36, 37, 38, 39
S_CL, S_CLE, S_W, S_NT, S_NP, S_JM, S_REM, S_H = 64, 65, 66, 67, 68, 69, 70, 71
S_NEED, S_C, S_LB, S_I = 72, 73, 74, 75
S_DB, S_DC, S_OA, S_OB = 76, 77, 78, 79
S_P0, S_P1, S_T0, S_T1, S_T2 = 80, 81, 82, 83, 84
S_QO0, S_ROLE, S_CI, S_N = 85, 86, 87, 70
S_NK = S_N; S_FIRST = 71
V_LANE = 1
V_KA = 8; V_VA = 16
V_DK = 8; V_DV = 12; V_DQ = 16; V_BT = 20
V_FLAG = 22; V_CNT = 23; V_DONE = 24; V_PT = 25; V_FIN = 26
V_R = 27; V_M = 29; V_L0, V_L1 = 30, 31
V_T0, V_T1 = 32, 33
V_MA, V_MB = 34, 36
V_AL = [(38, 40), (42, 44)]
V_RA = 52; V_SA = 58; V_FP = 59; V_OV = 60
V_PP = [64, 80]; V_S = 96; V_O = 128
V_EW = 96
A_Q = 0; A_K = 64; A_V = 96

def vr(b, n): return f"v[{b}:{b+n-1}]"
def ar(b, n): return f"a[{b}:{b+n-1}]"
def sr(b, n): return f"s[{b}:{b+n-1}]"

def poll(g, tag, pre=False):
    if pre:
        g.e("s_waitcnt lgkmcnt(0)")
        g.e(f"v_readfirstlane_b32 s{S_H}, v{V_PT}")
    g.e(f"s_cmp_ge_i32 s{S_H}, s{S_NEED}")
    g.e(f"s_cbranch_scc0 L_poll_{tag}")
    g.lab(f"L_ok_{tag}")
    if g.a.wstat:
        acc = 10 if tag[0] == "k" else 11
        g.ool += [f"L_poll_{tag}:", "    s_memtime s[8:9]", f"L_poll2_{tag}:",
            f"    ds_read_b32 v{V_PT}, v{V_FLAG}", "    s_waitcnt lgkmcnt(0)",
            f"    v_readfirstlane_b32 s{S_H}, v{V_PT}", f"    s_cmp_ge_i32 s{S_H}, s{S_NEED}",
            f"    s_cbranch_scc0 L_poll2_{tag}", "    s_memtime s[100:101]", "    s_waitcnt lgkmcnt(0)",
            "    s_sub_u32 s100, s100, s8", f"    s_add_u32 s{acc}, s{acc}, s100", f"    s_branch L_ok_{tag}"]
        return
    g.ool += [f"L_poll_{tag}:",
        f"    ds_read_b32 v{V_PT}, v{V_FLAG}",
        "    s_waitcnt lgkmcnt(0)",
        f"    v_readfirstlane_b32 s{S_H}, v{V_PT}",
        f"    s_cmp_ge_i32 s{S_H}, s{S_NEED}",
        f"    s_cbranch_scc1 L_ok_{tag}",
        f"    s_branch L_poll_{tag}"]

def need_k_first(g):
    g.e(f"s_lshl_b32 s{S_NEED}, s{S_I}, 1")
    g.e(f"s_add_i32 s{S_NEED}, s{S_NEED}, {3 - LEAD}")
    g.e(f"s_add_u32 s{S_T1}, s{S_I}, 3")
    g.e(f"s_max_i32 s{S_NEED}, s{S_NEED}, s{S_T1}")
def need_k_next():
    return [f"s_lshl_b32 s{S_NEED}, s{S_I}, 1", f"s_add_i32 s{S_NEED}, s{S_NEED}, {9 - LEAD}",
            f"s_add_u32 s{S_T1}, s{S_I}, 6", f"s_max_i32 s{S_NEED}, s{S_NEED}, s{S_T1}"]
def need_v():
    return [f"s_lshl_b32 s{S_NEED}, s{S_I}, 1", f"s_add_u32 s{S_NEED}, s{S_NEED}, {4 + LEAD}",
            f"s_add_u32 s{S_T1}, s{S_I}, s{S_NVB}", f"s_min_i32 s{S_NEED}, s{S_NEED}, s{S_T1}"]

def k_reads(e): return [f"ds_read_b128 {ar(A_K+4*st,4)}, v{V_KA+st} offset:{e*16384}" for st in range(8)]
def v_reads(e):
    return [f"ds_read_b64_tr_b16 {ar(A_V+(db*2+ts)*4+2*u,2)}, v{V_VA+db} offset:{e*16384+ts*4096+u*2048}"
            for db in range(4) for ts in range(2) for u in range(2)]
def qk(st, qh):
    cc = "0" if st == 0 else vr(V_S+16*qh, 16)
    return f"v_mfma_f32_32x32x16_bf16 {vr(V_S+16*qh,16)}, {ar(A_K+4*st,4)}, {ar(A_Q+(qh*8+st)*4,4)}, {cc}"
def pv(e, db, ts, qh):
    o = vr(V_O + (db*2+qh)*16, 16)
    return f"v_mfma_f32_32x32x16_bf16 {o}, {ar(A_V+(db*2+ts)*4,4)}, {vr(V_PP[e]+(qh*2+ts)*4,4)}, {o}"
def owrite(idx):
    db = idx >> 3; jj = idx & 3
    return f"ds_write_b128 v{V_EW + 4*db + jj}, {vr(V_O+4*idx,4)} offset:{idx*1024}"
def resc(e, db, pk=False):
    out = []
    for qh in range(2):
        al = V_AL[e][qh]
        if pk:
            for k in range(0, 16, 2):
                r = V_O + (db*2+qh)*16 + k
                out.append(f"v_pk_mul_f32 {vr(r,2)}, {vr(r,2)}, {vr(al,2)} op_sel_hi:[1,0]")
        else:
            for k in range(16):
                r = V_O + (db*2+qh)*16 + k
                out.append(f"v_mul_f32 v{r}, v{r}, v{al}")
    return out
def lsum(e):
    s0, s1 = V_S, V_S + 16
    aa, ab = V_AL[e]
    o = [f"v_pk_add_f32 v[48:49], {vr(s0,2)}, {vr(s0+2,2)}", f"v_pk_add_f32 v[50:51], {vr(s1,2)}, {vr(s1+2,2)}"]
    for k in range(4, 16, 2):
        o.append(f"v_pk_add_f32 v[48:49], v[48:49], {vr(s0+k,2)}")
        o.append(f"v_pk_add_f32 v[50:51], v[50:51], {vr(s1+k,2)}")
    o += [f"v_fma_f32 v{V_L0}, v{V_L0}, v{aa}, v48", f"v_fma_f32 v{V_L1}, v{V_L1}, v{ab}, v50",
          f"v_add_f32 v{V_L0}, v{V_L0}, v49", f"v_add_f32 v{V_L1}, v{V_L1}, v51"]
    return o
def ew_addrs(g):
    for f in range(16):
        g.e(f"v_xor_b32 v48, {f}, v{V_LANE}")
        g.e(f"v_lshl_add_u32 v{V_EW+f}, v48, 4, s{S_LB}")

def qk_phase(g, fill):
    mf = [qk(st, qh) for st in range(8) for qh in range(2)]
    n = len(mf); k = 0
    for i, m in enumerate(mf):
        st = i >> 1
        if (i & 1) == 0:
            if st < 4: g.e(f"s_waitcnt lgkmcnt({7-st})")
            elif st == 4:
                g.e("s_waitcnt lgkmcnt(0)")
                g.e(f"ds_write_b32 v{V_DONE}, v{V_CNT}")
        g.e(m)
        upto = (len(fill) * (i + 1) + n - 1) // n
        while k < upto:
            g.e(fill[k]); k += 1

def softmax(g, e, tag, imask):
    aa, ab = V_AL[e]
    if imask: g.e(f"s_add_u32 s{S_T2}, s{S_I}, {imask}")
    g.e(f"s_cmp_lt_u32 s{S_T2 if imask else S_I}, s{S_JM}")
    g.e(f"s_cbranch_scc0 L_mask_{tag}")
    g.lab(f"L_nomask_{tag}")
    g.ool.append(f"L_mask_{tag}:")
    prs = ["vcc", "s[32:33]", "s[34:35]", "s[36:37]"]
    for j0 in range(0, 16, 4):
        for j in range(j0, j0 + 4):
            g.ool.append(f"    v_cmp_gt_i32 {prs[j & 3]}, v{V_REM}, {(j & 3) + 8 * (j >> 2)}")
        if True: g.ool.append("    s_nop 1")
        for j in range(j0, j0 + 4):
            for qh in range(2):
                r = V_S + 16*qh + j
                g.ool.append(f"    v_cndmask_b32 v{r}, v{V_R}, v{r}, {prs[j & 3]}")
    g.ool.append(f"    s_branch L_nomask_{tag}")
    s0, s1 = V_S, V_S + 16
    g.e(f"v_max3_f32 v{V_T0}, v{s0}, v{s0+1}, v{s0+2}")
    g.e(f"v_max3_f32 v{V_T1}, v{s1}, v{s1+1}, v{s1+2}")
    for k in range(3, 15, 2):
        g.e(f"v_max3_f32 v{V_T0}, v{V_T0}, v{s0+k}, v{s0+k+1}")
        g.e(f"v_max3_f32 v{V_T1}, v{V_T1}, v{s1+k}, v{s1+k+1}")
    g.e(f"v_max_f32 v{V_T0}, v{V_T0}, v{s0+15}")
    g.e(f"v_max_f32 v{V_T1}, v{V_T1}, v{s1+15}")
    g.e(f"v_add_u32 v{V_CNT}, 1, v{V_CNT}")
    g.e("s_nop 0")
    g.e(f"v_permlane32_swap_b32 v{V_T0}, v{V_T1}")
    g.e(f"v_max_f32 v{V_T0}, v{V_T0}, v{V_T1}")
    g.e(f"v_mul_f32 v{V_T0}, s{S_C}, v{V_T0}")
    g.e(f"v_max_f32 v{V_MA}, v{V_M}, v{V_T0}")
    g.e(f"v_sub_f32 v{V_T1}, v{V_M}, v{V_MA}")
    g.e(f"v_mov_b32 v{V_MB}, v{V_MA}")
    g.e(f"v_exp_f32 v{aa}, v{V_T1}")
    g.e(f"v_mov_b32 v{V_M}, v{V_MA}")
    g.e(f"v_permlane32_swap_b32 v{V_MA}, v{V_MB}")
    g.e(f"v_mov_b32 v{ab}, v{aa}")
    for j in range(0, 16, 2):
        for qh in range(2):
            r = V_S + 16*qh + j
            m = V_MA if qh == 0 else V_MB
            g.e(f"v_pk_fma_f32 {vr(r,2)}, {vr(r,2)}, {sr(S_C2,2)}, {vr(m,2)} op_sel_hi:[1,1,0] neg_lo:[0,0,1] neg_hi:[0,0,1]")
        if j == 0: g.e(f"v_permlane32_swap_b32 v{aa}, v{ab}")
    for j in range(16):
        for qh in range(2):
            r = V_S + 16*qh + j
            g.e(f"v_exp_f32 v{r}, v{r}")
    g.e(f"ds_read_b32 v{V_PT}, v{V_FLAG}")
    for ts in range(2):
        for r in range(4):
            for qh in range(2):
                src = V_S + 16*qh + 8*ts + 2*r
                g.e(f"v_cvt_pk_bf16_f32 v{V_PP[e] + (qh*2+ts)*4 + r}, v{src}, v{src+1}")

def iteration(g, e, tag):
    x = g.e
    g.c(f"---- iteration parity {e}")
    x(f"s_add_u32 s{S_T1}, s{S_I}, 3")
    x(f"s_cmp_ge_u32 s{S_T1}, s{S_NT}")
    x(f"s_cbranch_scc1 L_last_{tag}")
    poll(g, "k" + tag, True)
    for r in k_reads(1 - e): x(r)
    for r in resc(e, 0, True): x(r)
    qk_phase(g, resc(e, 1) + resc(e, 2) + resc(e, 3)[:26])
    for r in resc(e, 3)[26:]: x(r)
    for r in need_v(): x(r)
    softmax(g, 1 - e, tag, 3)
    poll(g, "v" + tag, True)
    rd = v_reads(e)
    for r in rd[:12]: x(r)
    ls = lsum(1 - e)
    for r in ls[:10]: x(r)
    x("s_waitcnt lgkmcnt(10)")
    for r in rd[12:]: x(r)
    for r in ls[10:]: x(r)
    x("s_waitcnt lgkmcnt(12)")
    for ts in range(2):
        for qh in range(2): x(pv(e, 0, ts, qh))
    x("s_waitcnt lgkmcnt(8)")
    for ts in range(2):
        for qh in range(2): x(pv(e, 1, ts, qh))
    x("s_waitcnt lgkmcnt(0)")
    x(f"ds_write_b32 v{V_DONE}, v{V_CNT}")
    x(f"s_add_u32 s{S_I}, s{S_I}, 3")
    for ts in range(2):
        for qh in range(2): x(pv(e, 2, ts, qh))
    x(f"v_add_u32 v{V_CNT}, 1, v{V_CNT}")
    for r in need_k_next(): x(r)
    x(pv(e, 3, 0, 0))
    if g.a.split:
      x(f"s_cmp_lg_u32 s{S_IMP}, 0")
      x(f"s_cbranch_scc1 L_imp_{tag}")
      g.lab(f"L_impr_{tag}")
      g.ool += [f"L_imp_{tag}:",
        f"    s_cmp_eq_u32 s{S_IMP}, 2",
        f"    s_cbranch_scc1 L_imp2_{tag}",
        f"    s_add_u32 s{S_T2}, s{S_I}, {g.a.impat}",
        f"    s_cmp_lt_u32 s{S_T2}, s{S_NT}",
        f"    s_cbranch_scc1 L_impr_{tag}",
        f"    global_load_dword v63, v62, s[28:29] sc1",
        f"    s_add_u32 s{S_IMP}, s{S_IMP}, 1",
        f"    s_branch L_impr_{tag}",
        f"L_imp2_{tag}:",
        "    s_waitcnt vmcnt(0)",
        f"    v_readfirstlane_b32 s{S_T2}, v63",
        f"    s_cmp_eq_u32 s{S_T2}, 0",
        f"    s_addc_u32 s{S_IMP}, 0, 0",
        f"    s_branch L_impr_{tag}"]
    x(pv(e, 3, 0, 1))
    x(f"ds_read_b32 v{V_PT}, v{V_FLAG}")
    x(pv(e, 3, 1, 0)); x(pv(e, 3, 1, 1))

def write_stats(g):
    e = g.e
    e(f"v_permlane32_swap_b32 v{V_L0}, v{V_L1}")
    e(f"v_lshlrev_b32 v48, 3, v{V_LANE}")
    e(f"s_lshl_b32 s{S_T1}, s{S_ROLE}, 9")
    e(f"s_add_u32 s{S_T1}, s{S_T1}, {LDS_STAT}")
    e(f"v_add_u32 v49, s{S_T1}, v48")
    e(f"v_mov_b32 v50, v{V_M}")
    e(f"v_add_f32 v51, v{V_L0}, v{V_L1}")
    e("ds_write_b64 v49, v[50:51]")

def last_tile(g, e, tag):
    x = g.e
    g.lab(f"L_last_{tag}")
    if g.a.estamps: x("s_memrealtime s[90:91]")
    if g.a.split:
      x(f"s_cmp_lg_u32 s{S_IMP}, 0")
      x(f"s_cbranch_scc1 L_impb_{tag}")
      g.lab(f"L_impbr_{tag}")
      g.ool += [f"L_impb_{tag}:",
        f"    global_load_dword v63, v62, s[28:29] sc1",
        "    s_waitcnt vmcnt(0)",
        f"    v_readfirstlane_b32 s{S_T2}, v63",
        f"    s_cmp_eq_u32 s{S_T2}, 0",
        f"    s_cbranch_scc1 L_impb_{tag}",
        f"    s_branch L_impbr_{tag}"]
    write_stats(g)
    x(f"v_mov_b32 v{V_CNT}, 1")
    for r in need_v(): x(r)
    x("s_waitcnt lgkmcnt(0)")
    x(f"ds_write_b32 v{V_FIN}, v{V_CNT}")
    ew_addrs(g)
    for db in range(4):
        for r in resc(e, db, True): x(r)
    if g.a.estamps: x("s_memrealtime s[92:93]")
    poll(g, "l" + tag)
    if g.a.estamps:
        x("s_memrealtime s[94:95]"); x("s_waitcnt lgkmcnt(0)")
    rd = v_reads(e)
    for r in rd[:12]: x(r)
    x("s_waitcnt lgkmcnt(10)")
    x(pv(e,0,0,0)); x(pv(e,0,0,1))
    for r in rd[12:]: x(r)
    x("s_waitcnt lgkmcnt(12)")
    x(pv(e,0,1,0)); x(pv(e,0,1,1))
    x("s_waitcnt lgkmcnt(8)")
    x(pv(e,1,0,0)); x("s_nop 3"); x(pv(e,1,0,1)); x("s_nop 3")
    x("s_waitcnt lgkmcnt(0)")
    w = 0
    for m in [pv(e,1,1,0), pv(e,1,1,1), pv(e,2,0,0), pv(e,2,0,1), pv(e,2,1,0), pv(e,2,1,1), pv(e,3,0,0), pv(e,3,0,1), pv(e,3,1,0), pv(e,3,1,1)]:
        x(m)
        x(owrite(w)); w += 1
        if w > 2:
            x(owrite(w)); w += 1
    while w < 32:
        if w == 24: x("s_nop 3")
        x(owrite(w)); w += 1
    x("s_branch L_fin2")

def first_tile(g, e, tag):
    x = g.e
    for r in k_reads(e): x(r)
    qk_phase(g, [])
    x("s_nop 7"); x("s_nop 1")
    softmax(g, e, tag, 0)
    for r in lsum(e): x(r)
    x(f"v_add_u32 v{V_CNT}, 1, v{V_CNT}")
    for r in need_k_next(): x(r)

def stamp(g, k):
    if g.a.stamps: g.e(f"s_memrealtime s[{88+2*k}:{89+2*k}]")

def decide(g):
    e = g.e; a = g.a
    if not a.split:
        e(f"s_cmp_eq_u32 s{S_CL}, 0")
        e(f"s_cselect_b32 s{S_KEY}, 2048, s{S_CL}")
        e(f"s_bfe_u32 s{S_T0}, s{S_QO0}, 0x2000e")
        e(f"s_cmp_eq_u32 s{S_T0}, 1")
        e(f"s_cselect_b32 s{S_T2}, {a.thetal}, -1")
        e(f"s_cselect_b32 s{S_T1}, {a.bonus}, 0")
        e(f"s_cmp_ge_u32 s{S_KEY}, s{S_T2}")
        e(f"s_cselect_b32 s{S_T1}, 4096, s{S_T1}")
        e(f"s_add_u32 s{S_KEY}, s{S_KEY}, s{S_T1}")
        e(f"s_mov_b32 s{S_TB}, 0")
        e(f"s_mov_b32 s{S_QSRC}, {LDS_Q}")
        return
    assert a.hmap == 2
    for p in range(2):
        e(f"s_max_i32 s{S_CL4+p}, s{S_CL4+p}, 0")
        e(f"s_min_i32 s{S_CL4+p}, s{S_CL4+p}, 2048")
    e(f"s_bitcmp1_b32 s3, 0")
    e(f"s_cselect_b32 s{S_CLO}, s{S_CL4+1}, s{S_CL4}")
    e(f"s_cselect_b32 s{S_T1}, s{S_CL4}, s{S_CL4+1}")
    e(f"s_cmp_eq_u32 s{S_CLO}, 0")
    e(f"s_cselect_b32 s{S_KEY}, 2048, s{S_CLO}")
    e(f"s_bfe_u32 s{S_T0}, s{S_QO0}, 0x2000e")
    e(f"s_cmp_eq_u32 s{S_T0}, 1")
    e(f"s_cselect_b32 s{S_CLV}, s{S_CLO}, s{S_T1}")
    e(f"s_cselect_b32 s{S_T1}, s{S_T1}, s{S_CLO}")
    e(f"s_cselect_b32 s{S_MODE}, 2, 1")
    e(f"s_cselect_b32 s{S_T2}, {a.thetal}, -1")
    e(f"s_bitcmp1_b32 s{S_T0}, 0")
    e(f"s_cselect_b32 s{S_MODE}, s{S_MODE}, 0")
    e(f"s_cmp_lt_u32 s{S_CLV}, {a.theta}")
    e(f"s_cselect_b32 s{S_MODE}, 0, s{S_MODE}")
    e(f"s_sub_u32 s{S_T1}, s{S_T1}, 1")
    e(f"s_cmp_ge_u32 s{S_T1}, {a.sigma}")
    e(f"s_cselect_b32 s{S_MODE}, 0, s{S_MODE}")
    e(f"s_cmp_ge_u32 s{S_KEY}, s{S_T2}")
    e(f"s_cselect_b32 s{S_KEY}, 4096, s{S_KEY}")
    e(f"s_mov_b32 s{S_QSRC}, {LDS_Q}")
    e(f"s_xor_b32 s{S_T2}, s3, 1")
    e(f"s_cmp_eq_u32 s{S_MODE}, 2")
    e(f"s_cselect_b32 s{S_T2}, s3, s{S_T2}")
    e(f"s_lshl1_add_u32 s{S_QOV}, s{S_T2}, s2")
    e(f"s_and_b32 s{S_QOV}, s{S_QOV}, 7")
    e(f"s_lshr_b32 s{S_SLOT}, s{S_QOV}, 2")
    e(f"s_lshl1_add_u32 s{S_SLOT}, s{S_T2}, s{S_SLOT}")
    e(f"s_bfe_u32 s{S_HD}, s{S_QO0}, 0x3000e")
    e(f"s_sub_u32 s{S_HD}, s{S_QOV}, s{S_HD}")
    e(f"s_lshl_b32 s{S_HD}, s{S_HD}, 8")
    e(f"s_lshl3_add_u32 s{S_QOV}, s{S_T2}, s{S_QOV}")
    e(f"s_lshl_b32 s{S_QOV}, s{S_QOV}, 14")
    e(f"s_add_u32 s{S_T2}, s{S_CLV}, {31 - 32*a.t0}")
    e(f"s_lshr_b32 s{S_T2}, s{S_T2}, 5")
    e(f"s_and_b32 s{S_T2}, s{S_T2}, 63")
    e(f"s_mul_i32 s{S_CUT}, s{S_T2}, 171")
    e(f"s_lshr_b32 s{S_CUT}, s{S_CUT}, 9")
    e(f"s_mul_i32 s{S_CUT}, s{S_CUT}, 3")
    e(f"s_sub_u32 s{S_CUT}, s{S_T2}, s{S_CUT}")
    e(f"s_add_u32 s{S_CUT}, s{S_CUT}, {a.t0}")
    e(f"s_lshl_b32 s{S_T2}, s{S_CUT}, 5")
    e(f"s_sub_u32 s{S_T2}, s{S_CLV}, s{S_T2}")
    e(f"s_add_u32 s{S_T2}, s{S_T2}, s{S_KEY}")
    e(f"s_mul_i32 s{S_T2}, s{S_T2}, {a.hs}")
    e(f"s_lshr_b32 s{S_T2}, s{S_T2}, 8")
    e(f"s_min_u32 s{S_T2}, s{S_T2}, 2048")
    e(f"s_cmp_eq_u32 s{S_MODE}, 1")
    e(f"s_cselect_b32 s{S_KEY}, s{S_T2}, s{S_KEY}")
    e(f"s_cselect_b32 s{S_CL}, s{S_CLV}, s{S_CLO}")
    e(f"s_cselect_b32 s{S_TB}, s{S_CUT}, 0")
    e(f"s_cselect_b32 s{S_QSRC}, {LDS_Q2}, s{S_QSRC}")

def job_common(g, first=False):
    e = g.e; a = g.a
    e(f"s_cmp_eq_u32 s{S_CL}, 0")
    e(f"s_cselect_b32 s{S_CLE}, 2048, s{S_CL}")
    e(f"s_add_u32 s{S_TE}, s{S_CLE}, 31")
    e(f"s_lshr_b32 s{S_TE}, s{S_TE}, 5")
    if a.split and not first:
        e(f"s_cmp_eq_u32 s{S_MODE}, 2")
        e(f"s_cselect_b32 s{S_TE}, s{S_CUT}, s{S_TE}")
    e(f"s_sub_u32 s{S_NT}, s{S_TE}, s{S_TB}")
    e(f"s_sub_u32 s{S_T1}, s{S_NT}, 1")
    e(f"s_mul_i32 s{S_T2}, s{S_T1}, 171")
    e(f"s_lshr_b32 s{S_T2}, s{S_T2}, 9")
    e(f"s_mul_i32 s{S_T2}, s{S_T2}, 3")
    e(f"s_sub_u32 s{S_T1}, s{S_T1}, s{S_T2}")
    e(f"s_sub_u32 s{S_SH}, {a.clast + 3}, s{S_T1}")
    e(f"s_cmp_ge_u32 s{S_SH}, 3")
    e(f"s_cselect_b32 s{S_T2}, 3, 0")
    e(f"s_sub_u32 s{S_SH}, s{S_SH}, s{S_T2}")

def next_job(g):
    e = g.e
    e(f"s_mov_b32 s{S_MODE}, 0")
    e(f"s_mov_b32 s{S_CL}, s{S_CLO}")
    e(f"s_mov_b32 s{S_TB}, 0")
    e(f"s_mov_b32 s{S_QSRC}, {LDS_Q}")

def reduce_setup(g, sg0):
    e = g.e
    cl = g.a.clast
    cA = (cl + 1) % 3
    e(f"s_mov_b32 s{S_G0}, s{sg0}")
    e("v_lshrrev_b32 v48, 2, v47")
    e("v_and_b32 v49, 3, v47")
    e("v_lshl_add_u32 v48, v48, 3, v49")
    e("v_lshlrev_b32 v48, 10, v48")
    if cA: e(f"v_add_u32 v48, {cA*32768}, v48")
    e("v_xor_b32 v49, v46, v47")
    for k in range(6):
        e(f"s_add_u32 s{S_OB}, s{sg0}, {k}")
        e(f"s_and_b32 s{S_T1}, s{S_OB}, 3")
        e(f"s_lshl_b32 s{S_T1}, s{S_T1}, 2")
        e(f"v_xor_b32 v50, s{S_T1}, v49")
        e(f"v_lshl_add_u32 v50, v50, 4, v48")
        e(f"s_lshr_b32 s{S_T1}, s{S_OB}, 3")
        e(f"s_lshl_b32 s{S_T1}, s{S_T1}, 12")
        e(f"s_bfe_u32 s{S_T2}, s{S_OB}, 0x10002")
        e(f"s_lshl_b32 s{S_T2}, s{S_T2}, 8")
        e(f"s_add_u32 s{S_T1}, s{S_T1}, s{S_T2}")
        e(f"v_add_u32 v{V_RA+k}, s{S_T1}, v50")
    e(f"s_lshl_b32 s{S_T1}, s{sg0}, 5")
    e(f"s_add_u32 s{S_T1}, s{S_T1}, {LDS_STAT}")
    e(f"v_lshlrev_b32 v{V_SA}, 3, v46")
    e(f"v_add_u32 v{V_SA}, s{S_T1}, v{V_SA}")
    e(f"v_min_u32 v{V_FP}, 2, v{V_LANE}")
    e(f"v_lshlrev_b32 v{V_FP}, 8, v{V_FP}")
    e(f"v_add_u32 v{V_FP}, {LDS_FIN}, v{V_FP}")
    e(f"s_lshl_b32 s{S_T1}, s{sg0}, 10")
    e(f"s_add_u32 s{S_OA}, s{S_QO0}, s{S_T1}")
    e(f"s_add_u32 s{S_OB}, s{S_OA}, 4096")
    e(f"v_lshlrev_b32 v{V_OV}, 4, v{V_LANE}")

def reduce_code(g, NG, tag, mode):
    e = g.e; a = g.a
    tag = f"{tag}{mode}"
    cC = a.clast; cA = (cC + 1) % 3; cB = (cC + 2) % 3
    dB = ((cB - cA) * 32768) & 0xffffffff; dC = ((cC - cB) * 32768) & 0xffffffff
    dR = ((cA - cC) * 32768) & 0xffffffff
    V_ST = 100; V_G = 64; V_ACC = 136; V_IN = 184
    T = 232; VP = 238; VT = 239; XS = 240; G4 = 32
    g.lab(f"L_reduce_{tag}")
    e(f"ds_read_b32 v{VP}, v{V_FP}")
    e("s_waitcnt lgkmcnt(0)")
    e(f"v_readlane_b32 s{S_T0}, v{VP}, 0")
    e(f"v_readlane_b32 s{S_T1}, v{VP}, 1")
    e(f"v_readlane_b32 s{S_T2}, v{VP}, 2")
    e(f"s_min_u32 s{S_T1}, s{S_T1}, s{S_T2}")
    e(f"s_min_u32 s{S_T0}, s{S_T0}, s{S_T1}")
    e(f"s_cmp_lt_u32 s{S_T0}, 1")
    e(f"s_cbranch_scc1 L_reduce_{tag}")
    if a.estamps: e("s_memrealtime s[90:91]")
    if mode:
        e(f"s_mov_b32 s{S_WSRD}, s30"); e(f"s_mov_b32 s{S_WSRD+1}, s31")
        e(f"s_mov_b32 s{S_WSRD+2}, {80*65536}"); e(f"s_mov_b32 s{S_WSRD+3}, 0x20000")
        e(f"s_lshl_b32 s{S_P0}, s{S_SLOT}, 16")
        e(f"s_add_u32 s{S_P0}, s{S_P0}, 0x100000")
        e(f"s_lshl_b32 s{S_T1}, s{S_G0}, 9")
        e(f"s_add_u32 s{S_P1}, s{S_P0}, s{S_T1}")
        e(f"s_add_u32 s{S_P1}, s{S_P1}, 32768")
        e(f"s_lshl_b32 s{S_T1}, s{S_G0}, 11")
        e(f"s_add_u32 s{S_P0}, s{S_P0}, s{S_T1}")
        e(f"v_lshlrev_b32 v{VT}, 3, v{V_LANE}")
    if mode == 2:
        for k in range(NG):
            e(f"buffer_load_dwordx2 {vr(XS+2*k,2)}, v{VT}, {sr(S_WSRD,4)}, s{S_P1} offen offset:{k*512} {a.hpol}")
        for k in range(NG):
            for hh in range(2):
                e(f"buffer_load_dwordx4 {vr(V_ACC+k*8+hh*4,4)}, v{V_OV}, {sr(S_WSRD,4)}, s{S_P0} offen offset:{(k&1)*2048+hh*1024} {a.hpol}")
            if k & 1: e(f"s_add_u32 s{S_P0}, s{S_P0}, 4096")
    def rd_part():
        for k in range(NG):
            for hh in range(2):
                e(f"ds_read_b128 {vr(V_IN + k*8 + hh*4, 4)}, v{V_RA+k} offset:{hh*512}")
    for k in range(NG):
        for ro in range(3):
            e(f"ds_read_b64 {vr(V_ST + (k*3+ro)*2, 2)}, v{V_SA} offset:{k*32 + ro*512}")
        if k == 3 and NG > 4: e("s_waitcnt lgkmcnt(4)")
    e("s_waitcnt lgkmcnt(0)")
    def st(k, ro, x): return V_ST + (k*3+ro)*2 + x
    for k in range(NG): e(f"v_max3_f32 v{T+k}, v{st(k,0,0)}, v{st(k,1,0)}, v{st(k,2,0)}")
    if mode == 2:
        e(f"s_waitcnt vmcnt({2*NG})")
        for k in range(NG): e(f"v_max_f32 v{T+k}, v{T+k}, v{XS+2*k}")
        for k in range(NG): e(f"v_sub_f32 v{G4+2*k}, v{XS+2*k}, v{T+k}")
    if mode == 1:
        for k in range(NG): e(f"v_mov_b32 v{XS+2*k}, v{T+k}")
    for k in range(NG):
        for ro in range(3): e(f"v_sub_f32 v{V_G+(k*3+ro)*2}, v{st(k,ro,0)}, v{T+k}")
    if mode == 2:
        for k in range(NG): e(f"v_exp_f32 v{G4+2*k}, v{G4+2*k}")
    for k in range(NG):
        for ro in range(3): e(f"v_exp_f32 v{V_G+(k*3+ro)*2}, v{V_G+(k*3+ro)*2}")
    if mode == 2:
        for k in range(NG): e(f"v_mul_f32 v{G4+2*k}, v{G4+2*k}, v{XS+2*k+1}")
        for k in range(NG): e(f"v_fma_f32 v{T+k}, v{V_G+k*6}, v{st(k,0,1)}, v{G4+2*k}")
    else:
        for k in range(NG): e(f"v_mul_f32 v{T+k}, v{V_G+k*6}, v{st(k,0,1)}")
    for ro in range(1, 3):
        for k in range(NG): e(f"v_fma_f32 v{T+k}, v{V_G+(k*3+ro)*2}, v{st(k,ro,1)}, v{T+k}")
    if mode == 1:
        for k in range(NG): e(f"v_mov_b32 v{XS+2*k+1}, v{T+k}")
        for k in range(NG):
            e(f"buffer_store_dwordx2 {vr(XS+2*k,2)}, v{VT}, {sr(S_WSRD,4)}, s{S_P1} offen offset:{k*512} {a.hpol}")
    for k in range(NG): e(f"v_rcp_f32 v{T+k}, v{T+k}")
    e("s_nop 0")
    for k in range(NG):
        for ro in range(3): e(f"v_mul_f32 v{V_G+(k*3+ro)*2}, v{V_G+(k*3+ro)*2}, v{T+k}")
    if mode == 2:
        for k in range(NG): e(f"v_mul_f32 v{G4+2*k}, v{G4+2*k}, v{T+k}")
    def acck(k, ro, first):
        for x in range(0, 8, 2):
            d = V_ACC + k*8 + x; s_ = V_IN + k*8 + x; f = V_G + (k*3 + ro)*2
            if first: e(f"v_pk_mul_f32 {vr(d,2)}, {vr(s_,2)}, {vr(f,2)} op_sel_hi:[1,0]")
            else: e(f"v_pk_fma_f32 {vr(d,2)}, {vr(s_,2)}, {vr(f,2)}, {vr(d,2)} op_sel_hi:[1,0,1]")
    def waitfin(lane, lab):
        g.lab(lab)
        e(f"ds_read_b32 v{VP}, v{V_FP}")
        e("s_waitcnt lgkmcnt(0)")
        e(f"v_readlane_b32 s{S_T2}, v{VP}, {lane}")
        e(f"s_cmp_lt_u32 s{S_T2}, 2")
        e(f"s_cbranch_scc1 {lab}")
    waitfin(0, f"L_rpa_{tag}")
    rd_part()
    for k in range(NG): e(f"v_add_u32 v{V_RA+k}, 0x{dB:x}, v{V_RA+k}")
    if mode == 2:
        e("s_waitcnt vmcnt(0)")
        for k in range(NG):
            for x in range(0, 8, 2):
                d = V_ACC + k*8 + x
                e(f"v_pk_mul_f32 {vr(d,2)}, {vr(d,2)}, {vr(G4+2*k,2)} op_sel_hi:[1,0]")
    for k in range(NG):
        e(f"s_waitcnt lgkmcnt({2*(NG-1-k)})"); acck(k, 0, mode != 2)
    waitfin(1, f"L_rpb_{tag}")
    rd_part()
    for k in range(NG): e(f"v_add_u32 v{V_RA+k}, 0x{dC:x}, v{V_RA+k}")
    for k in range(NG):
        e(f"s_waitcnt lgkmcnt({2*(NG-1-k)})"); acck(k, 1, False)
    if a.estamps: e("s_memrealtime s[92:93]")
    waitfin(2, f"L_rpc_{tag}")
    rd_part()
    for k in range(NG):
        e(f"s_waitcnt lgkmcnt({2*(NG-1-k)})")
        acck(k, 2, False)
        if mode == 1:
            for hh in range(2):
                e(f"buffer_store_dwordx4 {vr(V_ACC+k*8+hh*4,4)}, v{V_OV}, {sr(S_WSRD,4)}, s{S_P0} offen offset:{(k&1)*2048+hh*1024} {a.hpol}")
            if k & 1: e(f"s_add_u32 s{S_P0}, s{S_P0}, 4096")
        else:
            for x in range(4):
                e(f"v_cvt_pk_bf16_f32 v{V_ST + k*4 + x}, v{V_ACC + k*8 + 2*x}, v{V_ACC + k*8 + 2*x + 1}")
            so = S_OA if k < 4 else S_OB
            e(f"buffer_store_dwordx4 {vr(V_ST + k*4, 4)}, v{V_OV}, {sr(S_XSRD,4)}, s{so} offen offset:{(k&3)*1024} {a.stpol}")
    if mode == 1:
        for k in range(NG): e(f"v_add_u32 v{V_RA+k}, 0x{dR:x}, v{V_RA+k}")
        e("s_branch L_jobend")
    else:
        if a.estamps: e("s_memrealtime s[94:95]")
        e("s_branch L_out")

def build(a):
    g = Gen(a); e = g.e
    stamps, spin = a.stamps, a.spin
    pol = (" " + a.nt) if a.nt else ""
    c = (128 ** -0.5) * math.log2(math.e)
    R = -1e9 * math.sqrt(128.0)
    hdr = open("standalone__paged_block_table_kv_pagedattention__sampling.s.ref").read().split("\n")
    head = [l for l in hdr if l.startswith(";") and "@launch" not in l and "Override launch" not in l and "grid=ceil" not in l]
    out = head + [f"; @launch grid=(256,1,1) block=(256,1,1) lds={LDS_TOTAL if a.split else LDS_NOSPLIT}",
        '.amdgcn_target "amdgcn-amd-amdhsa--gfx950"', ".text", f".globl {NAME}", ".p2align 8",
        f".type {NAME},@function", f"{NAME}:"]
    e("s_cmp_ge_u32 s2, 256")
    e("s_cbranch_scc1 L_end")
    e("s_load_dwordx16 s[16:31], s[0:1], 0")
    if spin or stamps: e("s_memrealtime s[88:89]")
    e("v_lshrrev_b32 v2, 6, v0")
    e(f"v_and_b32 v{V_LANE}, 63, v0")
    e(f"v_readfirstlane_b32 s{S_W}, v2")
    e("s_lshr_b32 s3, s2, 3")
    if a.hmap == 1: e(f"s_add_u32 s{S_T0}, s2, s3")
    elif a.hmap == 2: e(f"s_lshl1_add_u32 s{S_T0}, s3, s2")
    elif a.hmap == 3:
        e(f"s_lshl1_add_u32 s{S_T0}, s3, s2"); e(f"s_add_u32 s{S_T0}, s{S_T0}, 1")
    elif a.hmap >= 4:
        e(f"s_and_b32 s{S_T0}, s2, 7"); e(f"s_lshl_b32 s{S_T0}, s{S_T0}, 2")
        e(f"s_lshr_b32 s{S_T0}, 0x{a.hperm}, s{S_T0}")
    e(f"s_and_b32 s{S_T0}, s{S_T0}, 7")
    e(f"s_lshl3_add_u32 s{S_QO0}, s3, s{S_T0}")
    e(f"s_lshl_b32 s{S_QO0}, s{S_QO0}, 14")
    e(f"v_lshrrev_b32 v46, 4, v{V_LANE}")
    e(f"v_and_b32 v47, 15, v{V_LANE}")
    e(f"s_cmp_lg_u32 s{S_W}, 0")
    e("s_cbranch_scc1 L_consumer")
    e(f"v_lshlrev_b32 v6, 3, v{V_LANE}")
    e(f"s_lshl_b32 s{S_P0}, s3, 9")
    e(f"s_lshl_b32 s{S_P1}, s3, 2")
    e(f"s_movk_i32 s{S_BSRD+2}, 0x4000"); e(f"s_mov_b32 s{S_BSRD+3}, 0x20000")
    e(f"s_mov_b32 s{S_XSRD+2}, {Q_BYTES}"); e(f"s_mov_b32 s{S_XSRD+3}, 0x20000")
    e(f"s_mov_b32 s{S_KSRD+2}, {KV_BYTES}"); e(f"s_mov_b32 s{S_KSRD+3}, 0x20000")
    e("v_xor_b32 v52, v47, v46")
    for k in range(4):
        if k: e(f"v_xor_b32 v53, {4*k}, v52")
        e(f"v_lshlrev_b32 v{48+k}, 4, v{53 if k else 52}")
        e(f"v_lshl_add_u32 v{V_DQ+k}, v46, 8, v{48+k}")
    e("s_waitcnt lgkmcnt(0)")
    stamp(g, 1)
    e(f"s_mov_b32 s{S_BSRD}, s22"); e(f"s_mov_b32 s{S_BSRD+1}, s23")
    e(f"s_load_dword s{S_CL}, s[24:25], s{S_P1}")
    e(f"buffer_load_dwordx2 {vr(V_BT,2)}, v6, {sr(S_BSRD,4)}, s{S_P0} offen")
    e(f"s_mov_b32 s{S_XSRD}, s16"); e(f"s_mov_b32 s{S_XSRD+1}, s17")
    for gq in range(4):
        e(f"s_mov_b32 m0, {LDS_Q + gq*4096}")
        e(f"s_add_u32 s{S_T1}, s{S_QO0}, {gq*4096}")
        for k in range(4):
            e(f"buffer_load_dwordx4 v{V_DQ+k}, {sr(S_XSRD,4)}, s{S_T1} offen offset:{k*1024}{pol} lds")
    e(f"s_mov_b32 s{S_KSRD}, s18"); e(f"s_mov_b32 s{S_KSRD+1}, s19")
    e(f"s_lshl_b32 s{S_T2}, s{S_T0}, 8")
    e(f"v_lshlrev_b32 v54, 11, v46")
    e(f"v_add_u32 v54, s{S_T2}, v54")
    e(f"v_add_u32 v{V_DK}, v54, v48")
    for k in range(1, 4):
        e(f"v_add_u32 v53, {k*7168}, v54")
        e(f"v_add_u32 v{V_DK+k}, v53, v{48+k}")
    e(f"v_lshlrev_b32 v5, 1, v{V_LANE}")
    e("v_add_u32 v7, 1, v5")
    e(f"v_mov_b32 v61, {KV_BYTES}")
    e(f"s_mov_b32 s{S_TB}, 0")
    e("s_waitcnt lgkmcnt(0)")
    e(f"s_max_i32 s{S_CL}, s{S_CL}, 0")
    e(f"s_min_i32 s{S_CL}, s{S_CL}, 2048")
    job_common(g, True)
    e(f"s_add_u32 s{S_NP}, s{S_CLE}, 15")
    e(f"s_lshr_b32 s{S_NP}, s{S_NP}, 4")
    if a.noload: e(f"s_mov_b32 s{S_NP}, 0")
    e(f"v_cmp_gt_u32 vcc, s{S_NP}, v5")
    e(f"v_cmp_gt_u32 s[32:33], s{S_NP}, v7")
    e("s_waitcnt vmcnt(16)")
    stamp(g, 2)
    e(f"v_lshlrev_b32 v{V_BT}, 15, v{V_BT}")
    e(f"v_lshlrev_b32 v{V_BT+1}, 15, v{V_BT+1}")
    e(f"v_cndmask_b32 v{V_BT}, v61, v{V_BT}, vcc")
    e(f"v_cndmask_b32 v{V_BT+1}, v61, v{V_BT+1}, s[32:33]")
    def advance(si, sc, sn, sb, extra):
        e(f"s_add_u32 s{si}, s{si}, 1")
        e(f"s_add_u32 s{sc}, s{sc}, 1")
        e(f"s_add_u32 s{sb}, s{sb}, 32768")
        e(f"s_add_u32 s{S_T1}, s{sn}, 2")
        e(f"s_lshl_b32 s{S_T2}, s{S_T1}, 13")
        e(f"s_and_b32 s{S_T2}, s{S_T2}, 16384")
        if extra: e(f"s_add_u32 s{S_T2}, s{S_T2}, {extra}")
        e(f"s_cmp_eq_u32 s{sc}, 3")
        e(f"s_cselect_b32 s{sc}, 0, s{sc}")
        e(f"s_cselect_b32 s{sn}, s{S_T1}, s{sn}")
        e(f"s_cselect_b32 s{sb}, s{S_T2}, s{sb}")
    def opening(tag):
        e(f"s_lshl_b32 s{S_LB}, s{S_SH}, 15")
        e(f"s_mov_b32 s{S_J}, s{S_TB}"); e(f"s_mov_b32 s{S_CI}, s{S_SH}"); e(f"s_mov_b32 s{S_NK}, 0")
        e(f"s_min_u32 s{S_NP}, s{S_NT}, {a.burst}")
        e(f"s_add_u32 s{S_T1}, s{S_NP}, 2")
        e(f"v_mov_b32 v{V_CNT}, s{S_T1}")
        e(f"s_add_u32 s{S_NP}, s{S_NP}, s{S_TB}")
        g.lab(f"L_burst{tag}")
        e(f"v_readlane_b32 s{S_P0}, v{V_BT}, s{S_J}")
        e(f"v_readlane_b32 s{S_P1}, v{V_BT+1}, s{S_J}")
        e("s_nop 2")
        for it in range(2):
            e(f"s_add_u32 m0, s{S_LB}, {it*4096}")
            e("s_nop 0")
            for i in range(4):
                e(f"buffer_load_dwordx4 v{V_DK+i}, {sr(S_KSRD,4)}, s{S_P0 if it == 0 else S_P1} offen offset:{i*1024}{pol} lds")
        advance(S_J, S_CI, S_N, S_LB, 0)
        e(f"s_cmp_lt_u32 s{S_J}, s{S_NP}")
        e(f"s_cbranch_scc1 L_burst{tag}")
        stamp(g, 3)
        e(f"s_mov_b32 s{S_I}, s{S_TB}"); e(f"s_mov_b32 s{S_CV}, s{S_SH}"); e(f"s_mov_b32 s{S_NV}, 0")
        e(f"s_lshl_b32 s{S_LBV}, s{S_SH}, 15")
        e(f"s_add_u32 s{S_LBV}, s{S_LBV}, 8192")
    opening("0")
    if a.split:
        e(f"s_and_b32 s{S_P1}, s3, 30")
        e(f"s_lshl_b32 s{S_P1}, s{S_P1}, 2")
        e(f"s_load_dwordx2 {sr(S_CL4,2)}, s[24:25], s{S_P1}")
    e(f"v_lshlrev_b32 v{V_FLAG}, 2, v{V_LANE}")
    e(f"v_add_u32 v{V_FLAG}, {LDS_FLAG}, v{V_FLAG}")
    e("v_mov_b32 v53, 0")
    for k in range(7): e(f"ds_write_b32 v{V_FLAG}, v53 offset:{256*k}")
    e(f"s_mov_b32 s{S_VSRD}, s20"); e(f"s_mov_b32 s{S_VSRD+1}, s21")
    e(f"s_mov_b32 s{S_VSRD+2}, {KV_BYTES}"); e(f"s_mov_b32 s{S_VSRD+3}, 0x20000")
    e("v_lshlrev_b32 v53, 2, v46")
    e("v_xor_b32 v53, v47, v53")
    e(f"v_lshl_add_u32 v{V_DV}, v53, 4, v54")
    for k in range(1, 4): e(f"v_add_u32 v{V_DV+k}, {k*7168}, v{V_DV}")
    e(f"v_min_u32 v{V_DONE}, 2, v{V_LANE}")
    e(f"v_lshlrev_b32 v{V_DONE}, 8, v{V_DONE}")
    e(f"v_add_u32 v{V_FP}, {LDS_FIN}, v{V_DONE}")
    e(f"v_add_u32 v{V_DONE}, {LDS_DONE}, v{V_DONE}")
    e(f"v_mov_b32 v{V_PT}, 0")
    if a.split: e(f"v_mov_b32 v{V_BT2}, 0")
    e("s_waitcnt lgkmcnt(0)")
    e("s_barrier")
    decide(g)
    if a.split:
        e(f"s_cmp_eq_u32 s{S_MODE}, 2")
        e(f"s_cselect_b32 s{S_TE}, s{S_CUT}, s{S_TE}")
        e(f"s_sub_u32 s{S_NT}, s{S_TE}, s{S_TB}")
    cA = (a.clast + 1) % 3
    e("v_lshrrev_b32 v48, 2, v47")
    e("v_and_b32 v49, 3, v47")
    e("v_lshl_add_u32 v48, v48, 3, v49")
    e("v_lshlrev_b32 v48, 10, v48")
    e("v_mov_b32 v51, v52")
    for k in range(6):
        cst = cA*32768 + ((k >> 2) & 1) * 256
        if k & 3: e(f"v_xor_b32 v50, {4*(k&3)}, v51")
        e(f"v_lshl_add_u32 v{V_RA+k}, v{50 if k & 3 else 51}, 4, v48")
        if cst: e(f"v_add_u32 v{V_RA+k}, {cst}, v{V_RA+k}")
    e(f"v_lshlrev_b32 v{V_SA}, 3, v46")
    e(f"v_add_u32 v{V_SA}, {LDS_STAT}, v{V_SA}")
    e(f"v_lshlrev_b32 v{V_OV}, 4, v{V_LANE}")
    e(f"s_mov_b32 s{S_G0}, 0")
    e(f"s_mov_b32 s{S_OA}, s{S_QO0}")
    e(f"s_add_u32 s{S_OB}, s{S_QO0}, 4096")
    if a.split:
        e(f"s_cmp_eq_u32 s{S_MODE}, 1")
        e("s_cbranch_scc1 L_lhelp")
        h = ["L_lhelp:",
             f"    s_lshr_b32 s{S_T1}, s{S_QOV}, 17", f"    s_lshl_b32 s{S_T1}, s{S_T1}, 11",
             ]
        h = ["L_lhelp:", "    s_waitcnt vmcnt(24)",
             f"    s_lshr_b32 s{S_T1}, s{S_QOV}, 17", f"    s_lshl_b32 s{S_T1}, s{S_T1}, 9",
             f"    v_add_u32 v48, s{S_T1}, v6",
             f"    global_load_dwordx2 v[50:51], v48, s[22:23]"]
        for gq in range(4):
            h.append(f"    s_mov_b32 m0, {LDS_Q2 + gq*4096}")
            h.append(f"    s_add_u32 s{S_T1}, s{S_QOV}, {gq*4096}")
            for k in range(4):
                h.append(f"    buffer_load_dwordx4 v{V_DQ+k}, {sr(S_XSRD,4)}, s{S_T1} offen offset:{k*1024}{pol} lds")
        h += [f"    s_mov_b32 s{S_XSRD}, s26", f"    s_mov_b32 s{S_XSRD+1}, s27",
              f"    s_add_u32 s{S_NP}, s{S_CLV}, 15", f"    s_lshr_b32 s{S_NP}, s{S_NP}, 4",
              f"    v_cmp_gt_u32 vcc, s{S_NP}, v5", f"    v_cmp_gt_u32 s[32:33], s{S_NP}, v7",
              f"    v_mov_b32 v{V_BT2}, v{V_BT}", f"    v_mov_b32 v{V_BT2+1}, v{V_BT+1}"]
        for k in range(8): h.append(f"    v_add_u32 v{V_DK+k}, s{S_HD}, v{V_DK+k}")
        sub = Gen(a); job_common(sub); h += sub.o
        h += ["    s_waitcnt vmcnt(16)",
              "    v_lshlrev_b32 v50, 15, v50", "    v_lshlrev_b32 v51, 15, v51",
              f"    v_cndmask_b32 v{V_BT}, v61, v50, vcc", f"    v_cndmask_b32 v{V_BT+1}, v61, v51, s[32:33]",
              "    s_branch L_ljob"]
        g.ool += h
    e(f"s_mov_b32 s{S_XSRD}, s26"); e(f"s_mov_b32 s{S_XSRD+1}, s27")
    g.lab("L_lgo")
    e(f"s_min_u32 s{S_NP}, s{S_NT}, {LEAD}")
    e(f"s_add_u32 s{S_NP}, s{S_NP}, s{S_TB}")
    for (clmin, L) in reversed(a.table[1:]):
        e(f"s_cmp_ge_u32 s{S_KEY}, {clmin}")
        e(f"s_cbranch_scc1 L_var_{L}")
    def group(lims, srd, vb, sbase, sp0, sp1):
        if isinstance(lims, int): lims = [lims] * 8
        hs = [(p - lims[p] + 1) // 8 for p in range(8)]
        best = max(hs); p1 = hs.index(best); lag = -best
        for q in range(8):
            it = q >> 2; i = q & 3
            if i == 0: e(f"s_add_u32 m0, s{sbase}, {it*4096}")
            e(f"s_waitcnt vmcnt({lims[q]-1})")
            e(f"buffer_load_dwordx4 v{vb+i}, {sr(srd,4)}, s{sp0 if it == 0 else sp1} offen offset:{i*1024}{pol} lds")
            if q == p1:
                if lag:
                    e(f"v_subrev_u32 v27, {lag}, v{V_CNT}")
                    e(f"ds_write_b32 v{V_FLAG}, v27")
                else:
                    e(f"ds_write_b32 v{V_FLAG}, v{V_CNT}")
        e(f"v_add_u32 v{V_CNT}, 1, v{V_CNT}")
    for (clmin, L2) in a.table:
        base = L2 // 4; up = (L2 % 4) * 4
        lim16 = [base + 1] * up + [base] * (16 - up)
        LK = lim16[:8]; LV = lim16[8:]
        LT = min(a.tmax, max(base, int(round(L2 / 4.0 * a.tf))))
        L = L2
        g.lab(f"L_var_{L}")
        e(f"s_cmp_ge_u32 s{S_J}, s{S_NP}")
        e(f"s_cbranch_scc1 L_lp_{L}")
        g.lab(f"L_pk_{L}")
        e(f"v_readlane_b32 s{S_P0}, v{V_BT}, s{S_J}")
        e(f"v_readlane_b32 s{S_P1}, v{V_BT+1}, s{S_J}")
        e("s_nop 2")
        group(LK, S_KSRD, V_DK, S_LB, S_P0, S_P1)
        advance(S_J, S_CI, S_N, S_LB, 0)
        e(f"s_cmp_lt_u32 s{S_J}, s{S_NP}")
        e(f"s_cbranch_scc1 L_pk_{L}")
        g.lab(f"L_lp_{L}")
        e(f"s_cmp_ge_u32 s{S_J}, s{S_TE}")
        e(f"s_cbranch_scc1 L_tl_{L}")
        g.lab(f"L_lp2_{L}")
        e(f"v_readlane_b32 s{S_P2}, v{V_BT}, s{S_I}")
        e(f"v_readlane_b32 s{S_P3}, v{V_BT+1}, s{S_I}")
        e(f"v_readlane_b32 s{S_P0}, v{V_BT}, s{S_J}")
        e(f"v_readlane_b32 s{S_P1}, v{V_BT+1}, s{S_J}")
        g.lab(f"L_chk_{L}")
        e("s_waitcnt lgkmcnt(0)")
        e(f"v_readlane_b32 s{S_T1}, v{V_PT}, s{S_CI}")
        e(f"v_readlane_b32 s{S_T2}, v{V_PT}, s{S_CV}")
        e(f"ds_read_b32 v{V_PT}, v{V_DONE}")
        e(f"s_cmp_lt_u32 s{S_NV}, 4")
        e(f"s_cselect_b32 s{S_T2}, s{S_NV}, s{S_T2}")
        e(f"s_cmp_lt_u32 s{S_T2}, s{S_NV}")
        e(f"s_cbranch_scc1 L_chk_{L}")
        e(f"s_add_u32 s{S_T1}, s{S_T1}, 3")
        e(f"s_cmp_lt_u32 s{S_T1}, s{S_N}")
        e(f"s_cbranch_scc1 L_chk_{L}")
        group(LK, S_KSRD, V_DK, S_LB, S_P0, S_P1)
        advance(S_J, S_CI, S_N, S_LB, 0)
        group(LV, S_VSRD, V_DV, S_LBV, S_P2, S_P3)
        advance(S_I, S_CV, S_NV, S_LBV, 8192)
        e(f"s_cmp_lt_u32 s{S_J}, s{S_TE}")
        e(f"s_cbranch_scc1 L_lp2_{L}")
        g.lab(f"L_tl_{L}")
        e(f"v_readlane_b32 s{S_P2}, v{V_BT}, s{S_I}")
        e(f"v_readlane_b32 s{S_P3}, v{V_BT+1}, s{S_I}")
        g.lab(f"L_chv_{L}")
        e("s_waitcnt lgkmcnt(0)")
        e(f"v_readlane_b32 s{S_T2}, v{V_PT}, s{S_CV}")
        e(f"ds_read_b32 v{V_PT}, v{V_DONE}")
        e(f"s_cmp_lt_u32 s{S_NV}, 4")
        e(f"s_cselect_b32 s{S_T2}, s{S_NV}, s{S_T2}")
        e(f"s_cmp_lt_u32 s{S_T2}, s{S_NV}")
        e(f"s_cbranch_scc1 L_chv_{L}")
        group(LT, S_VSRD, V_DV, S_LBV, S_P2, S_P3)
        advance(S_I, S_CV, S_NV, S_LBV, 8192)
        e(f"s_cmp_lt_u32 s{S_I}, s{S_TE}")
        e(f"s_cbranch_scc1 L_tl_{L}")
        lag = (LT - 1) // 8
        for k in range(lag, -1, -1):
            e(f"s_waitcnt vmcnt({8*k})")
            if k:
                e(f"v_subrev_u32 v27, {k}, v{V_CNT}")
                e(f"ds_write_b32 v{V_FLAG}, v27")
            else:
                e(f"ds_write_b32 v{V_FLAG}, v{V_CNT}")
        e("s_branch L_ldone")
    g.lab("L_ldone")
    stamp(g, 4)
    e("s_branch L_red_a")
    if a.split:
        g.lab("L_ljob")
        opening("1")
        e("s_branch L_lgo")
    g.lab("L_consumer")
    if a.tlb:
        e(f"s_cmp_gt_u32 s{S_W}, {a.tlb}")
        e("s_cbranch_scc1 L_notlb")
        e(f"s_sub_u32 s{S_T1}, s{S_W}, 1")
        e(f"s_lshl_b32 s{S_T1}, s{S_T1}, 5")
        e(f"s_add_u32 s{S_T1}, s{S_T1}, s3")
        e(f"s_mul_i32 s{S_T1}, s{S_T1}, {a.tlbn}")
        e(f"v_add_u32 v2, s{S_T1}, v{V_LANE}")
        e("v_and_b32 v2, 63, v2")
        e("v_lshlrev_b32 v2, 21, v2")
        e(f"s_mov_b64 exec, {(1 << a.tlbn) - 1}")
        e("s_waitcnt lgkmcnt(0)")
        e("global_load_dword v5, v2, s[18:19] nt")
        e("global_load_dword v6, v2, s[20:21] nt")
        e("s_mov_b64 exec, -1")
        g.lab("L_notlb")
    if a.wstat:
        e("s_mov_b32 s10, 0"); e("s_mov_b32 s11, 0")
    e("s_barrier")
    if a.split:
        e(f"s_and_b32 s{S_P1}, s3, 30")
        e(f"s_lshl_b32 s{S_P1}, s{S_P1}, 2")
    else:
        e(f"s_lshl_b32 s{S_P1}, s3, 2")
    e(f"v_lshlrev_b32 v{V_FLAG}, 2, v{V_LANE}")
    e(f"v_add_u32 v{V_FLAG}, {LDS_FLAG}, v{V_FLAG}")
    e(f"s_sub_u32 s{S_CI}, s{S_W}, 1")
    e(f"s_lshl_b32 s{S_LB}, s{S_CI}, 15")
    e(f"v_lshrrev_b32 v3, 5, v{V_LANE}")
    e(f"v_and_b32 v4, 31, v{V_LANE}")
    e(f"s_add_u32 s{S_ROLE}, s{S_CI}, {2 - a.clast}")
    if a.clast != 2:
        e(f"s_cmp_ge_u32 s{S_ROLE}, 3")
        e(f"s_cselect_b32 s{S_T1}, 3, 0")
        e(f"s_sub_u32 s{S_ROLE}, s{S_ROLE}, s{S_T1}")
    e(f"s_lshl_b32 s{S_T1}, s{S_ROLE}, 8")
    e(f"s_add_u32 s{S_T1}, s{S_T1}, {LDS_FIN - LDS_FLAG}")
    e(f"v_add_u32 v{V_FIN}, s{S_T1}, v{V_FLAG}")
    e("v_lshrrev_b32 v48, 2, v47")
    e("v_lshl_add_u32 v49, v3, 2, v48")
    e("v_lshlrev_b32 v49, 8, v49")
    e("v_and_b32 v50, 1, v46")
    e("v_lshl_add_u32 v49, v50, 5, v49")
    e(f"v_and_b32 v50, 3, v{V_LANE}")
    e("v_lshl_add_u32 v49, v50, 3, v49")
    e(f"v_add_u32 v49, s{S_LB}, v49")
    e("v_add_u32 v49, 8192, v49")
    for db in range(4):
        e(f"v_xor_b32 v50, {db}, v48")
        e(f"v_lshl_add_u32 v{V_VA+db}, v50, 6, v49")
    e("s_waitcnt lgkmcnt(0)")
    if a.split: e(f"s_load_dwordx2 {sr(S_CL4,2)}, s[24:25], s{S_P1}")
    else: e(f"s_load_dword s{S_CL}, s[24:25], s{S_P1}")
    e(f"s_mov_b32 s{S_XSRD}, s26"); e(f"s_mov_b32 s{S_XSRD+1}, s27")
    e(f"s_mov_b32 s{S_XSRD+2}, {Q_BYTES}"); e(f"s_mov_b32 s{S_XSRD+3}, 0x20000")
    if a.split:
        e(f"s_mov_b32 s{S_KSRD}, s18"); e(f"s_mov_b32 s{S_KSRD+1}, s19")
        e(f"s_mov_b32 s{S_KSRD+2}, {KV_BYTES}"); e(f"s_mov_b32 s{S_KSRD+3}, 0x20000")
        e(f"s_mov_b32 s{S_VSRD}, s20"); e(f"s_mov_b32 s{S_VSRD+1}, s21")
        e(f"s_mov_b32 s{S_VSRD+2}, {KV_BYTES}"); e(f"s_mov_b32 s{S_VSRD+3}, 0x20000")
    e(f"s_cmp_eq_u32 s{S_ROLE}, 0")
    e(f"s_cselect_b32 s{S_T0}, 6, 12")
    reduce_setup(g, S_T0)
    e("v_and_b32 v48, 15, v4")
    e("v_xor_b32 v48, v48, v3")
    e("v_lshlrev_b32 v49, 8, v4")
    for st in range(8):
        e(f"v_xor_b32 v50, {2*st}, v48")
        e(f"v_lshl_add_u32 v50, v50, 4, v49")
        e(f"v_add_u32 v{V_KA+st}, s{S_LB}, v50")
    e(f"s_lshl_b32 s{S_T1}, s{S_W}, 8")
    e(f"v_add_u32 v{V_DONE}, s{S_T1}, v{V_FLAG}")
    e(f"v_mov_b32 v{V_R}, 0x{f32bits(R):08x}")
    e(f"s_mov_b32 s{S_C}, 0x{f32bits(c):08x}")
    e(f"s_mov_b32 s{S_C2}, s{S_C}"); e(f"s_mov_b32 s{S_C2+1}, s{S_C}")
    e("s_waitcnt lgkmcnt(0)")
    if a.split:
        decide(g)
        e(f"s_mov_b32 s{S_IMP}, 0")
    else:
        e(f"s_max_i32 s{S_CL}, s{S_CL}, 0")
        e(f"s_min_i32 s{S_CL}, s{S_CL}, 2048")
        e(f"s_mov_b32 s{S_TB}, 0")
        e(f"s_mov_b32 s{S_QSRC}, {LDS_Q}")
    if a.split:
        e(f"s_lshl_b32 s{S_T1}, s{S_SLOT}, 2")
        e(f"v_mov_b32 v62, s{S_T1}")
        e(f"s_lshl_b32 s{S_T1}, s{S_MODE}, 2")
        e(f"s_add_u32 s{S_T1}, s{S_T1}, s{S_ROLE}")
        e(f"s_cmp_eq_u32 s{S_T1}, 10")
        e(f"s_addc_u32 s{S_IMP}, 0, 0")
    g.lab("L_cjob")
    job_common(g)
    e(f"v_mov_b32 v{V_M}, 0x{f32bits(-3.0e38):08x}")
    e(f"v_mov_b32 v{V_L0}, 0"); e(f"v_mov_b32 v{V_L1}, 0")
    e(f"s_sub_u32 s{S_T1}, s{S_QSRC}, s{S_LB}")
    for st in range(8): e(f"v_add_u32 v{V_S+st}, s{S_T1}, v{V_KA+st}")
    for r in range(0, 128, 2):
        e(f"v_pk_mul_f32 {vr(V_O+r,2)}, {vr(V_L0,2)}, {vr(V_L0,2)}")
    e(f"s_add_u32 s{S_NVB}, s{S_NT}, 3")
    e(f"s_sub_u32 s{S_JM}, s{S_NT}, 1")
    e(f"s_sub_u32 s{S_T1}, s{S_TE}, 1")
    e(f"s_lshl_b32 s{S_T1}, s{S_T1}, 5")
    e(f"s_sub_i32 s{S_REM}, s{S_CL}, s{S_T1}")
    e(f"s_cmp_eq_u32 s{S_CL}, 0")
    e(f"s_cselect_b32 s{S_JM}, 0, s{S_JM}")
    e(f"v_lshrrev_b32 v48, 5, v{V_LANE}")
    e("v_lshlrev_b32 v48, 2, v48")
    e(f"v_sub_u32 v{V_REM}, s{S_REM}, v48")
    e(f"s_sub_u32 s{S_I}, s{S_CI}, s{S_SH}")
    e(f"s_cmp_lt_u32 s{S_CI}, s{S_SH}")
    e(f"s_cselect_b32 s{S_T1}, 3, 0")
    e(f"s_addc_u32 s{S_PAR}, 0, 0")
    e(f"s_add_u32 s{S_I}, s{S_I}, s{S_T1}")
    e(f"v_mov_b32 v{V_CNT}, s{S_PAR}")
    e(f"ds_write_b32 v{V_DONE}, v{V_CNT}")
    e(f"s_lshl_b32 s{S_T1}, s{S_PAR}, 1")
    e(f"s_add_u32 s{S_T1}, s{S_T1}, 1")
    e(f"v_mov_b32 v{V_CNT}, s{S_T1}")
    e(f"s_cmp_ge_u32 s{S_I}, s{S_NT}")
    e("s_cbranch_scc1 L_notiles")
    e(f"s_mov_b32 s{S_H}, 0")
    e(f"s_mov_b32 s{S_NEED}, 2")
    poll(g, "q")
    for qh in range(2):
        for st in range(8):
            e(f"ds_read_b128 {ar(A_Q+(qh*8+st)*4,4)}, v{V_S+st} offset:{qh*8192}")
        if qh == 0: e("s_waitcnt lgkmcnt(4)")
    need_k_first(g)
    e("s_waitcnt lgkmcnt(0)")
    poll(g, "k0")
    e(f"s_cmp_eq_u32 s{S_PAR}, 1")
    e("s_cbranch_scc1 L_start_b")
    first_tile(g, 0, "fa")
    g.lab("L_loop")
    iteration(g, 0, "a")
    g.lab("L_loop_b")
    iteration(g, 1, "b")
    e("s_branch L_loop")
    g.lab("L_start_b")
    first_tile(g, 1, "fb")
    e("s_branch L_loop_b")
    last_tile(g, 0, "a")
    last_tile(g, 1, "b")
    g.o += g.ool; g.ool = []
    g.lab("L_notiles")
    write_stats(g)
    ew_addrs(g)
    for idx in range(32): e(owrite(idx))
    g.lab("L_fin2")
    e(f"v_mov_b32 v{V_CNT}, 2")
    e("s_waitcnt lgkmcnt(0)")
    e(f"ds_write_b32 v{V_FIN}, v{V_CNT}")
    stamp(g, 4)
    e(f"s_cmp_eq_u32 s{S_ROLE}, 0")
    e("s_cbranch_scc1 L_red_a")
    e(f"s_cmp_eq_u32 s{S_ROLE}, 2")
    e("s_cbranch_scc1 L_red_c")
    if a.split:
        e(f"s_cmp_eq_u32 s{S_MODE}, 1")
        e("s_cbranch_scc1 L_reduce_b1")
        e(f"s_cmp_eq_u32 s{S_MODE}, 2")
        e("s_cbranch_scc1 L_reduce_b2")
    reduce_code(g, 4, "b", 0)
    g.lab("L_red_a")
    if a.split:
        e(f"s_cmp_eq_u32 s{S_MODE}, 1")
        e("s_cbranch_scc1 L_reduce_a1")
        e(f"s_cmp_eq_u32 s{S_MODE}, 2")
        e("s_cbranch_scc1 L_reduce_a2")
    reduce_code(g, 6, "a", 0)
    if a.split:
        for m in (1, 2):
            reduce_code(g, 4, "b", m)
            reduce_code(g, 6, "a", m)
    g.lab("L_red_c")
    if a.split:
        e(f"s_cmp_lg_u32 s{S_MODE}, 1")
        e("s_cbranch_scc1 L_out")
        g.lab("L_jobend")
        e("s_waitcnt vmcnt(0) lgkmcnt(0)")
        e("s_barrier")
        next_job(g)
        e(f"s_cmp_lg_u32 s{S_W}, 0")
        e("s_cbranch_scc1 L_cnext")
        e(f"s_lshl_b32 s{S_T1}, s{S_SLOT}, 2")
        e(f"v_mov_b32 v48, s{S_T1}")
        e("v_mov_b32 v49, 1")
        e("v_mov_b32 v50, 0")
        e("v_mov_b32 v51, 2")
        e("s_mov_b64 exec, 1")
        e("global_store_dword v48, v49, s[28:29] sc1")
        e("s_mov_b64 exec, -1")
        e(f"ds_write_b32 v{V_FLAG}, v51")
        for k in range(1, 7): e(f"ds_write_b32 v{V_FLAG}, v50 offset:{256*k}")
        e(f"v_mov_b32 v{V_BT}, v{V_BT2}"); e(f"v_mov_b32 v{V_BT+1}, v{V_BT2+1}")
        for k in range(8): e(f"v_subrev_u32 v{V_DK+k}, s{S_HD}, v{V_DK+k}")
        e(f"v_mov_b32 v{V_PT}, 0")
        job_common(g)
        e("s_waitcnt lgkmcnt(0)")
        e("s_barrier")
        e("s_branch L_ljob")
        g.lab("L_cnext")
        e("s_barrier")
        e("s_branch L_cjob")
    g.lab("L_out")
    if a.dbg:
        e(f"s_cmp_lg_u32 s{S_W}, 0"); e("s_cbranch_scc1 L_end")
        e("s_waitcnt vmcnt(0)")
        e("s_memrealtime s[98:99]")
        e("s_getreg_b32 s100, hwreg(HW_REG_XCC_ID)")
        e("s_waitcnt lgkmcnt(0)")
        e("s_mov_b64 exec, 1")
        for r in (90, 92, 94, 96, 98): e(f"s_sub_u32 s{r}, s{r}, s88")
        e("s_and_b32 s100, s100, 15")
        def put(idx, sreg):
            e(f"v_mov_b32 v4, s{sreg}"); e(f"global_store_dword v2, v4, s[28:29] offset:{4*idx}"); e("s_nop 1")
        e("v_mov_b32 v2, 0")
        e("s_cmp_eq_u32 s2, 88"); e("s_cbranch_scc0 L_d1")
        put(8, 90); put(9, 92); put(10, 94); put(11, 100)
        g.lab("L_d1")
        e("s_cmp_eq_u32 s2, 200"); e("s_cbranch_scc0 L_d2")
        put(12, 96); put(13, 94)
        g.lab("L_d2")
        e("s_cmp_eq_u32 s2, 130"); e("s_cbranch_scc0 L_d3")
        put(14, 96); put(15, 98)
        g.lab("L_d3")
        e("s_lshr_b32 s101, s2, 3"); e("s_cmp_eq_u32 s101, 11"); e("s_cbranch_scc0 L_end")
        e("s_and_b32 s101, s2, 7"); e("s_lshl_b32 s101, s101, 2"); e("v_mov_b32 v2, s101")
        put(0, 98)
    elif stamps:
        e("s_waitcnt vmcnt(0)")
        e("s_memrealtime s[98:99]")
        if a.wstat:
            e("s_mov_b32 s90, s10"); e("s_mov_b32 s91, 0"); e("s_mov_b32 s92, s11"); e("s_mov_b32 s93, 0")
        e("s_getreg_b32 s100, hwreg(HW_REG_XCC_ID)")
        e("s_getreg_b32 s101, hwreg(HW_REG_HW_ID)")
        e("s_lshl_b32 s3, s2, 2")
        e(f"s_add_u32 s3, s3, s{S_W}")
        e("s_lshl_b32 s3, s3, 6")
        e("v_mov_b32 v2, s3")
        e("s_waitcnt lgkmcnt(0)")
        for k in range(6):
            e(f"v_mov_b32 v4, s{88+2*k}")
            e(f"v_mov_b32 v5, s{89+2*k}")
            e(f"global_store_dwordx2 v2, v[4:5], s[30:31] offset:{8*k}")
            e("s_nop 1")
        e("v_mov_b32 v4, 0"); e("v_mov_b32 v5, 0")
        e("global_store_dwordx2 v2, v[4:5], s[30:31] offset:48")
        e("s_nop 1")
        e("v_mov_b32 v4, s100"); e("v_mov_b32 v5, s101")
        e("global_store_dwordx2 v2, v[4:5], s[30:31] offset:56")
    if spin:
        e(f"s_add_u32 s88, s88, {spin*100}")
        e("s_addc_u32 s89, s89, 0")
        g.lab("L_spin")
        e("s_memrealtime s[90:91]")
        e("s_waitcnt lgkmcnt(0)")
        e("s_sub_u32 s92, s90, s88")
        e("s_subb_u32 s93, s91, s89")
        e("s_cmp_lt_i32 s93, 0")
        e("s_cbranch_scc1 L_spin")
    g.lab("L_end")
    e("s_endpgm")
    out += g.o
    out += ['.section .rodata,"a"', ".p2align 6", f".amdhsa_kernel {NAME}",
        "  .amdhsa_next_free_vgpr 384", "  .amdhsa_next_free_sgpr 102", "  .amdhsa_accum_offset 256",
        "  .amdhsa_group_segment_fixed_size 0", "  .amdhsa_kernarg_size 64", "  .amdhsa_user_sgpr_count 2",
        "  .amdhsa_user_sgpr_kernarg_segment_ptr 1", "  .amdhsa_system_sgpr_workgroup_id_x 1",
        ".end_amdhsa_kernel", ""]
    return "\n".join(out)

def parse():
    ap = argparse.ArgumentParser()
    ap.add_argument("-L", type=int, default=20)
    ap.add_argument("--lin", default="")
    ap.add_argument("--nt", default="nt")
    ap.add_argument("--bonus", type=int, default=0)
    ap.add_argument("--clast", type=int, default=2)
    ap.add_argument("--lead", type=int, default=5)
    ap.add_argument("--tab", default="")
    ap.add_argument("--res", type=int, default=2)
    ap.add_argument("--tf", type=float, default=1.0)
    ap.add_argument("--tmax", type=int, default=32)
    ap.add_argument("--dry", type=int, default=0)
    ap.add_argument("--pf", type=int, default=2)
    ap.add_argument("--theta", type=int, default=1850)
    ap.add_argument("--ahead", type=int, default=10)
    ap.add_argument("--pstep", type=int, default=3)
    ap.add_argument("--pfirst", type=int, default=10)
    ap.add_argument("--lv", type=int, default=40)
    ap.add_argument("--split", type=int, default=0)
    ap.add_argument("--t0", type=int, default=56)
    ap.add_argument("--thetal", type=int, default=1800)
    ap.add_argument("--hs", type=int, default=280)
    ap.add_argument("--impat", type=int, default=18)
    ap.add_argument("--burst", type=int, default=4)
    ap.add_argument("--hmap", type=int, default=2)
    ap.add_argument("--dbg", action="store_true")
    ap.add_argument("--tlb", type=int, default=0)
    ap.add_argument("--tlbn", type=int, default=2)
    ap.add_argument("--hperm", default="76345210")
    ap.add_argument("--fine", type=float, default=19)
    ap.add_argument("--hpol", default="sc1")
    ap.add_argument("--cheat", type=int, default=0)
    ap.add_argument("--sigma", type=int, default=1700)
    ap.add_argument("--hb", type=int, default=150)
    ap.add_argument("--spin", type=int, default=0)
    ap.add_argument("--stamps", action="store_true")
    ap.add_argument("--estamps", action="store_true")
    ap.add_argument("--noload", action="store_true")
    ap.add_argument("--wstat", action="store_true")
    ap.add_argument("--stpol", default="")
    ap.add_argument("-o", default="standalone__paged_block_table_kv_pagedattention__sampling.s")
    a = ap.parse_args()
    if a.tab:
        a.table = [tuple(int(y) for y in x.split(":")) for x in a.tab.split(",")]
        a.table[0] = (0, a.table[0][1])
    elif a.lin:
        pts = [float(x) for x in a.lin.split(",")]
        tab = []
        for cl in range(1024, 2049):
            u = (cl - 1024) / 1024.0 * (len(pts) - 1)
            k = min(int(u), len(pts) - 2)
            Lf = pts[k] + (pts[k+1] - pts[k]) * (u - k)
            res = 4 if Lf < a.fine else a.res
            L = int(round(res * Lf)) * (4 // res)
            L = max(8, min(160, L))
            if not tab or tab[-1][1] < L: tab.append((cl, L))
        tab[0] = (0, tab[0][1])
        a.table = tab
    else:
        a.table = [(0, 4 * a.L)]
    a.table.append((4096, 4 * a.lv))
    assert not a.split or a.theta > 32 * (a.t0 + 2)
    return a

if __name__ == "__main__":
    a = parse()
    LEAD = a.lead
    open(a.o, "w").write(build(a))
```

```python
import sys, struct, math, argparse

NAME = "standalone__paged_block_table_kv_pagedattention__sampling_kernel"
KV_BYTES = 4100 * 32768
Q_BYTES = 32 * 32 * 16 * 128 * 2
LEAD = 6

def f32bits(x): return struct.unpack("<I", struct.pack("<f", x))[0]

class Gen:
    def __init__(self, a): self.o = []; self.a = a; self.ool = []
    def e(self, s): self.o.append("    " + s)
    def lab(self, s): self.o.append(s + ":")
    def c(self, s): self.o.append("    ; " + s)

LDS_Q = 98304
LDS_FLAG = 114688
LDS_DONE = LDS_FLAG + 256
LDS_FIN = LDS_FLAG + 1024
LDS_STAT = LDS_FLAG + 2048
LDS_G = LDS_STAT + 2048
LDS_Q2 = LDS_STAT + 3072
LDS_TOTAL = LDS_Q2 + 16384
LDS_NOSPLIT = LDS_Q2

S_KSRD = 4; S_VSRD = 8; S_XSRD = 12; S_BSRD = 76
S_C2 = 38; S_PAR = 47
S_CL4 = 40; S_KEY4 = 44; S_WSRD = 48
S_MODE, S_TB, S_CLO, S_HD, S_SLOT, S_QOV, S_SH, S_NVB, S_KEY, S_QSRC, S_IMP, S_CLV = 52, 53, 54, 55, 56, 57, 58, 59, 60, 61, 62, 63
S_TE = 77; S_G0 = 76; S_CUT = 46
V_BT2 = 62; V_REM = 28
S_P2, S_P3, S_J, S_LBV, S_CV, S_NV = 34, 35, 36, 37, 38, 39
S_CL, S_CLE, S_W, S_NT, S_NP, S_JM, S_REM, S_H = 64, 65, 66, 67, 68, 69, 70, 71
S_NEED, S_C, S_LB, S_I = 72, 73, 74, 75
S_DB, S_DC, S_OA, S_OB = 76, 77, 78, 79
S_P0, S_P1, S_T0, S_T1, S_T2 = 80, 81, 82, 83, 84
S_QO0, S_ROLE, S_CI, S_N = 85, 86, 87, 70
S_NK = S_N; S_FIRST = 71
V_LANE = 1
V_KA = 8; V_VA = 16
V_DK = 8; V_DV = 12; V_DQ = 16; V_BT = 20
V_FLAG = 22; V_CNT = 23; V_DONE = 24; V_PT = 25; V_FIN = 26
V_R = 27; V_M = 29; V_L0, V_L1 = 30, 31
V_T0, V_T1 = 32, 33
V_MA, V_MB = 34, 36
V_AL = [(38, 40), (42, 44)]
V_RA = 52; V_BP = 57; V_SA = 58; V_FP = 59; V_OV = 60
S_F = 40
V_PP = [64, 80]; V_S = 96; V_O = 128
V_EW = 96
A_Q = 0; A_K = 64; A_V = 96

def vr(b, n): return f"v[{b}:{b+n-1}]"
def ar(b, n): return f"a[{b}:{b+n-1}]"
def sr(b, n): return f"s[{b}:{b+n-1}]"

def poll(g, tag, pre=False):
    if pre:
        g.e("s_waitcnt lgkmcnt(0)")
        g.e(f"v_readfirstlane_b32 s{S_H}, v{V_PT}")
    g.e(f"s_cmp_ge_i32 s{S_H}, s{S_NEED}")
    g.e(f"s_cbranch_scc0 L_poll_{tag}")
    g.lab(f"L_ok_{tag}")
    if g.a.wstat:
        acc = 10 if tag[0] == "k" else 11
        g.ool += [f"L_poll_{tag}:", "    s_memtime s[8:9]", f"L_poll2_{tag}:",
            f"    ds_read_b32 v{V_PT}, v{V_FLAG}", "    s_waitcnt lgkmcnt(0)",
            f"    v_readfirstlane_b32 s{S_H}, v{V_PT}", f"    s_cmp_ge_i32 s{S_H}, s{S_NEED}",
            f"    s_cbranch_scc0 L_poll2_{tag}", "    s_memtime s[100:101]", "    s_waitcnt lgkmcnt(0)",
            "    s_sub_u32 s100, s100, s8", f"    s_add_u32 s{acc}, s{acc}, s100", f"    s_branch L_ok_{tag}"]
        return
    g.ool += [f"L_poll_{tag}:",
        f"    ds_read_b32 v{V_PT}, v{V_FLAG}",
        "    s_waitcnt lgkmcnt(0)",
        f"    v_readfirstlane_b32 s{S_H}, v{V_PT}",
        f"    s_cmp_ge_i32 s{S_H}, s{S_NEED}",
        f"    s_cbranch_scc1 L_ok_{tag}",
        f"    s_branch L_poll_{tag}"]

def need_k_first(g):
    g.e(f"s_lshl_b32 s{S_NEED}, s{S_I}, 1")
    g.e(f"s_add_i32 s{S_NEED}, s{S_NEED}, {3 - LEAD}")
    g.e(f"s_add_u32 s{S_T1}, s{S_I}, 3")
    g.e(f"s_max_i32 s{S_NEED}, s{S_NEED}, s{S_T1}")
def need_k_next():
    return [f"s_lshl_b32 s{S_NEED}, s{S_I}, 1", f"s_add_i32 s{S_NEED}, s{S_NEED}, {9 - LEAD}",
            f"s_add_u32 s{S_T1}, s{S_I}, 6", f"s_max_i32 s{S_NEED}, s{S_NEED}, s{S_T1}"]
def need_v():
    return [f"s_lshl_b32 s{S_NEED}, s{S_I}, 1", f"s_add_u32 s{S_NEED}, s{S_NEED}, {4 + LEAD}",
            f"s_add_u32 s{S_T1}, s{S_I}, s{S_NVB}", f"s_min_i32 s{S_NEED}, s{S_NEED}, s{S_T1}"]

def k_reads(e): return [f"ds_read_b128 {ar(A_K+4*st,4)}, v{V_KA+st} offset:{e*16384}" for st in range(8)]
def v_reads(e):
    return [f"ds_read_b64_tr_b16 {ar(A_V+(db*2+ts)*4+2*u,2)}, v{V_VA+db} offset:{e*16384+ts*4096+u*2048}"
            for db in range(4) for ts in range(2) for u in range(2)]
def qk(st, qh):
    cc = "0" if st == 0 else vr(V_S+16*qh, 16)
    return f"v_mfma_f32_32x32x16_bf16 {vr(V_S+16*qh,16)}, {ar(A_K+4*st,4)}, {ar(A_Q+(qh*8+st)*4,4)}, {cc}"
def pv(e, db, ts, qh):
    o = vr(V_O + (db*2+qh)*16, 16)
    return f"v_mfma_f32_32x32x16_bf16 {o}, {ar(A_V+(db*2+ts)*4,4)}, {vr(V_PP[e]+(qh*2+ts)*4,4)}, {o}"
def owrite(idx):
    db = idx >> 3; jj = idx & 3
    return f"ds_write_b128 v{V_EW + 4*db + jj}, {vr(V_O+4*idx,4)} offset:{idx*1024}"
def resc(e, db, pk=False):
    out = []
    for qh in range(2):
        al = V_AL[e][qh]
        if pk:
            for k in range(0, 16, 2):
                r = V_O + (db*2+qh)*16 + k
                out.append(f"v_pk_mul_f32 {vr(r,2)}, {vr(r,2)}, {vr(al,2)} op_sel_hi:[1,0]")
        else:
            for k in range(16):
                r = V_O + (db*2+qh)*16 + k
                out.append(f"v_mul_f32 v{r}, v{r}, v{al}")
    return out
def lsum(e):
    s0, s1 = V_S, V_S + 16
    aa, ab = V_AL[e]
    o = [f"v_pk_add_f32 v[48:49], {vr(s0,2)}, {vr(s0+2,2)}", f"v_pk_add_f32 v[50:51], {vr(s1,2)}, {vr(s1+2,2)}"]
    for k in range(4, 16, 2):
        o.append(f"v_pk_add_f32 v[48:49], v[48:49], {vr(s0+k,2)}")
        o.append(f"v_pk_add_f32 v[50:51], v[50:51], {vr(s1+k,2)}")
    o += [f"v_fma_f32 v{V_L0}, v{V_L0}, v{aa}, v48", f"v_fma_f32 v{V_L1}, v{V_L1}, v{ab}, v50",
          f"v_add_f32 v{V_L0}, v{V_L0}, v49", f"v_add_f32 v{V_L1}, v{V_L1}, v51"]
    return o
def ew_addrs(g):
    for f in range(16):
        g.e(f"v_xor_b32 v48, {f}, v{V_LANE}")
        g.e(f"v_lshl_add_u32 v{V_EW+f}, v48, 4, s{S_LB}")

def qk_phase(g, fill):
    mf = [qk(st, qh) for st in range(8) for qh in range(2)]
    n = len(mf); k = 0
    for i, m in enumerate(mf):
        st = i >> 1
        if (i & 1) == 0:
            if st < 4: g.e(f"s_waitcnt lgkmcnt({7-st})")
            elif st == 4:
                g.e("s_waitcnt lgkmcnt(0)")
                g.e(f"ds_write_b32 v{V_DONE}, v{V_CNT}")
        g.e(m)
        upto = (len(fill) * (i + 1) + n - 1) // n
        while k < upto:
            g.e(fill[k]); k += 1

def softmax(g, e, tag, imask):
    aa, ab = V_AL[e]
    if imask: g.e(f"s_add_u32 s{S_T2}, s{S_I}, {imask}")
    g.e(f"s_cmp_lt_u32 s{S_T2 if imask else S_I}, s{S_JM}")
    g.e(f"s_cbranch_scc0 L_mask_{tag}")
    g.lab(f"L_nomask_{tag}")
    g.ool.append(f"L_mask_{tag}:")
    prs = ["vcc", "s[32:33]", "s[34:35]", "s[36:37]"]
    for j0 in range(0, 16, 4):
        for j in range(j0, j0 + 4):
            g.ool.append(f"    v_cmp_gt_i32 {prs[j & 3]}, v{V_REM}, {(j & 3) + 8 * (j >> 2)}")
        if True: g.ool.append("    s_nop 1")
        for j in range(j0, j0 + 4):
            for qh in range(2):
                r = V_S + 16*qh + j
                g.ool.append(f"    v_cndmask_b32 v{r}, v{V_R}, v{r}, {prs[j & 3]}")
    g.ool.append(f"    s_branch L_nomask_{tag}")
    s0, s1 = V_S, V_S + 16
    g.e(f"v_max3_f32 v{V_T0}, v{s0}, v{s0+1}, v{s0+2}")
    g.e(f"v_max3_f32 v{V_T1}, v{s1}, v{s1+1}, v{s1+2}")
    for k in range(3, 15, 2):
        g.e(f"v_max3_f32 v{V_T0}, v{V_T0}, v{s0+k}, v{s0+k+1}")
        g.e(f"v_max3_f32 v{V_T1}, v{V_T1}, v{s1+k}, v{s1+k+1}")
    g.e(f"v_max_f32 v{V_T0}, v{V_T0}, v{s0+15}")
    g.e(f"v_max_f32 v{V_T1}, v{V_T1}, v{s1+15}")
    g.e(f"v_add_u32 v{V_CNT}, 1, v{V_CNT}")
    g.e("s_nop 0")
    g.e(f"v_permlane32_swap_b32 v{V_T0}, v{V_T1}")
    g.e(f"v_max_f32 v{V_T0}, v{V_T0}, v{V_T1}")
    g.e(f"v_mul_f32 v{V_T0}, s{S_C}, v{V_T0}")
    g.e(f"v_max_f32 v{V_MA}, v{V_M}, v{V_T0}")
    g.e(f"v_sub_f32 v{V_T1}, v{V_M}, v{V_MA}")
    g.e(f"v_mov_b32 v{V_MB}, v{V_MA}")
    g.e(f"v_exp_f32 v{aa}, v{V_T1}")
    g.e(f"v_mov_b32 v{V_M}, v{V_MA}")
    g.e(f"v_permlane32_swap_b32 v{V_MA}, v{V_MB}")
    g.e(f"v_mov_b32 v{ab}, v{aa}")
    for j in range(0, 16, 2):
        for qh in range(2):
            r = V_S + 16*qh + j
            m = V_MA if qh == 0 else V_MB
            g.e(f"v_pk_fma_f32 {vr(r,2)}, {vr(r,2)}, {sr(S_C2,2)}, {vr(m,2)} op_sel_hi:[1,1,0] neg_lo:[0,0,1] neg_hi:[0,0,1]")
        if j == 0: g.e(f"v_permlane32_swap_b32 v{aa}, v{ab}")
    for j in range(16):
        for qh in range(2):
            r = V_S + 16*qh + j
            g.e(f"v_exp_f32 v{r}, v{r}")
    g.e(f"ds_read_b32 v{V_PT}, v{V_FLAG}")
    for ts in range(2):
        for r in range(4):
            for qh in range(2):
                src = V_S + 16*qh + 8*ts + 2*r
                g.e(f"v_cvt_pk_bf16_f32 v{V_PP[e] + (qh*2+ts)*4 + r}, v{src}, v{src+1}")

def iteration(g, e, tag):
    x = g.e
    g.c(f"---- iteration parity {e}")
    x(f"s_add_u32 s{S_T1}, s{S_I}, 3")
    x(f"s_cmp_ge_u32 s{S_T1}, s{S_NT}")
    x(f"s_cbranch_scc1 L_last_{tag}")
    poll(g, "k" + tag, True)
    for r in k_reads(1 - e): x(r)
    for r in resc(e, 0, True): x(r)
    qk_phase(g, resc(e, 1) + resc(e, 2) + resc(e, 3)[:26])
    for r in resc(e, 3)[26:]: x(r)
    for r in need_v(): x(r)
    softmax(g, 1 - e, tag, 3)
    poll(g, "v" + tag, True)
    rd = v_reads(e)
    for r in rd[:12]: x(r)
    ls = lsum(1 - e)
    for r in ls[:10]: x(r)
    x("s_waitcnt lgkmcnt(10)")
    for r in rd[12:]: x(r)
    for r in ls[10:]: x(r)
    x("s_waitcnt lgkmcnt(12)")
    for ts in range(2):
        for qh in range(2): x(pv(e, 0, ts, qh))
    x("s_waitcnt lgkmcnt(8)")
    for ts in range(2):
        for qh in range(2): x(pv(e, 1, ts, qh))
    x("s_waitcnt lgkmcnt(0)")
    x(f"ds_write_b32 v{V_DONE}, v{V_CNT}")
    x(f"s_add_u32 s{S_I}, s{S_I}, 3")
    for ts in range(2):
        for qh in range(2): x(pv(e, 2, ts, qh))
    x(f"v_add_u32 v{V_CNT}, 1, v{V_CNT}")
    for r in need_k_next(): x(r)
    x(pv(e, 3, 0, 0))
    if g.a.split:
      x(f"s_cmp_lg_u32 s{S_IMP}, 0")
      x(f"s_cbranch_scc1 L_imp_{tag}")
      g.lab(f"L_impr_{tag}")
      g.ool += [f"L_imp_{tag}:",
        f"    s_cmp_eq_u32 s{S_IMP}, 2",
        f"    s_cbranch_scc1 L_imp2_{tag}",
        f"    s_add_u32 s{S_T2}, s{S_I}, {g.a.impat}",
        f"    s_cmp_lt_u32 s{S_T2}, s{S_NT}",
        f"    s_cbranch_scc1 L_impr_{tag}",
        f"    global_load_dword v63, v62, s[28:29] sc1",
        f"    s_add_u32 s{S_IMP}, s{S_IMP}, 1",
        f"    s_branch L_impr_{tag}",
        f"L_imp2_{tag}:",
        "    s_waitcnt vmcnt(0)",
        f"    v_readfirstlane_b32 s{S_T2}, v63",
        f"    s_cmp_eq_u32 s{S_T2}, 0",
        f"    s_addc_u32 s{S_IMP}, 0, 0"] + ([
        f"    s_cmp_lg_u32 s{S_IMP}, 0",
        f"    s_cbranch_scc1 L_impr_{tag}",
        "    buffer_inv sc1"] if g.a.rel else []) + [
        f"    s_branch L_impr_{tag}"]
    x(pv(e, 3, 0, 1))
    x(f"ds_read_b32 v{V_PT}, v{V_FLAG}")
    x(pv(e, 3, 1, 0)); x(pv(e, 3, 1, 1))

def write_stats(g):
    e = g.e
    e(f"v_permlane32_swap_b32 v{V_L0}, v{V_L1}")
    e(f"v_lshlrev_b32 v48, 3, v{V_LANE}")
    e(f"s_lshl_b32 s{S_T1}, s{S_ROLE}, 9")
    e(f"s_add_u32 s{S_T1}, s{S_T1}, {LDS_STAT}")
    e(f"v_add_u32 v49, s{S_T1}, v48")
    e(f"v_mov_b32 v50, v{V_M}")
    e(f"v_add_f32 v51, v{V_L0}, v{V_L1}")
    e("ds_write_b64 v49, v[50:51]")

def last_tile(g, e, tag):
    x = g.e
    g.lab(f"L_last_{tag}")
    if g.a.estamps: x("s_memrealtime s[90:91]")
    if g.a.split:
      x(f"s_cmp_lg_u32 s{S_IMP}, 0")
      x(f"s_cbranch_scc1 L_impb_{tag}")
      g.lab(f"L_impbr_{tag}")
      g.ool += [f"L_impb_{tag}:",
        f"    global_load_dword v63, v62, s[28:29] sc1",
        "    s_waitcnt vmcnt(0)",
        f"    v_readfirstlane_b32 s{S_T2}, v63",
        f"    s_cmp_eq_u32 s{S_T2}, 0",
        f"    s_cbranch_scc1 L_impb_{tag}"] + (["    buffer_inv sc1"] if g.a.rel else []) + [
        f"    s_branch L_impbr_{tag}"]
      if g.a.rel: x("s_waitcnt vmcnt(0)")
    write_stats(g)
    x(f"v_mov_b32 v{V_CNT}, 1")
    for r in need_v(): x(r)
    x("s_waitcnt lgkmcnt(0)")
    x(f"ds_write_b32 v{V_FIN}, v{V_CNT}")
    ew_addrs(g)
    for db in range(4):
        for r in resc(e, db, True): x(r)
    if g.a.estamps: x("s_memrealtime s[92:93]")
    poll(g, "l" + tag)
    if g.a.estamps:
        x("s_memrealtime s[94:95]"); x("s_waitcnt lgkmcnt(0)")
    rd = v_reads(e)
    for r in rd[:12]: x(r)
    x(f"v_mov_b32 v{V_CNT}, 2")
    x("s_waitcnt lgkmcnt(10)")
    x(pv(e,0,0,0))
    for r in rd[12:]: x(r)
    x("s_waitcnt lgkmcnt(12)")
    x(pv(e,0,1,0))
    x("s_waitcnt lgkmcnt(8)")
    x(pv(e,1,0,0)); x("s_nop 3"); x(pv(e,1,1,0)); x("s_nop 3")
    x("s_waitcnt lgkmcnt(0)")
    order = [db*8 + jj for db in range(4) for jj in range(4)] + [db*8 + 4 + jj for db in range(4) for jj in range(4)]
    ms = [pv(e,2,0,0), pv(e,2,1,0), pv(e,3,0,0), pv(e,3,1,0)] + [pv(e,db,ts,1) for db in range(4) for ts in range(2)]
    per = [1, 1, 1, 1, 2, 2, 2, 2, 2, 2, 2, 2]
    w = 0
    for m, n in zip(ms, per):
        x(m)
        for _ in range(n):
            x(owrite(order[w])); w += 1
            if w == 16: x(f"ds_write_b32 v{V_FIN}, v{V_CNT}")
    x(f"v_mov_b32 v{V_CNT}, 3")
    while w < 32:
        if w == 28: x("s_nop 3")
        x(owrite(order[w])); w += 1
    x("s_branch L_fin2")

def first_tile(g, e, tag):
    x = g.e
    for r in k_reads(e): x(r)
    qk_phase(g, [])
    x("s_nop 7"); x("s_nop 1")
    softmax(g, e, tag, 0)
    for r in lsum(e): x(r)
    x(f"v_add_u32 v{V_CNT}, 1, v{V_CNT}")
    for r in need_k_next(): x(r)

def stamp(g, k):
    if g.a.stamps: g.e(f"s_memrealtime s[{88+2*k}:{89+2*k}]")

def decide(g):
    e = g.e; a = g.a
    if not a.split:
        e(f"s_cmp_eq_u32 s{S_CL}, 0")
        e(f"s_cselect_b32 s{S_KEY}, 2048, s{S_CL}")
        e(f"s_bfe_u32 s{S_T0}, s{S_QO0}, 0x2000e")
        e(f"s_cmp_eq_u32 s{S_T0}, 1")
        e(f"s_cselect_b32 s{S_T2}, {a.thetal}, -1")
        e(f"s_cselect_b32 s{S_T1}, {a.bonus}, 0")
        e(f"s_cmp_ge_u32 s{S_KEY}, s{S_T2}")
        e(f"s_cselect_b32 s{S_T1}, 4096, s{S_T1}")
        e(f"s_add_u32 s{S_KEY}, s{S_KEY}, s{S_T1}")
        e(f"s_mov_b32 s{S_TB}, 0")
        e(f"s_mov_b32 s{S_QSRC}, {LDS_Q}")
        return
    assert a.hmap == 2
    for p in range(2):
        e(f"s_max_i32 s{S_CL4+p}, s{S_CL4+p}, 0")
        e(f"s_min_i32 s{S_CL4+p}, s{S_CL4+p}, 2048")
    e(f"s_bitcmp1_b32 s3, 0")
    e(f"s_cselect_b32 s{S_CLO}, s{S_CL4+1}, s{S_CL4}")
    e(f"s_cselect_b32 s{S_T1}, s{S_CL4}, s{S_CL4+1}")
    e(f"s_cmp_eq_u32 s{S_CLO}, 0")
    e(f"s_cselect_b32 s{S_KEY}, 2048, s{S_CLO}")
    e(f"s_bfe_u32 s{S_T0}, s{S_QO0}, 0x2000e")
    e(f"s_cmp_eq_u32 s{S_T0}, 1")
    e(f"s_cselect_b32 s{S_CLV}, s{S_CLO}, s{S_T1}")
    e(f"s_cselect_b32 s{S_T1}, s{S_T1}, s{S_CLO}")
    e(f"s_cselect_b32 s{S_MODE}, 2, 1")
    e(f"s_cselect_b32 s{S_T2}, {a.thetal}, -1")
    e(f"s_bitcmp1_b32 s{S_T0}, 0")
    e(f"s_cselect_b32 s{S_MODE}, s{S_MODE}, 0")
    e(f"s_cmp_lt_u32 s{S_CLV}, {a.theta}")
    e(f"s_cselect_b32 s{S_MODE}, 0, s{S_MODE}")
    e(f"s_sub_u32 s{S_T1}, s{S_T1}, 1")
    e(f"s_cmp_ge_u32 s{S_T1}, {a.sigma}")
    e(f"s_cselect_b32 s{S_MODE}, 0, s{S_MODE}")
    e(f"s_cmp_ge_u32 s{S_KEY}, s{S_T2}")
    e(f"s_cselect_b32 s{S_KEY}, 4096, s{S_KEY}")
    e(f"s_mov_b32 s{S_QSRC}, {LDS_Q}")
    e(f"s_xor_b32 s{S_T2}, s3, 1")
    e(f"s_cmp_eq_u32 s{S_MODE}, 2")
    e(f"s_cselect_b32 s{S_T2}, s3, s{S_T2}")
    e(f"s_lshl1_add_u32 s{S_QOV}, s{S_T2}, s2")
    e(f"s_and_b32 s{S_QOV}, s{S_QOV}, 7")
    e(f"s_lshr_b32 s{S_SLOT}, s{S_QOV}, 2")
    e(f"s_lshl1_add_u32 s{S_SLOT}, s{S_T2}, s{S_SLOT}")
    e(f"s_bfe_u32 s{S_HD}, s{S_QO0}, 0x3000e")
    e(f"s_sub_u32 s{S_HD}, s{S_QOV}, s{S_HD}")
    e(f"s_lshl_b32 s{S_HD}, s{S_HD}, 8")
    e(f"s_lshl3_add_u32 s{S_QOV}, s{S_T2}, s{S_QOV}")
    e(f"s_lshl_b32 s{S_QOV}, s{S_QOV}, 14")
    e(f"s_add_u32 s{S_T2}, s{S_CLV}, {31 - 32*a.t0}")
    e(f"s_lshr_b32 s{S_T2}, s{S_T2}, 5")
    e(f"s_and_b32 s{S_T2}, s{S_T2}, 63")
    e(f"s_mul_i32 s{S_CUT}, s{S_T2}, 171")
    e(f"s_lshr_b32 s{S_CUT}, s{S_CUT}, 9")
    e(f"s_mul_i32 s{S_CUT}, s{S_CUT}, 3")
    e(f"s_sub_u32 s{S_CUT}, s{S_T2}, s{S_CUT}")
    e(f"s_add_u32 s{S_CUT}, s{S_CUT}, {a.t0}")
    e(f"s_lshl_b32 s{S_T2}, s{S_CUT}, 5")
    e(f"s_sub_u32 s{S_T2}, s{S_CLV}, s{S_T2}")
    e(f"s_add_u32 s{S_T2}, s{S_T2}, s{S_KEY}")
    e(f"s_mul_i32 s{S_T2}, s{S_T2}, {a.hs}")
    e(f"s_lshr_b32 s{S_T2}, s{S_T2}, 8")
    e(f"s_cmp_eq_u32 s{S_MODE}, 1")
    e(f"s_cselect_b32 s{S_KEY}, s{S_T2}, s{S_KEY}")
    e(f"s_cselect_b32 s{S_CL}, s{S_CLV}, s{S_CLO}")
    e(f"s_cselect_b32 s{S_TB}, s{S_CUT}, 0")
    e(f"s_cselect_b32 s{S_QSRC}, {LDS_Q2}, s{S_QSRC}")

def job_common(g, first=False):
    e = g.e; a = g.a
    e(f"s_cmp_eq_u32 s{S_CL}, 0")
    e(f"s_cselect_b32 s{S_CLE}, 2048, s{S_CL}")
    e(f"s_add_u32 s{S_TE}, s{S_CLE}, 31")
    e(f"s_lshr_b32 s{S_TE}, s{S_TE}, 5")
    if a.split and not first:
        e(f"s_cmp_eq_u32 s{S_MODE}, 2")
        e(f"s_cselect_b32 s{S_TE}, s{S_CUT}, s{S_TE}")
    e(f"s_sub_u32 s{S_NT}, s{S_TE}, s{S_TB}")
    e(f"s_sub_u32 s{S_T1}, s{S_NT}, 1")
    e(f"s_mul_i32 s{S_T2}, s{S_T1}, 171")
    e(f"s_lshr_b32 s{S_T2}, s{S_T2}, 9")
    e(f"s_mul_i32 s{S_T2}, s{S_T2}, 3")
    e(f"s_sub_u32 s{S_T1}, s{S_T1}, s{S_T2}")
    e(f"s_sub_u32 s{S_SH}, {a.clast + 3}, s{S_T1}")
    e(f"s_cmp_ge_u32 s{S_SH}, 3")
    e(f"s_cselect_b32 s{S_T2}, 3, 0")
    e(f"s_sub_u32 s{S_SH}, s{S_SH}, s{S_T2}")

def next_job(g):
    e = g.e
    e(f"s_mov_b32 s{S_MODE}, 0")
    e(f"s_mov_b32 s{S_CL}, s{S_CLO}")
    e(f"s_mov_b32 s{S_TB}, 0")
    e(f"s_mov_b32 s{S_QSRC}, {LDS_Q}")

def reduce_setup(g, sg0):
    e = g.e
    cl = g.a.clast
    cA = (cl + 1) % 3
    e(f"s_mov_b32 s{S_G0}, s{sg0}")
    e("v_lshrrev_b32 v48, 2, v47")
    e("v_and_b32 v49, 3, v47")
    e("v_lshl_add_u32 v48, v48, 3, v49")
    e("v_lshlrev_b32 v48, 10, v48")
    if cA: e(f"v_add_u32 v48, {cA*32768}, v48")
    e("v_xor_b32 v49, v46, v47")
    for k in range(3):
        e(f"s_add_u32 s{S_OB}, s{sg0}, {k}")
        e(f"s_and_b32 s{S_T1}, s{S_OB}, 3")
        e(f"s_lshl_b32 s{S_T1}, s{S_T1}, 2")
        e(f"v_xor_b32 v50, s{S_T1}, v49")
        e(f"v_lshl_add_u32 v50, v50, 4, v48")
        e(f"s_bfe_u32 s{S_T2}, s{S_OB}, 0x10002")
        e(f"s_lshl_b32 s{S_T2}, s{S_T2}, 8")
        e(f"v_add_u32 v{V_RA+k}, s{S_T2}, v50")
    e(f"v_lshlrev_b32 v{V_SA}, 3, v{V_LANE}")
    e(f"v_add_u32 v{V_SA}, {LDS_STAT}, v{V_SA}")
    e(f"s_lshl_b32 s{S_T1}, s{sg0}, 6")
    e(f"s_add_u32 s{S_T1}, s{S_T1}, {LDS_G}")
    e(f"v_lshl_add_u32 v{V_BP}, v46, 4, s{S_T1}")
    e(f"v_min_u32 v{V_FP}, 3, v{V_LANE}")
    e(f"v_lshlrev_b32 v{V_FP}, 8, v{V_FP}")
    e(f"v_add_u32 v{V_FP}, {LDS_FIN}, v{V_FP}")
    e(f"s_lshl_b32 s{S_T1}, s{sg0}, 10")
    e(f"s_add_u32 s{S_OA}, s{S_QO0}, s{S_T1}")
    e(f"s_add_u32 s{S_OB}, s{S_OA}, 8192")
    e(f"v_lshlrev_b32 v{V_OV}, 4, v{V_LANE}")

def reduce_code(g, NG, tag, mode):
    e = g.e; a = g.a
    exp_stats = (tag == "d")
    tag = f"{tag}{mode}"
    cC = a.clast; cA = (cC + 1) % 3; cB = (cC + 2) % 3
    dB = ((cB - cA) * 32768) & 0xffffffff; dC = ((cC - cB) * 32768) & 0xffffffff
    dR = ((cA - cC) * 32768) & 0xffffffff
    V_G = 64; V_OUT = 96; V_ACC = 128; V_IN = 192
    ST = 32; T = 40; VP = 43; VT = 42
    H = NG // 2
    NR = 4 if mode == 2 else 3
    def kk(k): return (k % H, k // H)
    def waitfin(conds, lab):
        def test(out):
            if len(conds) == 1:
                out.append(f"s_cmp_ge_u32 s{S_F+conds[0][0]}, {conds[0][1]}")
            else:
                out.append(f"s_min_u32 s{S_T0}, s{S_F}, s{S_F+1}")
                out.append(f"s_min_u32 s{S_T0}, s{S_T0}, s{S_F+2}")
                out.append(f"s_cmp_ge_u32 s{S_T0}, 1")
        o = [f"{lab}:", f"ds_read_b32 v{VP}, v{V_FP}", "s_waitcnt lgkmcnt(0)"] + [f"v_readlane_b32 s{S_F+i}, v{VP}, {i}" for i in range(4)]
        test(o)
        if len(conds) > 1:
            for l in o: (g.lab(l[:-1]) if l.endswith(":") else e(l))
            e(f"s_cbranch_scc0 {lab}")
        else:
            t = []; test(t)
            for l in t: e(l)
            e(f"s_cbranch_scc0 {lab}")
            g.lab(f"{lab}r")
            g.ool += [l if l.endswith(":") else "    " + l for l in o] + [f"    s_cbranch_scc1 {lab}r", f"    s_branch {lab}"]
    def wsrd():
        e(f"s_mov_b32 s{S_WSRD}, s30"); e(f"s_mov_b32 s{S_WSRD+1}, s31")
        e(f"s_mov_b32 s{S_WSRD+2}, {80*65536}"); e(f"s_mov_b32 s{S_WSRD+3}, 0x20000")
        e(f"s_lshl_b32 s{S_P0}, s{S_SLOT}, 16")
        e(f"s_add_u32 s{S_P0}, s{S_P0}, 0x100000")
        e(f"s_add_u32 s{S_P1}, s{S_P0}, 32768")
        e(f"s_lshl_b32 s{S_T1}, s{S_G0}, 12")
        e(f"s_add_u32 s{S_P0}, s{S_P0}, s{S_T1}")
    def foreign():
        for k in range(NG):
            for hh in range(2):
                e(f"buffer_load_dwordx4 {vr(V_ACC+k*8+hh*4,4)}, v{V_OV}, {sr(S_WSRD,4)}, s{S_P0} offen offset:{(k&1)*2048+hh*1024} {a.hpol}")
            if k & 1: e(f"s_add_u32 s{S_P0}, s{S_P0}, 4096")
    waitfin([(0,1),(1,1),(2,1)], f"L_reduce_{tag}")
    if a.estamps and not a.e2: e("s_memrealtime s[90:91]")
    if exp_stats:
        for ro in range(3): e(f"ds_read_b64 {vr(ST+2*ro,2)}, v{V_SA} offset:{ro*512}")
        if mode:
            wsrd()
            e(f"v_lshlrev_b32 v{VT}, 3, v{V_LANE}")
        if mode == 2:
            e(f"buffer_load_dwordx2 {vr(ST+6,2)}, v{VT}, {sr(S_WSRD,4)}, s{S_P1} offen {a.hpol}")
            foreign()
        e(f"v_add_u32 v{VP}, {LDS_G}, v{V_OV}")
        e("v_mov_b32 v44, 1")
        e("s_waitcnt lgkmcnt(0)")
        e(f"v_max3_f32 v{T}, v{ST}, v{ST+2}, v{ST+4}")
        if mode == 2:
            e(f"s_waitcnt vmcnt({2*NG})")
            e(f"v_max_f32 v{T}, v{T}, v{ST+6}")
        for ro in range(NR): e(f"v_sub_f32 v{ST+2*ro}, v{ST+2*ro}, v{T}")
        for ro in range(NR): e(f"v_exp_f32 v{ST+2*ro}, v{ST+2*ro}")
        if mode == 2:
            e("s_nop 0")
            e(f"v_mul_f32 v{ST+6}, v{ST+6}, v{ST+7}")
            e(f"v_fma_f32 v{T+1}, v{ST}, v{ST+1}, v{ST+6}")
        else:
            e(f"v_mul_f32 v{T+1}, v{ST}, v{ST+1}")
        e(f"v_fma_f32 v{T+1}, v{ST+2}, v{ST+3}, v{T+1}")
        e(f"v_fma_f32 v{T+1}, v{ST+4}, v{ST+5}, v{T+1}")
        if mode == 1:
            e(f"buffer_store_dwordx2 {vr(T,2)}, v{VT}, {sr(S_WSRD,4)}, s{S_P1} offen {a.hpol}")
        e(f"v_rcp_f32 v{ST+1}, v{T+1}")
        e("s_nop 0")
        for ro in range(NR): e(f"v_mul_f32 v{48+ro}, v{ST+2*ro}, v{ST+1}")
        e(f"ds_write_b128 v{VP}, v[48:51]")
        e(f"ds_write_b32 v{V_FLAG}, v44 offset:{LDS_FIN + 768 - LDS_FLAG}")
    else:
        if mode: wsrd()
        if mode == 2: foreign()
        waitfin([(3,1)], f"L_rpg_{tag}")
    def gf(k, ro): return V_G + k*4 + ro
    for k in range(NG):
        e(f"ds_read_b128 {vr(V_G+4*k,4)}, v{V_BP} offset:{kk(k)[0]*64 + kk(k)[1]*512}")
    def pkop(op, d, s_, f, acc):
        sel = f & 1
        fr = vr(f & ~1, 2)
        if acc: e(f"v_pk_fma_f32 {vr(d,2)}, {vr(s_,2)}, {fr}, {vr(d,2)} op_sel:[0,{sel},0] op_sel_hi:[1,{sel},1]")
        else: e(f"v_pk_mul_f32 {vr(d,2)}, {vr(s_,2)}, {fr} op_sel:[0,{sel}] op_sel_hi:[1,{sel}]")
    def acck(k, ro, first):
        for x in range(0, 8, 2):
            pkop(None, V_ACC + k*8 + x, V_IN + k*8 + x, gf(k, ro), not first)
    def stage(ks, body):
        for b0 in range(0, len(ks), 6):
            kb = ks[b0:b0+6]
            e("s_waitcnt lgkmcnt(3)")
            for k in kb:
                for hh in range(2):
                    e(f"ds_read_b128 {vr(V_IN + k*8 + hh*4, 4)}, v{V_RA+kk(k)[0]} offset:{hh*512 + kk(k)[1]*4096}")
            for n, k in enumerate(kb):
                e(f"s_waitcnt lgkmcnt({2*(len(kb)-1-n)})")
                body(k)
    if mode == 2:
        e("s_waitcnt vmcnt(0) lgkmcnt(0)")
        for k in range(NG):
            for x in range(0, 8, 2): pkop(None, V_ACC + k*8 + x, V_ACC + k*8 + x, gf(k, 3), False)
    if a.e2:
        e("s_memrealtime s[90:91]"); e("s_waitcnt lgkmcnt(0)")
    waitfin([(0,3)], f"L_rpa_{tag}")
    stage(list(range(NG)), lambda k: acck(k, 0, mode != 2))
    if a.e2:
        e("s_memrealtime s[92:93]"); e("s_waitcnt lgkmcnt(0)")
    for k in range(H): e(f"v_add_u32 v{V_RA+k}, 0x{dB:x}, v{V_RA+k}")
    waitfin([(1,3)], f"L_rpb_{tag}")
    stage(list(range(NG)), lambda k: acck(k, 1, False))
    for k in range(H): e(f"v_add_u32 v{V_RA+k}, 0x{dC:x}, v{V_RA+k}")
    if a.estamps:
        e("s_memrealtime s[94:95]" if a.e2 else "s_memrealtime s[92:93]"); e("s_waitcnt lgkmcnt(0)")
    def fin(k):
        acck(k, 2, False)
        if mode == 1:
            for hh in range(2):
                e(f"buffer_store_dwordx4 {vr(V_ACC+k*8+hh*4,4)}, v{V_OV}, {sr(S_WSRD,4)}, s{S_P0} offen offset:{(k&1)*2048+hh*1024} {a.hpol}")
            if k & 1: e(f"s_add_u32 s{S_P0}, s{S_P0}, 4096")
        else:
            for x in range(4):
                e(f"v_cvt_pk_bf16_f32 v{V_OUT + k*4 + x}, v{V_ACC + k*8 + 2*x}, v{V_ACC + k*8 + 2*x + 1}")
            so = S_OA if kk(k)[1] == 0 else S_OB
            e(f"buffer_store_dwordx4 {vr(V_OUT + k*4, 4)}, v{V_OV}, {sr(S_XSRD,4)}, s{so} offen offset:{kk(k)[0]*1024} {a.stpol}")
    for half in range(2):
        waitfin([(2, 2 + half)], f"L_rpc{half}_{tag}")
        stage(list(range(half * H, half * H + H)), fin)
    if mode == 1:
        for k in range(H): e(f"v_add_u32 v{V_RA+k}, 0x{dR:x}, v{V_RA+k}")
        e("s_branch L_jobend")
    else:
        if a.estamps and not a.e2: e("s_memrealtime s[94:95]")
        e("s_branch L_out")
    g.o += g.ool; g.ool = []

def build(a):
    g = Gen(a); e = g.e
    stamps, spin = a.stamps, a.spin
    pol = (" " + a.nt) if a.nt else ""
    c = (128 ** -0.5) * math.log2(math.e)
    R = -1e9 * math.sqrt(128.0)
    hdr = open("standalone__paged_block_table_kv_pagedattention__sampling.s.ref").read().split("\n")
    head = [l for l in hdr if l.startswith(";") and "@launch" not in l and "Override launch" not in l and "grid=ceil" not in l]
    out = head + [f"; @launch grid=(256,1,1) block=(256,1,1) lds={LDS_TOTAL if a.split else LDS_NOSPLIT}",
        '.amdgcn_target "amdgcn-amd-amdhsa--gfx950"', ".text", f".globl {NAME}", ".p2align 8",
        f".type {NAME},@function", f"{NAME}:"]
    e("s_cmp_ge_u32 s2, 256")
    e("s_cbranch_scc1 L_end")
    e("s_load_dwordx16 s[16:31], s[0:1], 0")
    if spin or stamps: e("s_memrealtime s[88:89]")
    e("v_lshrrev_b32 v2, 6, v0")
    e(f"v_and_b32 v{V_LANE}, 63, v0")
    e(f"v_readfirstlane_b32 s{S_W}, v2")
    e("s_lshr_b32 s3, s2, 3")
    if a.hmap == 1: e(f"s_add_u32 s{S_T0}, s2, s3")
    elif a.hmap == 2: e(f"s_lshl1_add_u32 s{S_T0}, s3, s2")
    elif a.hmap == 3:
        e(f"s_lshl1_add_u32 s{S_T0}, s3, s2"); e(f"s_add_u32 s{S_T0}, s{S_T0}, 1")
    elif a.hmap >= 4:
        e(f"s_and_b32 s{S_T0}, s2, 7"); e(f"s_lshl_b32 s{S_T0}, s{S_T0}, 2")
        e(f"s_lshr_b32 s{S_T0}, 0x{a.hperm}, s{S_T0}")
    e(f"s_and_b32 s{S_T0}, s{S_T0}, 7")
    e(f"s_lshl3_add_u32 s{S_QO0}, s3, s{S_T0}")
    e(f"s_lshl_b32 s{S_QO0}, s{S_QO0}, 14")
    e(f"v_lshrrev_b32 v46, 4, v{V_LANE}")
    e(f"v_and_b32 v47, 15, v{V_LANE}")
    e(f"s_cmp_lg_u32 s{S_W}, 0")
    e("s_cbranch_scc1 L_consumer")
    e(f"v_lshlrev_b32 v6, 3, v{V_LANE}")
    e(f"s_lshl_b32 s{S_P0}, s3, 9")
    e(f"s_lshl_b32 s{S_P1}, s3, 2")
    e(f"s_movk_i32 s{S_BSRD+2}, 0x4000"); e(f"s_mov_b32 s{S_BSRD+3}, 0x20000")
    e(f"s_mov_b32 s{S_XSRD+2}, {Q_BYTES}"); e(f"s_mov_b32 s{S_XSRD+3}, 0x20000")
    e(f"s_mov_b32 s{S_KSRD+2}, {KV_BYTES}"); e(f"s_mov_b32 s{S_KSRD+3}, 0x20000")
    e("v_xor_b32 v52, v47, v46")
    for k in range(4):
        if k: e(f"v_xor_b32 v53, {4*k}, v52")
        e(f"v_lshlrev_b32 v{48+k}, 4, v{53 if k else 52}")
        e(f"v_lshl_add_u32 v{V_DQ+k}, v46, 8, v{48+k}")
    e("s_waitcnt lgkmcnt(0)")
    stamp(g, 1)
    e(f"s_mov_b32 s{S_BSRD}, s22"); e(f"s_mov_b32 s{S_BSRD+1}, s23")
    e(f"s_load_dword s{S_CL}, s[24:25], s{S_P1}")
    e(f"buffer_load_dwordx2 {vr(V_BT,2)}, v6, {sr(S_BSRD,4)}, s{S_P0} offen")
    e(f"s_mov_b32 s{S_XSRD}, s16"); e(f"s_mov_b32 s{S_XSRD+1}, s17")
    for gq in range(4):
        e(f"s_mov_b32 m0, {LDS_Q + gq*4096}")
        e(f"s_add_u32 s{S_T1}, s{S_QO0}, {gq*4096}")
        for k in range(4):
            e(f"buffer_load_dwordx4 v{V_DQ+k}, {sr(S_XSRD,4)}, s{S_T1} offen offset:{k*1024}{pol} lds")
    e(f"s_mov_b32 s{S_KSRD}, s18"); e(f"s_mov_b32 s{S_KSRD+1}, s19")
    e(f"s_lshl_b32 s{S_T2}, s{S_T0}, 8")
    e(f"v_lshlrev_b32 v54, 11, v46")
    e(f"v_add_u32 v54, s{S_T2}, v54")
    e(f"v_add_u32 v{V_DK}, v54, v48")
    for k in range(1, 4):
        e(f"v_add_u32 v53, {k*7168}, v54")
        e(f"v_add_u32 v{V_DK+k}, v53, v{48+k}")
    e(f"v_lshlrev_b32 v5, 1, v{V_LANE}")
    e("v_add_u32 v7, 1, v5")
    e(f"v_mov_b32 v61, {KV_BYTES}")
    e(f"s_mov_b32 s{S_TB}, 0")
    e("s_waitcnt lgkmcnt(0)")
    e(f"s_max_i32 s{S_CL}, s{S_CL}, 0")
    e(f"s_min_i32 s{S_CL}, s{S_CL}, 2048")
    job_common(g, True)
    e(f"s_add_u32 s{S_NP}, s{S_CLE}, 15")
    e(f"s_lshr_b32 s{S_NP}, s{S_NP}, 4")
    if a.noload: e(f"s_mov_b32 s{S_NP}, 0")
    e(f"v_cmp_gt_u32 vcc, s{S_NP}, v5")
    e(f"v_cmp_gt_u32 s[32:33], s{S_NP}, v7")
    e("s_waitcnt vmcnt(16)")
    stamp(g, 2)
    e(f"v_lshlrev_b32 v{V_BT}, 15, v{V_BT}")
    e(f"v_lshlrev_b32 v{V_BT+1}, 15, v{V_BT+1}")
    e(f"v_cndmask_b32 v{V_BT}, v61, v{V_BT}, vcc")
    e(f"v_cndmask_b32 v{V_BT+1}, v61, v{V_BT+1}, s[32:33]")
    def advance(si, sc, sn, sb, extra):
        e(f"s_add_u32 s{si}, s{si}, 1")
        e(f"s_add_u32 s{sc}, s{sc}, 1")
        e(f"s_add_u32 s{sb}, s{sb}, 32768")
        e(f"s_add_u32 s{S_T1}, s{sn}, 2")
        e(f"s_lshl_b32 s{S_T2}, s{S_T1}, 13")
        e(f"s_and_b32 s{S_T2}, s{S_T2}, 16384")
        if extra: e(f"s_add_u32 s{S_T2}, s{S_T2}, {extra}")
        e(f"s_cmp_eq_u32 s{sc}, 3")
        e(f"s_cselect_b32 s{sc}, 0, s{sc}")
        e(f"s_cselect_b32 s{sn}, s{S_T1}, s{sn}")
        e(f"s_cselect_b32 s{sb}, s{S_T2}, s{sb}")
    def opening(tag):
        e(f"s_lshl_b32 s{S_LB}, s{S_SH}, 15")
        e(f"s_mov_b32 s{S_J}, s{S_TB}"); e(f"s_mov_b32 s{S_CI}, s{S_SH}"); e(f"s_mov_b32 s{S_NK}, 0")
        e(f"s_min_u32 s{S_NP}, s{S_NT}, {a.burst}")
        e(f"s_add_u32 s{S_T1}, s{S_NP}, 2")
        e(f"v_mov_b32 v{V_CNT}, s{S_T1}")
        e(f"s_add_u32 s{S_NP}, s{S_NP}, s{S_TB}")
        g.lab(f"L_burst{tag}")
        e(f"v_readlane_b32 s{S_P0}, v{V_BT}, s{S_J}")
        e(f"v_readlane_b32 s{S_P1}, v{V_BT+1}, s{S_J}")
        e("s_nop 2")
        for it in range(2):
            e(f"s_add_u32 m0, s{S_LB}, {it*4096}")
            e("s_nop 0")
            for i in range(4):
                e(f"buffer_load_dwordx4 v{V_DK+i}, {sr(S_KSRD,4)}, s{S_P0 if it == 0 else S_P1} offen offset:{i*1024}{pol} lds")
        advance(S_J, S_CI, S_N, S_LB, 0)
        e(f"s_cmp_lt_u32 s{S_J}, s{S_NP}")
        e(f"s_cbranch_scc1 L_burst{tag}")
        stamp(g, 3)
        e(f"s_mov_b32 s{S_I}, s{S_TB}"); e(f"s_mov_b32 s{S_CV}, s{S_SH}"); e(f"s_mov_b32 s{S_NV}, 0")
        e(f"s_lshl_b32 s{S_LBV}, s{S_SH}, 15")
        e(f"s_add_u32 s{S_LBV}, s{S_LBV}, 8192")
    opening("0")
    if a.split:
        e(f"s_and_b32 s{S_P1}, s3, 30")
        e(f"s_lshl_b32 s{S_P1}, s{S_P1}, 2")
        e(f"s_load_dwordx2 {sr(S_CL4,2)}, s[24:25], s{S_P1}")
    e(f"v_lshlrev_b32 v{V_FLAG}, 2, v{V_LANE}")
    e(f"v_add_u32 v{V_FLAG}, {LDS_FLAG}, v{V_FLAG}")
    e("v_mov_b32 v53, 0")
    for k in range(8): e(f"ds_write_b32 v{V_FLAG}, v53 offset:{256*k}")
    e(f"s_mov_b32 s{S_VSRD}, s20"); e(f"s_mov_b32 s{S_VSRD+1}, s21")
    e(f"s_mov_b32 s{S_VSRD+2}, {KV_BYTES}"); e(f"s_mov_b32 s{S_VSRD+3}, 0x20000")
    e("v_lshlrev_b32 v53, 2, v46")
    e("v_xor_b32 v53, v47, v53")
    e(f"v_lshl_add_u32 v{V_DV}, v53, 4, v54")
    for k in range(1, 4): e(f"v_add_u32 v{V_DV+k}, {k*7168}, v{V_DV}")
    e(f"v_min_u32 v{V_DONE}, 3, v{V_LANE}")
    e(f"v_lshlrev_b32 v{V_DONE}, 8, v{V_DONE}")
    e(f"v_add_u32 v{V_FP}, {LDS_FIN}, v{V_DONE}")
    e(f"v_add_u32 v{V_DONE}, {LDS_DONE}, v{V_DONE}")
    e(f"v_mov_b32 v{V_PT}, 0")
    if a.split: e(f"v_mov_b32 v{V_BT2}, 0")
    e("s_waitcnt lgkmcnt(0)")
    e("s_barrier")
    decide(g)
    if a.split:
        e(f"s_cmp_eq_u32 s{S_MODE}, 2")
        e(f"s_cselect_b32 s{S_TE}, s{S_CUT}, s{S_TE}")
        e(f"s_sub_u32 s{S_NT}, s{S_TE}, s{S_TB}")
    cA = (a.clast + 1) % 3
    e("v_lshrrev_b32 v48, 2, v47")
    e("v_and_b32 v49, 3, v47")
    e("v_lshl_add_u32 v48, v48, 3, v49")
    e("v_lshlrev_b32 v48, 10, v48")
    e("v_mov_b32 v51, v52")
    for k in range(4):
        cst = cA*32768 + ((k >> 2) & 1) * 256
        if k & 3: e(f"v_xor_b32 v50, {4*(k&3)}, v51")
        e(f"v_lshl_add_u32 v{V_RA+k}, v{50 if k & 3 else 51}, 4, v48")
        if cst: e(f"v_add_u32 v{V_RA+k}, {cst}, v{V_RA+k}")
    e(f"v_lshlrev_b32 v{V_SA}, 3, v{V_LANE}")
    e(f"v_add_u32 v{V_SA}, {LDS_STAT}, v{V_SA}")
    e(f"v_lshlrev_b32 v{V_BP}, 4, v46")
    e(f"v_add_u32 v{V_BP}, {LDS_G}, v{V_BP}")
    e(f"v_lshlrev_b32 v{V_OV}, 4, v{V_LANE}")
    e(f"s_mov_b32 s{S_G0}, 0")
    e(f"s_mov_b32 s{S_OA}, s{S_QO0}")
    e(f"s_add_u32 s{S_OB}, s{S_QO0}, 8192")
    if a.split:
        e(f"s_cmp_eq_u32 s{S_MODE}, 1")
        e("s_cbranch_scc1 L_lhelp")
        h = ["L_lhelp:",
             f"    s_lshr_b32 s{S_T1}, s{S_QOV}, 17", f"    s_lshl_b32 s{S_T1}, s{S_T1}, 11",
             ]
        h = ["L_lhelp:", "    s_waitcnt vmcnt(24)",
             f"    s_lshr_b32 s{S_T1}, s{S_QOV}, 17", f"    s_lshl_b32 s{S_T1}, s{S_T1}, 9",
             f"    v_add_u32 v48, s{S_T1}, v6",
             f"    global_load_dwordx2 v[50:51], v48, s[22:23]"]
        for gq in range(4):
            h.append(f"    s_mov_b32 m0, {LDS_Q2 + gq*4096}")
            h.append(f"    s_add_u32 s{S_T1}, s{S_QOV}, {gq*4096}")
            for k in range(4):
                h.append(f"    buffer_load_dwordx4 v{V_DQ+k}, {sr(S_XSRD,4)}, s{S_T1} offen offset:{k*1024}{pol} lds")
        h += [f"    s_mov_b32 s{S_XSRD}, s26", f"    s_mov_b32 s{S_XSRD+1}, s27",
              f"    s_add_u32 s{S_NP}, s{S_CLV}, 15", f"    s_lshr_b32 s{S_NP}, s{S_NP}, 4",
              f"    v_cmp_gt_u32 vcc, s{S_NP}, v5", f"    v_cmp_gt_u32 s[32:33], s{S_NP}, v7",
              f"    v_mov_b32 v{V_BT2}, v{V_BT}", f"    v_mov_b32 v{V_BT2+1}, v{V_BT+1}"]
        for k in range(8): h.append(f"    v_add_u32 v{V_DK+k}, s{S_HD}, v{V_DK+k}")
        sub = Gen(a); job_common(sub); h += sub.o
        h += ["    s_waitcnt vmcnt(16)",
              "    v_lshlrev_b32 v50, 15, v50", "    v_lshlrev_b32 v51, 15, v51",
              f"    v_cndmask_b32 v{V_BT}, v61, v50, vcc", f"    v_cndmask_b32 v{V_BT+1}, v61, v51, s[32:33]",
              "    s_branch L_ljob"]
        g.ool += h
    e(f"s_mov_b32 s{S_XSRD}, s26"); e(f"s_mov_b32 s{S_XSRD+1}, s27")
    g.lab("L_lgo")
    e(f"s_min_u32 s{S_NP}, s{S_NT}, {LEAD}")
    e(f"s_add_u32 s{S_NP}, s{S_NP}, s{S_TB}")
    for (clmin, L) in reversed(a.table[1:]):
        e(f"s_cmp_ge_u32 s{S_KEY}, {clmin}")
        e(f"s_cbranch_scc1 L_var_{L}")
    def group(lims, srd, vb, sbase, sp0, sp1):
        if isinstance(lims, int): lims = [lims] * 8
        hs = [(p - lims[p] + 1) // 8 for p in range(8)]
        best = max(hs); p1 = hs.index(best); lag = -best
        for q in range(8):
            it = q >> 2; i = q & 3
            if i == 0: e(f"s_add_u32 m0, s{sbase}, {it*4096}")
            e(f"s_waitcnt vmcnt({lims[q]-1})")
            e(f"buffer_load_dwordx4 v{vb+i}, {sr(srd,4)}, s{sp0 if it == 0 else sp1} offen offset:{i*1024}{pol} lds")
            if q == p1:
                if lag:
                    e(f"v_subrev_u32 v27, {lag}, v{V_CNT}")
                    e(f"ds_write_b32 v{V_FLAG}, v27")
                else:
                    e(f"ds_write_b32 v{V_FLAG}, v{V_CNT}")
        e(f"v_add_u32 v{V_CNT}, 1, v{V_CNT}")
    for (clmin, L2) in a.table:
        base = L2 // 4; up = (L2 % 4) * 4
        lim16 = [base + 1] * up + [base] * (16 - up)
        LK = lim16[:8]; LV = lim16[8:]
        LT = min(a.tmax, max(base, int(round(L2 / 4.0 * a.tf))))
        L = L2
        g.lab(f"L_var_{L}")
        e(f"s_cmp_ge_u32 s{S_J}, s{S_NP}")
        e(f"s_cbranch_scc1 L_lp_{L}")
        g.lab(f"L_pk_{L}")
        e(f"v_readlane_b32 s{S_P0}, v{V_BT}, s{S_J}")
        e(f"v_readlane_b32 s{S_P1}, v{V_BT+1}, s{S_J}")
        e("s_nop 2")
        group(LK, S_KSRD, V_DK, S_LB, S_P0, S_P1)
        advance(S_J, S_CI, S_N, S_LB, 0)
        e(f"s_cmp_lt_u32 s{S_J}, s{S_NP}")
        e(f"s_cbranch_scc1 L_pk_{L}")
        g.lab(f"L_lp_{L}")
        e(f"s_cmp_ge_u32 s{S_J}, s{S_TE}")
        e(f"s_cbranch_scc1 L_tl_{L}")
        g.lab(f"L_lp2_{L}")
        e(f"v_readlane_b32 s{S_P2}, v{V_BT}, s{S_I}")
        e(f"v_readlane_b32 s{S_P3}, v{V_BT+1}, s{S_I}")
        e(f"v_readlane_b32 s{S_P0}, v{V_BT}, s{S_J}")
        e(f"v_readlane_b32 s{S_P1}, v{V_BT+1}, s{S_J}")
        g.lab(f"L_chk_{L}")
        e("s_waitcnt lgkmcnt(0)")
        e(f"v_readlane_b32 s{S_T1}, v{V_PT}, s{S_CI}")
        e(f"v_readlane_b32 s{S_T2}, v{V_PT}, s{S_CV}")
        e(f"ds_read_b32 v{V_PT}, v{V_DONE}")
        e(f"s_cmp_lt_u32 s{S_NV}, 4")
        e(f"s_cselect_b32 s{S_T2}, s{S_NV}, s{S_T2}")
        e(f"s_cmp_lt_u32 s{S_T2}, s{S_NV}")
        e(f"s_cbranch_scc1 L_chk_{L}")
        e(f"s_add_u32 s{S_T1}, s{S_T1}, 3")
        e(f"s_cmp_lt_u32 s{S_T1}, s{S_N}")
        e(f"s_cbranch_scc1 L_chk_{L}")
        group(LK, S_KSRD, V_DK, S_LB, S_P0, S_P1)
        advance(S_J, S_CI, S_N, S_LB, 0)
        group(LV, S_VSRD, V_DV, S_LBV, S_P2, S_P3)
        advance(S_I, S_CV, S_NV, S_LBV, 8192)
        e(f"s_cmp_lt_u32 s{S_J}, s{S_TE}")
        e(f"s_cbranch_scc1 L_lp2_{L}")
        g.lab(f"L_tl_{L}")
        e(f"v_readlane_b32 s{S_P2}, v{V_BT}, s{S_I}")
        e(f"v_readlane_b32 s{S_P3}, v{V_BT+1}, s{S_I}")
        g.lab(f"L_chv_{L}")
        e("s_waitcnt lgkmcnt(0)")
        e(f"v_readlane_b32 s{S_T2}, v{V_PT}, s{S_CV}")
        e(f"ds_read_b32 v{V_PT}, v{V_DONE}")
        e(f"s_cmp_lt_u32 s{S_NV}, 4")
        e(f"s_cselect_b32 s{S_T2}, s{S_NV}, s{S_T2}")
        e(f"s_cmp_lt_u32 s{S_T2}, s{S_NV}")
        e(f"s_cbranch_scc1 L_chv_{L}")
        group(LT, S_VSRD, V_DV, S_LBV, S_P2, S_P3)
        advance(S_I, S_CV, S_NV, S_LBV, 8192)
        e(f"s_cmp_lt_u32 s{S_I}, s{S_TE}")
        e(f"s_cbranch_scc1 L_tl_{L}")
        lag = (LT - 1) // 8
        for k in range(lag, -1, -1):
            e(f"s_waitcnt vmcnt({8*k})")
            if k:
                e(f"v_subrev_u32 v27, {k}, v{V_CNT}")
                e(f"ds_write_b32 v{V_FLAG}, v27")
            else:
                e(f"ds_write_b32 v{V_FLAG}, v{V_CNT}")
        e("s_branch L_ldone")
    g.lab("L_ldone")
    stamp(g, 4)
    e("s_branch L_red_d")
    if a.split:
        g.lab("L_ljob")
        opening("1")
        e("s_branch L_lgo")
    g.lab("L_consumer")
    if a.tlb:
        e(f"s_cmp_gt_u32 s{S_W}, {a.tlb}")
        e("s_cbranch_scc1 L_notlb")
        e(f"s_sub_u32 s{S_T1}, s{S_W}, 1")
        e(f"s_lshl_b32 s{S_T1}, s{S_T1}, 5")
        e(f"s_add_u32 s{S_T1}, s{S_T1}, s3")
        e(f"s_mul_i32 s{S_T1}, s{S_T1}, {a.tlbn}")
        e(f"v_add_u32 v2, s{S_T1}, v{V_LANE}")
        e("v_and_b32 v2, 63, v2")
        e("v_lshlrev_b32 v2, 21, v2")
        e(f"s_mov_b64 exec, {(1 << a.tlbn) - 1}")
        e("s_waitcnt lgkmcnt(0)")
        e("global_load_dword v5, v2, s[18:19] nt")
        e("global_load_dword v6, v2, s[20:21] nt")
        e("s_mov_b64 exec, -1")
        g.lab("L_notlb")
    if a.wstat:
        e("s_mov_b32 s10, 0"); e("s_mov_b32 s11, 0")
    e("s_barrier")
    if a.split:
        e(f"s_and_b32 s{S_P1}, s3, 30")
        e(f"s_lshl_b32 s{S_P1}, s{S_P1}, 2")
    else:
        e(f"s_lshl_b32 s{S_P1}, s3, 2")
    e(f"v_lshlrev_b32 v{V_FLAG}, 2, v{V_LANE}")
    e(f"v_add_u32 v{V_FLAG}, {LDS_FLAG}, v{V_FLAG}")
    e(f"s_sub_u32 s{S_CI}, s{S_W}, 1")
    e(f"s_lshl_b32 s{S_LB}, s{S_CI}, 15")
    e(f"v_lshrrev_b32 v3, 5, v{V_LANE}")
    e(f"v_and_b32 v4, 31, v{V_LANE}")
    e(f"s_add_u32 s{S_ROLE}, s{S_CI}, {2 - a.clast}")
    if a.clast != 2:
        e(f"s_cmp_ge_u32 s{S_ROLE}, 3")
        e(f"s_cselect_b32 s{S_T1}, 3, 0")
        e(f"s_sub_u32 s{S_ROLE}, s{S_ROLE}, s{S_T1}")
    e(f"s_lshl_b32 s{S_T1}, s{S_ROLE}, 8")
    e(f"s_add_u32 s{S_T1}, s{S_T1}, {LDS_FIN - LDS_FLAG}")
    e(f"v_add_u32 v{V_FIN}, s{S_T1}, v{V_FLAG}")
    e("v_lshrrev_b32 v48, 2, v47")
    e("v_lshl_add_u32 v49, v3, 2, v48")
    e("v_lshlrev_b32 v49, 8, v49")
    e("v_and_b32 v50, 1, v46")
    e("v_lshl_add_u32 v49, v50, 5, v49")
    e(f"v_and_b32 v50, 3, v{V_LANE}")
    e("v_lshl_add_u32 v49, v50, 3, v49")
    e(f"v_add_u32 v49, s{S_LB}, v49")
    e("v_add_u32 v49, 8192, v49")
    for db in range(4):
        e(f"v_xor_b32 v50, {db}, v48")
        e(f"v_lshl_add_u32 v{V_VA+db}, v50, 6, v49")
    e("s_waitcnt lgkmcnt(0)")
    if a.split: e(f"s_load_dwordx2 {sr(S_CL4,2)}, s[24:25], s{S_P1}")
    else: e(f"s_load_dword s{S_CL}, s[24:25], s{S_P1}")
    e(f"s_mov_b32 s{S_XSRD}, s26"); e(f"s_mov_b32 s{S_XSRD+1}, s27")
    e(f"s_mov_b32 s{S_XSRD+2}, {Q_BYTES}"); e(f"s_mov_b32 s{S_XSRD+3}, 0x20000")
    if a.split:
        e(f"s_mov_b32 s{S_KSRD}, s18"); e(f"s_mov_b32 s{S_KSRD+1}, s19")
        e(f"s_mov_b32 s{S_KSRD+2}, {KV_BYTES}"); e(f"s_mov_b32 s{S_KSRD+3}, 0x20000")
        e(f"s_mov_b32 s{S_VSRD}, s20"); e(f"s_mov_b32 s{S_VSRD+1}, s21")
        e(f"s_mov_b32 s{S_VSRD+2}, {KV_BYTES}"); e(f"s_mov_b32 s{S_VSRD+3}, 0x20000")
    e(f"s_cmp_eq_u32 s{S_ROLE}, 0")
    e(f"s_cselect_b32 s{S_T0}, {a.hd_}, {a.hd_ + a.ha_}")
    reduce_setup(g, S_T0)
    e("v_and_b32 v48, 15, v4")
    e("v_xor_b32 v48, v48, v3")
    e("v_lshlrev_b32 v49, 8, v4")
    for st in range(8):
        e(f"v_xor_b32 v50, {2*st}, v48")
        e(f"v_lshl_add_u32 v50, v50, 4, v49")
        e(f"v_add_u32 v{V_KA+st}, s{S_LB}, v50")
    e(f"s_lshl_b32 s{S_T1}, s{S_W}, 8")
    e(f"v_add_u32 v{V_DONE}, s{S_T1}, v{V_FLAG}")
    e(f"v_mov_b32 v{V_R}, 0x{f32bits(R):08x}")
    e(f"s_mov_b32 s{S_C}, 0x{f32bits(c):08x}")
    e(f"s_mov_b32 s{S_C2}, s{S_C}"); e(f"s_mov_b32 s{S_C2+1}, s{S_C}")
    e("s_waitcnt lgkmcnt(0)")
    if a.split:
        decide(g)
        e(f"s_mov_b32 s{S_IMP}, 0")
    else:
        e(f"s_max_i32 s{S_CL}, s{S_CL}, 0")
        e(f"s_min_i32 s{S_CL}, s{S_CL}, 2048")
        e(f"s_mov_b32 s{S_TB}, 0")
        e(f"s_mov_b32 s{S_QSRC}, {LDS_Q}")
    if a.split:
        e(f"s_lshl_b32 s{S_T1}, s{S_SLOT}, 2")
        e(f"v_mov_b32 v62, s{S_T1}")
        e(f"s_lshl_b32 s{S_T1}, s{S_MODE}, 2")
        e(f"s_add_u32 s{S_T1}, s{S_T1}, s{S_ROLE}")
        e(f"s_cmp_eq_u32 s{S_T1}, 10")
        e(f"s_addc_u32 s{S_IMP}, 0, 0")
    g.lab("L_cjob")
    job_common(g)
    e(f"v_mov_b32 v{V_M}, 0x{f32bits(-3.0e38):08x}")
    e(f"v_mov_b32 v{V_L0}, 0"); e(f"v_mov_b32 v{V_L1}, 0")
    e(f"s_sub_u32 s{S_T1}, s{S_QSRC}, s{S_LB}")
    for st in range(8): e(f"v_add_u32 v{V_S+st}, s{S_T1}, v{V_KA+st}")
    for r in range(0, 128, 2):
        e(f"v_pk_mul_f32 {vr(V_O+r,2)}, {vr(V_L0,2)}, {vr(V_L0,2)}")
    e(f"s_add_u32 s{S_NVB}, s{S_NT}, 3")
    e(f"s_sub_u32 s{S_JM}, s{S_NT}, 1")
    e(f"s_sub_u32 s{S_T1}, s{S_TE}, 1")
    e(f"s_lshl_b32 s{S_T1}, s{S_T1}, 5")
    e(f"s_sub_i32 s{S_REM}, s{S_CL}, s{S_T1}")
    e(f"s_cmp_eq_u32 s{S_CL}, 0")
    e(f"s_cselect_b32 s{S_JM}, 0, s{S_JM}")
    e(f"v_lshrrev_b32 v48, 5, v{V_LANE}")
    e("v_lshlrev_b32 v48, 2, v48")
    e(f"v_sub_u32 v{V_REM}, s{S_REM}, v48")
    e(f"s_sub_u32 s{S_I}, s{S_CI}, s{S_SH}")
    e(f"s_cmp_lt_u32 s{S_CI}, s{S_SH}")
    e(f"s_cselect_b32 s{S_T1}, 3, 0")
    e(f"s_addc_u32 s{S_PAR}, 0, 0")
    e(f"s_add_u32 s{S_I}, s{S_I}, s{S_T1}")
    e(f"v_mov_b32 v{V_CNT}, s{S_PAR}")
    e(f"ds_write_b32 v{V_DONE}, v{V_CNT}")
    e(f"s_lshl_b32 s{S_T1}, s{S_PAR}, 1")
    e(f"s_add_u32 s{S_T1}, s{S_T1}, 1")
    e(f"v_mov_b32 v{V_CNT}, s{S_T1}")
    e(f"s_cmp_ge_u32 s{S_I}, s{S_NT}")
    e("s_cbranch_scc1 L_notiles")
    e(f"s_mov_b32 s{S_H}, 0")
    e(f"s_mov_b32 s{S_NEED}, 2")
    poll(g, "q")
    for qh in range(2):
        for st in range(8):
            e(f"ds_read_b128 {ar(A_Q+(qh*8+st)*4,4)}, v{V_S+st} offset:{qh*8192}")
        if qh == 0: e("s_waitcnt lgkmcnt(4)")
    need_k_first(g)
    e("s_waitcnt lgkmcnt(0)")
    poll(g, "k0")
    e(f"s_cmp_eq_u32 s{S_PAR}, 1")
    e("s_cbranch_scc1 L_start_b")
    first_tile(g, 0, "fa")
    g.lab("L_loop")
    iteration(g, 0, "a")
    g.lab("L_loop_b")
    iteration(g, 1, "b")
    e("s_branch L_loop")
    g.lab("L_start_b")
    first_tile(g, 1, "fb")
    e("s_branch L_loop_b")
    last_tile(g, 0, "a")
    last_tile(g, 1, "b")
    g.o += g.ool; g.ool = []
    g.lab("L_notiles")
    write_stats(g)
    ew_addrs(g)
    e(f"v_mov_b32 v{V_CNT}, 3")
    for idx in range(32): e(owrite(idx))
    g.lab("L_fin2")
    e(f"ds_write_b32 v{V_FIN}, v{V_CNT}")
    stamp(g, 4)
    e(f"s_cmp_eq_u32 s{S_ROLE}, 0")
    e("s_cbranch_scc1 L_red_a")
    e(f"s_cmp_eq_u32 s{S_ROLE}, 2")
    e("s_cbranch_scc1 L_red_c")
    for (t, n) in (("b", 2*a.hb_), ("a", 2*a.ha_), ("d", 2*a.hd_)):
        if t != "b": g.lab(f"L_red_{t}")
        if a.split:
            e(f"s_cmp_eq_u32 s{S_MODE}, 1")
            e(f"s_cbranch_scc1 L_reduce_{t}1")
            e(f"s_cmp_eq_u32 s{S_MODE}, 2")
            e(f"s_cbranch_scc1 L_reduce_{t}2")
        reduce_code(g, n, t, 0)
    if a.split:
        for m in (1, 2):
            for (t, n) in (("b", 2*a.hb_), ("a", 2*a.ha_), ("d", 2*a.hd_)): reduce_code(g, n, t, m)
    g.lab("L_red_c")
    if a.split:
        e(f"s_cmp_lg_u32 s{S_MODE}, 1")
        e("s_cbranch_scc1 L_out")
        g.lab("L_jobend")
        e("s_waitcnt vmcnt(0) lgkmcnt(0)")
        e("s_barrier")
        next_job(g)
        e(f"s_cmp_lg_u32 s{S_W}, 0")
        e("s_cbranch_scc1 L_cnext")
        e(f"s_lshl_b32 s{S_T1}, s{S_SLOT}, 2")
        e(f"v_mov_b32 v48, s{S_T1}")
        e("v_mov_b32 v49, 1")
        e("v_mov_b32 v50, 0")
        e("v_mov_b32 v51, 2")
        if not a.rel:
            e("s_mov_b64 exec, 1")
            e("global_store_dword v48, v49, s[28:29] sc1")
            e("s_mov_b64 exec, -1")
        e(f"ds_write_b32 v{V_FLAG}, v51")
        for k in range(1, 8): e(f"ds_write_b32 v{V_FLAG}, v50 offset:{256*k}")
        e(f"v_mov_b32 v{V_BT}, v{V_BT2}"); e(f"v_mov_b32 v{V_BT+1}, v{V_BT2+1}")
        for k in range(8): e(f"v_subrev_u32 v{V_DK+k}, s{S_HD}, v{V_DK+k}")
        e(f"v_mov_b32 v{V_PT}, 0")
        job_common(g)
        e("s_waitcnt lgkmcnt(0)")
        e("s_barrier")
        e("s_branch L_ljob")
        g.lab("L_cnext")
        e("s_barrier")
        if a.rel:
            e(f"s_cmp_lg_u32 s{S_ROLE}, {a.relrole}")
            e("s_cbranch_scc1 L_cjob")
            e("buffer_wbl2 sc1")
            e("v_mov_b32 v63, 1")
            e("s_waitcnt vmcnt(0)")
            e("s_mov_b64 exec, 1")
            e("global_store_dword v62, v63, s[28:29] sc1")
            e("s_mov_b64 exec, -1")
        e("s_branch L_cjob")
    g.lab("L_out")
    if a.dbg:
        e(f"s_cmp_lg_u32 s{S_W}, 0"); e("s_cbranch_scc1 L_end")
        e("s_waitcnt vmcnt(0)")
        e("s_memrealtime s[98:99]")
        e("s_getreg_b32 s100, hwreg(HW_REG_XCC_ID)")
        e("s_waitcnt lgkmcnt(0)")
        e("s_mov_b64 exec, 1")
        for r in (90, 92, 94, 96, 98): e(f"s_sub_u32 s{r}, s{r}, s88")
        e("s_and_b32 s100, s100, 15")
        def put(idx, sreg):
            e(f"v_mov_b32 v4, s{sreg}"); e(f"global_store_dword v2, v4, s[28:29] offset:{4*idx}"); e("s_nop 1")
        e("v_mov_b32 v2, 0")
        e("s_cmp_eq_u32 s2, 88"); e("s_cbranch_scc0 L_d1")
        put(8, 90); put(9, 92); put(10, 94); put(11, 100)
        g.lab("L_d1")
        e("s_cmp_eq_u32 s2, 200"); e("s_cbranch_scc0 L_d2")
        put(12, 96); put(13, 94)
        g.lab("L_d2")
        e("s_cmp_eq_u32 s2, 130"); e("s_cbranch_scc0 L_d3")
        put(14, 96); put(15, 98)
        g.lab("L_d3")
        e("s_lshr_b32 s101, s2, 3"); e("s_cmp_eq_u32 s101, 11"); e("s_cbranch_scc0 L_end")
        e("s_and_b32 s101, s2, 7"); e("s_lshl_b32 s101, s101, 2"); e("v_mov_b32 v2, s101")
        put(0, 98)
    elif stamps:
        e("s_waitcnt vmcnt(0)")
        e("s_memrealtime s[98:99]")
        if a.wstat:
            e("s_mov_b32 s90, s10"); e("s_mov_b32 s91, 0"); e("s_mov_b32 s92, s11"); e("s_mov_b32 s93, 0")
        e("s_getreg_b32 s100, hwreg(HW_REG_XCC_ID)")
        e("s_getreg_b32 s101, hwreg(HW_REG_HW_ID)")
        e("s_lshl_b32 s3, s2, 2")
        e(f"s_add_u32 s3, s3, s{S_W}")
        e("s_lshl_b32 s3, s3, 6")
        e("v_mov_b32 v2, s3")
        e("s_waitcnt lgkmcnt(0)")
        for k in range(6):
            e(f"v_mov_b32 v4, s{88+2*k}")
            e(f"v_mov_b32 v5, s{89+2*k}")
            e(f"global_store_dwordx2 v2, v[4:5], s[30:31] offset:{8*k}")
            e("s_nop 1")
        e("v_mov_b32 v4, 0"); e("v_mov_b32 v5, 0")
        e("global_store_dwordx2 v2, v[4:5], s[30:31] offset:48")
        e("s_nop 1")
        e("v_mov_b32 v4, s100"); e("v_mov_b32 v5, s101")
        e("global_store_dwordx2 v2, v[4:5], s[30:31] offset:56")
    if spin:
        e(f"s_add_u32 s88, s88, {spin*100}")
        e("s_addc_u32 s89, s89, 0")
        g.lab("L_spin")
        e("s_memrealtime s[90:91]")
        e("s_waitcnt lgkmcnt(0)")
        e("s_sub_u32 s92, s90, s88")
        e("s_subb_u32 s93, s91, s89")
        e("s_cmp_lt_i32 s93, 0")
        e("s_cbranch_scc1 L_spin")
    g.lab("L_end")
    e("s_endpgm")
    out += g.o
    out += ['.section .rodata,"a"', ".p2align 6", f".amdhsa_kernel {NAME}",
        "  .amdhsa_next_free_vgpr 384", "  .amdhsa_next_free_sgpr 102", "  .amdhsa_accum_offset 256",
        "  .amdhsa_group_segment_fixed_size 0", "  .amdhsa_kernarg_size 64", "  .amdhsa_user_sgpr_count 2",
        "  .amdhsa_user_sgpr_kernarg_segment_ptr 1", "  .amdhsa_system_sgpr_workgroup_id_x 1",
        ".end_amdhsa_kernel", ""]
    return "\n".join(out)

def parse():
    ap = argparse.ArgumentParser()
    ap.add_argument("-L", type=int, default=20)
    ap.add_argument("--lin", default="")
    ap.add_argument("--nt", default="nt")
    ap.add_argument("--bonus", type=int, default=0)
    ap.add_argument("--clast", type=int, default=2)
    ap.add_argument("--lead", type=int, default=5)
    ap.add_argument("--tab", default="")
    ap.add_argument("--res", type=int, default=2)
    ap.add_argument("--tf", type=float, default=1.0)
    ap.add_argument("--tmax", type=int, default=32)
    ap.add_argument("--dry", type=int, default=0)
    ap.add_argument("--pf", type=int, default=2)
    ap.add_argument("--theta", type=int, default=1850)
    ap.add_argument("--ahead", type=int, default=10)
    ap.add_argument("--pstep", type=int, default=3)
    ap.add_argument("--pfirst", type=int, default=10)
    ap.add_argument("--lv", type=int, default=40)
    ap.add_argument("--split", type=int, default=0)
    ap.add_argument("--t0", type=int, default=56)
    ap.add_argument("--thetal", type=int, default=1800)
    ap.add_argument("--hs", type=int, default=280)
    ap.add_argument("--impat", type=int, default=18)
    ap.add_argument("--burst", type=int, default=4)
    ap.add_argument("--hmap", type=int, default=2)
    ap.add_argument("--dbg", action="store_true")
    ap.add_argument("--e2", action="store_true")
    ap.add_argument("--red", default="332")
    ap.add_argument("--rel", type=int, default=0)
    ap.add_argument("--relrole", type=int, default=2)
    ap.add_argument("--kmax", type=int, default=2400)
    ap.add_argument("--tlb", type=int, default=0)
    ap.add_argument("--tlbn", type=int, default=2)
    ap.add_argument("--hperm", default="76345210")
    ap.add_argument("--fine", type=float, default=19)
    ap.add_argument("--hpol", default="sc1")
    ap.add_argument("--cheat", type=int, default=0)
    ap.add_argument("--sigma", type=int, default=1700)
    ap.add_argument("--hb", type=int, default=150)
    ap.add_argument("--spin", type=int, default=0)
    ap.add_argument("--stamps", action="store_true")
    ap.add_argument("--estamps", action="store_true")
    ap.add_argument("--noload", action="store_true")
    ap.add_argument("--wstat", action="store_true")
    ap.add_argument("--stpol", default="")
    ap.add_argument("-o", default="standalone__paged_block_table_kv_pagedattention__sampling.s")
    a = ap.parse_args()
    a.hd_, a.ha_, a.hb_ = [int(c) for c in a.red]
    assert a.hd_ + a.ha_ + a.hb_ == 8 and max(a.ha_, a.hb_) <= 3 and a.hd_ <= 4
    if a.rel: a.hpol = ""
    if a.tab:
        a.table = [tuple(int(y) for y in x.split(":")) for x in a.tab.split(",")]
        a.table[0] = (0, a.table[0][1])
    elif a.lin:
        pts = [float(x) for x in a.lin.split(",")]
        tab = []
        for cl in range(1024, (a.kmax if a.split else 2048) + 1):
            u = (cl - 1024) / 1024.0 * (len(pts) - 1)
            k = min(int(u), len(pts) - 2)
            Lf = pts[k] + (pts[k+1] - pts[k]) * (u - k)
            res = 4 if Lf < a.fine else a.res
            L = int(round(res * Lf)) * (4 // res)
            L = max(8, min(4 * 34, L))
            if not tab or tab[-1][1] < L: tab.append((cl, L))
        tab[0] = (0, tab[0][1])
        a.table = tab
    else:
        a.table = [(0, 4 * a.L)]
    a.table.append((4096, 4 * a.lv))
    assert not a.split or a.theta > 32 * (a.t0 + 2)
    return a

if __name__ == "__main__":
    a = parse()
    LEAD = a.lead
    open(a.o, "w").write(build(a))
```

```python
import sys, struct, math, argparse

NAME = "standalone__paged_block_table_kv_pagedattention__sampling_kernel"
KV_BYTES = 4100 * 32768
Q_BYTES = 32 * 32 * 16 * 128 * 2

def f32bits(x):
    return struct.unpack("<I", struct.pack("<f", x))[0]

class Gen:
    def __init__(self, a):
        self.o = []
        self.a = a
    def e(self, s): self.o.append("    " + s)
    def lab(self, s): self.o.append(s + ":")
    def c(self, s): self.o.append("    ; " + s)

S_KSRD = 4; S_VSRD = 8; S_XSRD = 12; S_BSRD = 76
S_MASK = 32
S_CL, S_CLE, S_W, S_JL, S_NP, S_JM, S_RA, S_NLOC = 64, 65, 66, 67, 68, 69, 70, 71
S_J2, S_C, S_LB, S_RB = 72, 73, 74, 75
S_P = [80, 81, 82]; S_T0, S_T1, S_T2 = 83, 84, 85
S_QO0, S_QO1, S_J, S_H = 86, 87, 3, 15
V_LANE = 1
V_KA = 8; V_VA = 16; V_DK = 20; V_DV = 24; V_BT = 28; V_M = 29; V_L0, V_L1 = 30, 31
V_T0, V_T1 = 32, 33
V_MA, V_MB = 36, 37
V_AA, V_AB = 38, 40
V_R = 42; V_OO = 43; V_EW = 44; V_ER = 45
V_P = 80; V_S = 96; V_O = 128
A_Q = 0; A_K = 64; A_V = 96

def vr(b, n): return f"v[{b}:{b+n-1}]"
def ar(b, n): return f"a[{b}:{b+n-1}]"
def sr(b, n): return f"s[{b}:{b+n-1}]"

def dma_group(g, q0, q1, e, static):
    pol = (" " + g.a.nt) if g.a.nt else ""
    items = sorted(set(q >> 2 for q in range(q0, q1)))
    assert len(items) <= 3
    look = []; iss = []
    for k, it in enumerate(items):
        lane = 2 * (it >> 2) + (it & 1)
        if static:
            look.append(f"v_readlane_b32 s{S_P[k]}, v{V_BT}, {lane}")
        else:
            t = [S_T0, S_T1, S_T2][k]
            look.append(f"s_add_u32 s{t}, s{S_J2}, {lane}")
            look.append(f"v_readlane_b32 s{S_P[k]}, v{V_BT}, s{t}")
    for k, it in enumerate(items):
        kind = it & 3
        slot = (4 * e + it) & 7
        srd = S_KSRD if kind < 2 else S_VSRD
        vb = V_DK if kind < 2 else V_DV
        iss.append(f"s_add_u32 m0, s{S_LB}, {slot*4096}")
        first = True
        for q in range(q0, q1):
            if q >> 2 != it: continue
            i = q & 3
            ins = f"buffer_load_dwordx4 v{vb+i}, {sr(srd,4)}, s{S_P[k]} offen offset:{i*1024}{pol} lds"
            iss.append(("M0GAP", ins) if first else ins)
            first = False
    return look, iss

def emit_interleaved(g, mains, dma):
    di = 0
    prev_m0 = False
    def put(x):
        nonlocal prev_m0
        if isinstance(x, tuple):
            if prev_m0: g.e("s_nop 0")
            g.e(x[1]); prev_m0 = False
        else:
            g.e(x); prev_m0 = x.startswith("s_add_u32 m0")
    for m in mains:
        g.e(m); prev_m0 = False
        if di < len(dma):
            put(dma[di]); di += 1
    while di < len(dma):
        put(dma[di]); di += 1

def tile(g, e, L, tag):
    W = L - 8
    base = e * 16384
    g.c(f"---- tile parity {e}: QK")
    look, dma = dma_group(g, L, L + 8, e, False)
    for l in look: g.e(l)
    g.e(f"s_waitcnt vmcnt({W})")
    for st in range(8):
        g.e(f"ds_read_b128 {ar(A_K+4*st,4)}, v{V_KA+st} offset:{base}")
    def mf(st, qh):
        cc = "0" if st == 0 else vr(V_S+16*qh, 16)
        return f"v_mfma_f32_32x32x16_bf16 {vr(V_S+16*qh,16)}, {ar(A_K+4*st,4)}, {ar(A_Q+(qh*8+st)*4,4)}, {cc}"
    early = L + 8 <= 32 - 8
    if early:
        emit_interleaved(g, [], dma)
        for st in range(8):
            g.e(f"s_waitcnt lgkmcnt({7-st})") if st < 3 else (g.e("s_waitcnt lgkmcnt(0)") if st == 3 else None)
            g.e(mf(st,0)); g.e(mf(st,1))
    else:
        g.e("s_waitcnt lgkmcnt(7)")
        g.e(mf(0,0)); g.e(mf(0,1))
        g.e("s_waitcnt lgkmcnt(6)")
        g.e(mf(1,0)); g.e(mf(1,1))
        g.e("s_waitcnt lgkmcnt(0)")
        emit_interleaved(g, [mf(st,qh) for st in range(2,8) for qh in range(2)], dma)
    g.e("s_nop 7"); g.e("s_nop 3")
    g.e(f"s_cmp_lt_u32 s{S_J}, s{S_JM}")
    g.e(f"s_cbranch_scc1 L_nomask_{tag}")
    for j in range(16):
        for qh in range(2):
            r = V_S + 16*qh + j
            g.e(f"v_cndmask_b32 v{r}, v{V_R}, v{r}, {sr(S_MASK+2*j,2)}")
    g.lab(f"L_nomask_{tag}")
    s0, s1 = V_S, V_S + 16
    g.e(f"v_max3_f32 v{V_T0}, v{s0}, v{s0+1}, v{s0+2}")
    g.e(f"v_max3_f32 v{V_T1}, v{s1}, v{s1+1}, v{s1+2}")
    for k in range(3, 15, 2):
        g.e(f"v_max3_f32 v{V_T0}, v{V_T0}, v{s0+k}, v{s0+k+1}")
        g.e(f"v_max3_f32 v{V_T1}, v{V_T1}, v{s1+k}, v{s1+k+1}")
    g.e(f"v_max_f32 v{V_T0}, v{V_T0}, v{s0+15}")
    g.e(f"v_max_f32 v{V_T1}, v{V_T1}, v{s1+15}")
    g.e("s_nop 1")
    g.e(f"v_permlane32_swap_b32 v{V_T0}, v{V_T1}")
    g.e(f"v_max_f32 v{V_T0}, v{V_T0}, v{V_T1}")
    g.e(f"v_mul_f32 v{V_T0}, s{S_C}, v{V_T0}")
    g.e(f"v_max_f32 v{V_MA}, v{V_M}, v{V_T0}")
    g.e(f"v_sub_f32 v{V_T1}, v{V_M}, v{V_MA}")
    g.e(f"v_cmp_gt_f32 vcc, v{V_MA}, v{V_M}")
    g.e(f"v_exp_f32 v{V_AA}, v{V_T1}")
    g.e(f"v_mov_b32 v{V_M}, v{V_MA}")
    g.e(f"v_mov_b32 v{V_MB}, v{V_MA}")
    g.e(f"v_mov_b32 v{V_AB}, v{V_AA}")
    g.e("s_nop 1")
    g.e(f"v_permlane32_swap_b32 v{V_MA}, v{V_MB}")
    g.e(f"v_permlane32_swap_b32 v{V_AA}, v{V_AB}")
    g.e(f"s_cbranch_vccz L_noresc_{tag}")
    for db in range(4):
        for qh in range(2):
            al = V_AA if qh == 0 else V_AB
            for k in range(0, 16, 2):
                r = V_O + (db*2+qh)*16 + k
                g.e(f"v_pk_mul_f32 {vr(r,2)}, {vr(r,2)}, {vr(al,2)} op_sel_hi:[1,0]")
    g.lab(f"L_noresc_{tag}")
    for j in range(16):
        for qh in range(2):
            r = V_S + 16*qh + j
            m = V_MA if qh == 0 else V_MB
            g.e(f"v_fma_f32 v{r}, v{r}, s{S_C}, -v{m}")
    for j in range(16):
        for qh in range(2):
            r = V_S + 16*qh + j
            g.e(f"v_exp_f32 v{r}, v{r}")
    g.e(f"v_fma_f32 v{V_L0}, v{V_L0}, v{V_AA}, v{s0}")
    g.e(f"v_fma_f32 v{V_L1}, v{V_L1}, v{V_AB}, v{s1}")
    g.e(f"v_add_f32 v{V_T0}, v{s0+1}, v{s0+2}")
    g.e(f"v_add_f32 v{V_T1}, v{s1+1}, v{s1+2}")
    for k in range(3, 16):
        d0 = V_L0 if (k & 1) else V_T0
        d1 = V_L1 if (k & 1) else V_T1
        g.e(f"v_add_f32 v{d0}, v{d0}, v{s0+k}")
        g.e(f"v_add_f32 v{d1}, v{d1}, v{s1+k}")
    for qh in range(2):
        for ts in range(2):
            for r in range(4):
                src = V_S + 16*qh + 8*ts + 2*r
                g.e(f"v_cvt_pk_bf16_f32 v{V_P + (qh*2+ts)*4 + r}, v{src}, v{src+1}")
    g.e(f"v_add_f32 v{V_L0}, v{V_L0}, v{V_T0}")
    g.e(f"v_add_f32 v{V_L1}, v{V_L1}, v{V_T1}")
    g.c("PV")
    look, dma = dma_group(g, L + 8, L + 16, e, False)
    for l in look: g.e(l)
    g.e(f"s_waitcnt vmcnt({W})")
    reads = []
    for db in range(4):
        for ts in range(2):
            for u in range(2):
                reads.append(f"ds_read_b64_tr_b16 {ar(A_V+(db*2+ts)*4+2*u,2)}, v{V_VA+db} offset:{base+ts*4096+u*2048}")
    def pv(db, ts, qh):
        o = vr(V_O + (db*2+qh)*16, 16)
        return f"v_mfma_f32_32x32x16_bf16 {o}, {ar(A_V+(db*2+ts)*4,4)}, {vr(V_P+(qh*2+ts)*4,4)}, {o}"
    if early:
        for r in reads[:12]: g.e(r)
        emit_interleaved(g, [], dma)
        g.e("s_waitcnt lgkmcnt(10)")
        g.e(pv(0,0,0)); g.e(pv(0,0,1))
        for r in reads[12:]: g.e(r)
        g.e("s_waitcnt lgkmcnt(12)")
        g.e(pv(0,1,0)); g.e(pv(0,1,1))
        g.e("s_waitcnt lgkmcnt(0)")
        for db in range(1,4):
            for ts in range(2):
                for qh in range(2): g.e(pv(db,ts,qh))
    else:
        for r in reads[:12]: g.e(r)
        g.e("s_waitcnt lgkmcnt(10)")
        g.e(pv(0,0,0)); g.e(pv(0,0,1))
        for r in reads[12:]: g.e(r)
        g.e("s_waitcnt lgkmcnt(12)")
        g.e(pv(0,1,0)); g.e(pv(0,1,1))
        g.e("s_waitcnt lgkmcnt(0)")
        emit_interleaved(g, [pv(db,ts,qh) for db in range(1,4) for ts in range(2) for qh in range(2)], dma)
    g.e(f"s_add_u32 s{S_J2}, s{S_J2}, 2")
    g.e(f"s_add_u32 s{S_J}, s{S_J}, 1")

def build(a):
    g = Gen(a)
    stamps, spin = a.stamps, a.spin
    c = (128 ** -0.5) * math.log2(math.e)
    R = -1e9 * math.sqrt(128.0)
    hdr = open("standalone__paged_block_table_kv_pagedattention__sampling.s.ref").read().split("\n")
    head = [l for l in hdr if l.startswith(";") and "@launch" not in l and "Override launch" not in l and "grid=ceil" not in l]
    LDS = 131072 + 2048
    out = head + [f"; @launch grid=(256,1,1) block=(256,1,1) lds={LDS}",
        '.amdgcn_target "amdgcn-amd-amdhsa--gfx950"', ".text", f".globl {NAME}", ".p2align 8",
        f".type {NAME},@function", f"{NAME}:"]
    e = g.e
    table = a.table
    e("s_cmp_ge_u32 s2, 256")
    e("s_cbranch_scc1 L_end")
    e("s_load_dwordx8 s[16:23], s[0:1], 0")
    e("s_load_dwordx4 s[24:27], s[0:1], 32")
    if stamps: e("s_load_dwordx2 s[30:31], s[0:1], 56")
    if spin or stamps: e("s_memrealtime s[88:89]")
    e(f"v_and_b32 v{V_LANE}, 63, v0")
    e("v_lshrrev_b32 v2, 6, v0")
    e(f"v_lshrrev_b32 v5, 1, v{V_LANE}")
    e(f"v_readfirstlane_b32 s{S_W}, v2")
    e("s_lshr_b32 s3, s2, 3")
    e("v_lshlrev_b32 v5, 3, v5")
    e(f"v_and_b32 v6, 1, v{V_LANE}")
    e("v_lshl_add_u32 v5, v6, 2, v5")
    e("v_add_u32 v5, v5, v2")
    e("v_lshlrev_b32 v6, 2, v5")
    e(f"s_lshl_b32 s{S_P[0]}, s3, 9")
    e(f"s_lshl_b32 s{S_P[1]}, s3, 2")
    e(f"s_mov_b32 s{S_BSRD+2}, 16384"); e(f"s_mov_b32 s{S_BSRD+3}, 0x20000")
    if a.mix:
        e(f"s_add_u32 s{S_T0}, s2, s3")
        e(f"s_and_b32 s{S_T0}, s{S_T0}, 7")
    else:
        e(f"s_and_b32 s{S_T0}, s2, 7")
    e(f"s_lshl_b32 s{S_QO0}, s3, 3")
    e(f"s_add_u32 s{S_QO0}, s{S_QO0}, s{S_T0}")
    e(f"s_lshl_b32 s{S_QO0}, s{S_QO0}, 14")
    e(f"s_lshl_b32 s{S_T0}, s{S_T0}, 8")
    e("s_waitcnt lgkmcnt(0)")
    if stamps: e("s_memrealtime s[90:91]")
    e(f"s_mov_b32 s{S_BSRD}, s22"); e(f"s_mov_b32 s{S_BSRD+1}, s23")
    e(f"s_load_dword s{S_CL}, s[24:25], s{S_P[1]}")
    e(f"buffer_load_dword v{V_BT}, v6, {sr(S_BSRD,4)}, s{S_P[0]} offen")
    e(f"s_lshl_b32 s{S_LB}, s{S_W}, 15")
    e(f"s_mov_b32 s{S_KSRD}, s18"); e(f"s_mov_b32 s{S_KSRD+1}, s19")
    e(f"s_mov_b32 s{S_KSRD+2}, {KV_BYTES}"); e(f"s_mov_b32 s{S_KSRD+3}, 0x20000")
    e(f"s_mov_b32 s{S_VSRD}, s20"); e(f"s_mov_b32 s{S_VSRD+1}, s21")
    e(f"s_mov_b32 s{S_VSRD+2}, {KV_BYTES}"); e(f"s_mov_b32 s{S_VSRD+3}, 0x20000")
    e(f"s_mov_b32 s{S_XSRD}, s16"); e(f"s_mov_b32 s{S_XSRD+1}, s17")
    e(f"s_mov_b32 s{S_XSRD+2}, {Q_BYTES}"); e(f"s_mov_b32 s{S_XSRD+3}, 0x20000")
    e(f"v_lshrrev_b32 v3, 5, v{V_LANE}")
    e(f"v_and_b32 v4, 31, v{V_LANE}")
    e("v_lshlrev_b32 v7, 8, v4")
    e("v_lshl_add_u32 v7, v3, 4, v7")
    e(f"s_add_u32 s{S_QO1}, s{S_QO0}, 8192")
    def qloads():
        for qh in range(2):
            for st in range(8):
                so = S_QO0 if qh == 0 else S_QO1
                e(f"buffer_load_dwordx4 {ar(A_Q+(qh*8+st)*4,4)}, v7, {sr(S_XSRD,4)}, s{so} offen offset:{st*32}")
    if a.qfirst: qloads()
    e(f"v_lshrrev_b32 v46, 4, v{V_LANE}")
    e(f"v_and_b32 v47, 15, v{V_LANE}")
    for i in range(4):
        e(f"v_add_u32 v48, {4*i}, v46")
        e("v_xor_b32 v49, v47, v48")
        e("v_lshlrev_b32 v49, 4, v49")
        e("v_lshl_add_u32 v49, v48, 11, v49")
        if i:
            e(f"s_sub_u32 s{S_T1}, s{S_T0}, {i*1024}")
            e(f"v_add_u32 v{V_DK+i}, s{S_T1}, v49")
        else: e(f"v_add_u32 v{V_DK}, s{S_T0}, v49")
    e("v_lshlrev_b32 v48, 2, v46")
    e("v_xor_b32 v49, v47, v48")
    e("v_lshlrev_b32 v49, 4, v49")
    e("v_lshl_add_u32 v49, v46, 11, v49")
    e(f"v_add_u32 v{V_DV}, s{S_T0}, v49")
    for i in range(1, 4):
        e(f"v_add_u32 v{V_DV+i}, {i*7168}, v{V_DV}")
    e(f"v_mov_b32 v49, {KV_BYTES}")
    e("s_waitcnt lgkmcnt(0)")
    e(f"s_max_i32 s{S_CL}, s{S_CL}, 0")
    e(f"s_min_i32 s{S_CL}, s{S_CL}, 2048")
    e(f"s_cmp_eq_u32 s{S_CL}, 0")
    e(f"s_cselect_b32 s{S_CLE}, 2048, s{S_CL}")
    e(f"s_add_u32 s{S_NP}, s{S_CLE}, 15")
    e(f"s_lshr_b32 s{S_NP}, s{S_NP}, 4")
    e(f"v_cmp_gt_u32 vcc, s{S_NP}, v5")
    e(f"s_mov_b32 s{S_J2}, 0")
    e(f"s_mov_b32 s{S_J}, 0")
    e(f"s_waitcnt vmcnt({16 if a.qfirst else 0})")
    if stamps: e("s_memrealtime s[92:93]")
    e(f"v_lshlrev_b32 v{V_BT}, 15, v{V_BT}")
    e(f"v_cndmask_b32 v{V_BT}, v49, v{V_BT}, vcc")
    e("s_nop 0")
    look, dma = dma_group(g, 0, 8, 0, True)
    for l in look: e(l)
    e("s_nop 3")
    emit_interleaved(g, [], dma)
    if not a.qfirst: qloads()
    def rest_of_setup():
        e("v_and_b32 v48, 15, v4")
        e("v_xor_b32 v48, v48, v3")
        e("v_lshlrev_b32 v49, 8, v4")
        e(f"v_add_u32 v49, s{S_LB}, v49")
        for st in range(8):
            e(f"v_xor_b32 v50, {2*st}, v48")
            e(f"v_lshl_add_u32 v{V_KA+st}, v50, 4, v49")
        e("v_lshrrev_b32 v48, 2, v47")
        e("v_lshl_add_u32 v49, v3, 2, v48")
        e("v_lshlrev_b32 v49, 8, v49")
        e("v_and_b32 v50, 1, v46")
        e("v_lshl_add_u32 v49, v50, 5, v49")
        e(f"v_and_b32 v50, 3, v{V_LANE}")
        e("v_lshl_add_u32 v49, v50, 3, v49")
        e(f"v_add_u32 v49, s{S_LB}, v49")
        e("v_add_u32 v49, 8192, v49")
        for db in range(4):
            e(f"v_xor_b32 v50, {db}, v48")
            e(f"v_lshl_add_u32 v{V_VA+db}, v50, 6, v49")
        e("v_lshlrev_b32 v49, 8, v4")
        e("v_lshl_add_u32 v49, v3, 3, v49")
        e(f"s_lshl_b32 s{S_T1}, s{S_W}, 6")
        e(f"v_add_u32 v{V_OO}, s{S_T1}, v49")
        e(f"v_lshlrev_b32 v49, 4, v{V_LANE}")
        e(f"v_add_u32 v{V_EW}, s{S_LB}, v49")
        e(f"s_lshl_b32 s{S_T1}, s{S_W}, 13")
        e(f"v_add_u32 v{V_ER}, s{S_T1}, v49")
        e(f"v_mov_b32 v{V_M}, 0x{f32bits(-3.0e38):08x}")
        e(f"v_mov_b32 v{V_L0}, 0"); e(f"v_mov_b32 v{V_L1}, 0")
        e(f"v_mov_b32 v{V_R}, 0x{f32bits(R):08x}")
        e(f"s_mov_b32 s{S_C}, 0x{f32bits(c):08x}")
        for r in range(0, 128, 2):
            e(f"v_pk_mul_f32 {vr(V_O+r,2)}, {vr(V_L0,2)}, {vr(V_L0,2)}")
        e(f"s_sub_u32 s{S_JL}, s{S_NP}, 1")
        e(f"s_lshr_b32 s{S_JL}, s{S_JL}, 3")
        e(f"s_lshl_b32 s{S_T1}, s{S_JL}, 3")
        e(f"s_add_u32 s{S_T1}, s{S_T1}, s{S_W}")
        e(f"s_cmp_lt_u32 s{S_T1}, s{S_NP}")
        e(f"s_addc_u32 s{S_NLOC}, s{S_JL}, 0")
        e(f"s_lshl_b32 s{S_T1}, s{S_T1}, 4")
        e(f"s_sub_i32 s{S_RA}, s{S_CL}, s{S_T1}")
        e(f"s_sub_i32 s{S_RB}, s{S_RA}, 64")
        e(f"s_cmp_eq_u32 s{S_CL}, 0")
        e(f"s_cselect_b32 s{S_JM}, 0, s{S_JL}")
        e("v_lshlrev_b32 v48, 2, v3")
        e(f"v_sub_u32 v50, s{S_RA}, v48")
        e(f"v_sub_u32 v51, s{S_RB}, v48")
        for j in range(16):
            tok = (j & 3) + 8 * ((j >> 2) & 1)
            e(f"v_cmp_gt_i32 {sr(S_MASK+2*j,2)}, v{50 if j < 8 else 51}, {tok}")
    for (clmin, L) in reversed(table[1:]):
        e(f"s_cmp_ge_u32 s{S_CLE}, {clmin}")
        e(f"s_cbranch_scc1 L_var_{L}")
    first = True
    for (clmin, L) in table:
        if not first: g.lab(f"L_var_{L}")
        first = False
        q = 8
        while q < L:
            q1 = min(q + 8, L)
            look, dma = dma_group(g, q, q1, 0, True)
            for l in look: e(l)
            e("s_nop 3")
            emit_interleaved(g, [], dma)
            q = q1
        rest_of_setup()
        if stamps:
            e(f"s_waitcnt vmcnt({L-8})")
            e("s_memrealtime s[94:95]")
            e("s_waitcnt lgkmcnt(0)")
        g.lab(f"L_loop_{L}")
        e(f"s_cmp_ge_u32 s{S_J}, s{S_NLOC}")
        e("s_cbranch_scc1 L_done")
        tile(g, 0, L, f"a{L}")
        e(f"s_cmp_ge_u32 s{S_J}, s{S_NLOC}")
        e("s_cbranch_scc1 L_done")
        tile(g, 1, L, f"b{L}")
        e(f"s_branch L_loop_{L}")
    g.lab("L_done")
    if stamps:
        e("s_memrealtime s[96:97]")
        e("s_waitcnt lgkmcnt(0)")
    e(f"s_mov_b32 s{S_XSRD}, s26"); e(f"s_mov_b32 s{S_XSRD+1}, s27")
    e(f"v_permlane32_swap_b32 v{V_L0}, v{V_L1}")
    e(f"v_lshlrev_b32 v48, 3, v{V_LANE}")
    e(f"s_lshl_b32 s{S_T1}, s{S_W}, 9")
    e(f"s_add_u32 s{S_T1}, s{S_T1}, 131072")
    e(f"v_add_u32 v49, s{S_T1}, v48")
    e("v_add_u32 v48, 131072, v48")
    e(f"v_mov_b32 v50, v{V_M}")
    e(f"v_add_f32 v51, v{V_L0}, v{V_L1}")
    e("s_waitcnt vmcnt(0)")
    e("ds_write_b64 v49, v[50:51]")
    e("s_nop 7")
    for idx in range(32):
        e(f"ds_write_b128 v{V_EW}, {vr(V_O+4*idx,4)} offset:{idx*1024}")
    e("s_waitcnt lgkmcnt(0)")
    e("s_barrier")
    for w in range(4):
        e(f"ds_read_b64 {vr(52+2*w,2)}, v48 offset:{w*512}")
    rd = []
    for w in range(4):
        for k in range(8):
            rd.append((V_O + (w*8+k)*4, w*32768 + k*1024))
    e(f"v_add_u32 v47, 65536, v{V_ER}")
    def rdi(i):
        dst, off = rd[i]
        if off >= 65536: e(f"ds_read_b128 {vr(dst,4)}, v47 offset:{off-65536}")
        else: e(f"ds_read_b128 {vr(dst,4)}, v{V_ER} offset:{off}")
    for i in range(8): rdi(i)
    e("s_waitcnt lgkmcnt(8)")
    e("v_max3_f32 v60, v52, v54, v56")
    e("v_max_f32 v60, v60, v58")
    for w in range(4): e(f"v_sub_f32 v{52+2*w}, v{52+2*w}, v60")
    for w in range(4): e(f"v_exp_f32 v{52+2*w}, v{52+2*w}")
    e("s_nop 0")
    e("v_mul_f32 v61, v52, v53")
    for w in range(1, 4): e(f"v_fma_f32 v61, v{52+2*w}, v{53+2*w}, v61")
    e("v_rcp_f32 v61, v61")
    e("s_nop 0")
    for w in range(4): e(f"v_mul_f32 v{52+2*w}, v{52+2*w}, v61")
    for w in range(4): e(f"v_mov_b32 v{53+2*w}, v{52+2*w}")
    e("s_nop 1")
    for w in range(4): e(f"v_permlane32_swap_b32 v{52+2*w}, v{53+2*w}")
    for w in range(4):
        if w < 3:
            for i in range(8*(w+1), 8*(w+2)): rdi(i)
            e("s_waitcnt lgkmcnt(8)")
        else:
            e("s_waitcnt lgkmcnt(0)")
        for qh in range(2):
            for j in range(16):
                src = V_O + w*32 + qh*16 + j
                dst = V_S + qh*16 + j
                f = 52 + 2*w + qh
                if w == 0: e(f"v_mul_f32 v{dst}, v{src}, v{f}")
                else: e(f"v_fma_f32 v{dst}, v{src}, v{f}, v{dst}")
    for qh in range(2):
        for jj in range(4):
            src = V_S + qh*16 + jj*4
            dst = V_P + (qh*4+jj)*2
            e(f"v_cvt_pk_bf16_f32 v{dst}, v{src}, v{src+1}")
            e(f"v_cvt_pk_bf16_f32 v{dst+1}, v{src+2}, v{src+3}")
    for qh in range(2):
        for jj in range(4):
            dst = V_P + (qh*4+jj)*2
            so = S_QO0 if qh == 0 else S_QO1
            e(f"buffer_store_dwordx2 {vr(dst,2)}, v{V_OO}, {sr(S_XSRD,4)}, s{so} offen offset:{jj*16}")
    if stamps:
        e("s_waitcnt vmcnt(0)")
        e("s_memrealtime s[98:99]")
        e("s_getreg_b32 s100, hwreg(HW_REG_XCC_ID)")
        e("s_getreg_b32 s101, hwreg(HW_REG_HW_ID)")
        e("s_lshl_b32 s3, s2, 2")
        e(f"s_add_u32 s3, s3, s{S_W}")
        e("s_lshl_b32 s3, s3, 6")
        e("v_mov_b32 v2, s3")
        e("s_waitcnt lgkmcnt(0)")
        for k in range(6):
            e(f"v_mov_b32 v4, s{88+2*k}")
            e(f"v_mov_b32 v5, s{89+2*k}")
            e(f"global_store_dwordx2 v2, v[4:5], s[30:31] offset:{8*k}")
            e("s_nop 1")
        e("v_mov_b32 v4, 0"); e("v_mov_b32 v5, 0")
        e("global_store_dwordx2 v2, v[4:5], s[30:31] offset:48")
        e("s_nop 1")
        e("v_mov_b32 v4, s100"); e("v_mov_b32 v5, s101")
        e("global_store_dwordx2 v2, v[4:5], s[30:31] offset:56")
    if spin:
        e(f"s_add_u32 s88, s88, {spin*100}")
        e("s_addc_u32 s89, s89, 0")
        g.lab("L_spin")
        e("s_memrealtime s[90:91]")
        e("s_waitcnt lgkmcnt(0)")
        e("s_sub_u32 s92, s90, s88")
        e("s_subb_u32 s93, s91, s89")
        e("s_cmp_lt_i32 s93, 0")
        e("s_cbranch_scc1 L_spin")
    g.lab("L_end")
    e("s_endpgm")
    out += g.o
    out += ['.section .rodata,"a"', ".p2align 6", f".amdhsa_kernel {NAME}",
        "  .amdhsa_next_free_vgpr 384", "  .amdhsa_next_free_sgpr 102", "  .amdhsa_accum_offset 256",
        "  .amdhsa_group_segment_fixed_size 0", "  .amdhsa_kernarg_size 64", "  .amdhsa_user_sgpr_count 2",
        "  .amdhsa_user_sgpr_kernarg_segment_ptr 1", "  .amdhsa_system_sgpr_workgroup_id_x 1",
        ".end_amdhsa_kernel", ""]
    return "\n".join(out)

if __name__ == "__main__":
    ap = argparse.ArgumentParser()
    ap.add_argument("-L", type=int, default=16)
    ap.add_argument("--lin", default="")
    ap.add_argument("--nt", default="nt")
    ap.add_argument("--mix", type=int, default=1)
    ap.add_argument("--qfirst", type=int, default=0)
    ap.add_argument("--spin", type=int, default=0)
    ap.add_argument("--stamps", action="store_true")
    ap.add_argument("-o", default="standalone__paged_block_table_kv_pagedattention__sampling.s")
    a = ap.parse_args()
    if a.lin:
        L0, L1 = [float(x) for x in a.lin.split(",")]
        tab = []
        for cl in range(1024, 2049):
            L = int(round(L0 + (L1 - L0) * (cl - 1024) / 1024.0))
            L = max(8, min(32, L))
            if not tab or tab[-1][1] != L: tab.append((cl, L))
        tab[0] = (0, tab[0][1])
        a.table = tab
    else:
        a.table = [(0, a.L)]
    open(a.o, "w").write(build(a))
```

```python
import sys, struct, math, argparse

NAME = "standalone__paged_block_table_kv_pagedattention__sampling_kernel"
KV_BYTES = 4100 * 32768
Q_BYTES = 32 * 32 * 16 * 128 * 2
LEAD = 6

def f32bits(x): return struct.unpack("<I", struct.pack("<f", x))[0]

class Gen:
    def __init__(self, a): self.o = []; self.a = a; self.ool = []
    def e(self, s): self.o.append("    " + s)
    def lab(self, s): self.o.append(s + ":")
    def c(self, s): self.o.append("    ; " + s)

LDS_Q = 98304
LDS_FLAG = 114688
LDS_DONE = LDS_FLAG + 256
LDS_FIN = LDS_FLAG + 1024
LDS_STAT = LDS_FLAG + 2048
LDS_G = LDS_STAT + 2048
LDS_Q2 = LDS_STAT + 3072
LDS_TOTAL = LDS_Q2 + 16384
LDS_NOSPLIT = LDS_Q2

S_KSRD = 4; S_VSRD = 8; S_XSRD = 12; S_BSRD = 76
S_C2 = 38; S_PAR = 47
S_CL4 = 40; S_KEY4 = 44; S_WSRD = 48
S_MODE, S_TB, S_CLO, S_HD, S_SLOT, S_QOV, S_SH, S_NVB, S_KEY, S_QSRC, S_IMP, S_CLV = 52, 53, 54, 55, 56, 57, 58, 59, 60, 61, 62, 63
S_TE = 77; S_G0 = 76; S_CUT = 46
V_BT2 = 62; V_REM = 28
S_P2, S_P3, S_J, S_LBV, S_CV, S_NV = 34, 35, 36, 37, 38, 39
S_CL, S_CLE, S_W, S_NT, S_NP, S_JM, S_REM, S_H = 64, 65, 66, 67, 68, 69, 70, 71
S_NEED, S_C, S_LB, S_I = 72, 73, 74, 75
S_DB, S_DC, S_OA, S_OB = 76, 77, 78, 79
S_P0, S_P1, S_T0, S_T1, S_T2 = 80, 81, 82, 83, 84
S_QO0, S_ROLE, S_CI, S_N = 85, 86, 87, 70
S_NK = S_N; S_FIRST = 71
V_LANE = 1
V_KA = 8; V_VA = 16
V_DK = 8; V_DV = 12; V_DQ = 16; V_BT = 20
V_FLAG = 22; V_CNT = 23; V_DONE = 24; V_PT = 25; V_FIN = 26
V_R = 27; V_M = 29; V_L0, V_L1 = 30, 31
V_T0, V_T1 = 32, 33
V_MA, V_MB = 34, 36
V_AL = [(38, 40), (42, 44)]
V_RA = 52; V_BP = 57; V_SA = 58; V_FP = 59; V_OV = 60
S_F = 40
V_PP = [64, 80]; V_S = 96; V_O = 128
V_EW = 96
A_Q = 0; A_K = 64; A_V = 96

def vr(b, n): return f"v[{b}:{b+n-1}]"
def ar(b, n): return f"a[{b}:{b+n-1}]"
def sr(b, n): return f"s[{b}:{b+n-1}]"

def poll(g, tag, pre=False):
    if pre:
        g.e("s_waitcnt lgkmcnt(0)")
        g.e(f"v_readfirstlane_b32 s{S_H}, v{V_PT}")
    g.e(f"s_cmp_ge_i32 s{S_H}, s{S_NEED}")
    g.e(f"s_cbranch_scc0 L_poll_{tag}")
    g.lab(f"L_ok_{tag}")
    if g.a.wstat:
        acc = 10 if tag[0] == "k" else 11
        g.ool += [f"L_poll_{tag}:", "    s_memtime s[8:9]", f"L_poll2_{tag}:",
            f"    ds_read_b32 v{V_PT}, v{V_FLAG}", "    s_waitcnt lgkmcnt(0)",
            f"    v_readfirstlane_b32 s{S_H}, v{V_PT}", f"    s_cmp_ge_i32 s{S_H}, s{S_NEED}",
            f"    s_cbranch_scc0 L_poll2_{tag}", "    s_memtime s[100:101]", "    s_waitcnt lgkmcnt(0)",
            "    s_sub_u32 s100, s100, s8", f"    s_add_u32 s{acc}, s{acc}, s100", f"    s_branch L_ok_{tag}"]
        return
    g.ool += [f"L_poll_{tag}:",
        f"    ds_read_b32 v{V_PT}, v{V_FLAG}",
        "    s_waitcnt lgkmcnt(0)",
        f"    v_readfirstlane_b32 s{S_H}, v{V_PT}",
        f"    s_cmp_ge_i32 s{S_H}, s{S_NEED}",
        f"    s_cbranch_scc1 L_ok_{tag}",
        f"    s_branch L_poll_{tag}"]

def need_k_first(g):
    g.e(f"s_lshl_b32 s{S_NEED}, s{S_I}, 1")
    g.e(f"s_add_i32 s{S_NEED}, s{S_NEED}, {3 - LEAD}")
    g.e(f"s_add_u32 s{S_T1}, s{S_I}, 3")
    g.e(f"s_max_i32 s{S_NEED}, s{S_NEED}, s{S_T1}")
def need_k_next():
    return [f"s_lshl_b32 s{S_NEED}, s{S_I}, 1", f"s_add_i32 s{S_NEED}, s{S_NEED}, {9 - LEAD}",
            f"s_add_u32 s{S_T1}, s{S_I}, 6", f"s_max_i32 s{S_NEED}, s{S_NEED}, s{S_T1}"]
def need_v():
    return [f"s_lshl_b32 s{S_NEED}, s{S_I}, 1", f"s_add_u32 s{S_NEED}, s{S_NEED}, {4 + LEAD}",
            f"s_add_u32 s{S_T1}, s{S_I}, s{S_NVB}", f"s_min_i32 s{S_NEED}, s{S_NEED}, s{S_T1}"]

def k_reads(e): return [f"ds_read_b128 {ar(A_K+4*st,4)}, v{V_KA+st} offset:{e*16384}" for st in range(8)]
def v_reads(e):
    return [f"ds_read_b64_tr_b16 {ar(A_V+(db*2+ts)*4+2*u,2)}, v{V_VA+db} offset:{e*16384+ts*4096+u*2048}"
            for db in range(4) for ts in range(2) for u in range(2)]
def qk(st, qh):
    cc = "0" if st == 0 else vr(V_S+16*qh, 16)
    return f"v_mfma_f32_32x32x16_bf16 {vr(V_S+16*qh,16)}, {ar(A_K+4*st,4)}, {ar(A_Q+(qh*8+st)*4,4)}, {cc}"
def pv(e, db, ts, qh):
    o = vr(V_O + (db*2+qh)*16, 16)
    return f"v_mfma_f32_32x32x16_bf16 {o}, {ar(A_V+(db*2+ts)*4,4)}, {vr(V_PP[e]+(qh*2+ts)*4,4)}, {o}"
def owrite(idx):
    db = idx >> 3; jj = idx & 3
    return f"ds_write_b128 v{V_EW + 4*db + jj}, {vr(V_O+4*idx,4)} offset:{idx*1024}"
def resc(e, db, pk=False):
    out = []
    for qh in range(2):
        al = V_AL[e][qh]
        if pk:
            for k in range(0, 16, 2):
                r = V_O + (db*2+qh)*16 + k
                out.append(f"v_pk_mul_f32 {vr(r,2)}, {vr(r,2)}, {vr(al,2)} op_sel_hi:[1,0]")
        else:
            for k in range(16):
                r = V_O + (db*2+qh)*16 + k
                out.append(f"v_mul_f32 v{r}, v{r}, v{al}")
    return out
def lsum(e):
    s0, s1 = V_S, V_S + 16
    aa, ab = V_AL[e]
    o = [f"v_pk_add_f32 v[48:49], {vr(s0,2)}, {vr(s0+2,2)}", f"v_pk_add_f32 v[50:51], {vr(s1,2)}, {vr(s1+2,2)}"]
    for k in range(4, 16, 2):
        o.append(f"v_pk_add_f32 v[48:49], v[48:49], {vr(s0+k,2)}")
        o.append(f"v_pk_add_f32 v[50:51], v[50:51], {vr(s1+k,2)}")
    o += [f"v_fma_f32 v{V_L0}, v{V_L0}, v{aa}, v48", f"v_fma_f32 v{V_L1}, v{V_L1}, v{ab}, v50",
          f"v_add_f32 v{V_L0}, v{V_L0}, v49", f"v_add_f32 v{V_L1}, v{V_L1}, v51"]
    return o
def ew_addrs(g):
    for f in range(16):
        g.e(f"v_xor_b32 v48, {f}, v{V_LANE}")
        g.e(f"v_lshl_add_u32 v{V_EW+f}, v48, 4, s{S_LB}")

def qk_phase(g, fill):
    mf = [qk(st, qh) for st in range(8) for qh in range(2)]
    n = len(mf); k = 0
    for i, m in enumerate(mf):
        st = i >> 1
        if (i & 1) == 0:
            if st < 4: g.e(f"s_waitcnt lgkmcnt({7-st})")
            elif st == 4:
                g.e("s_waitcnt lgkmcnt(0)")
                g.e(f"ds_write_b32 v{V_DONE}, v{V_CNT}")
        g.e(m)
        upto = (len(fill) * (i + 1) + n - 1) // n
        while k < upto:
            g.e(fill[k]); k += 1

def softmax(g, e, tag, imask):
    aa, ab = V_AL[e]
    if imask: g.e(f"s_add_u32 s{S_T2}, s{S_I}, {imask}")
    g.e(f"s_cmp_lt_u32 s{S_T2 if imask else S_I}, s{S_JM}")
    g.e(f"s_cbranch_scc0 L_mask_{tag}")
    g.lab(f"L_nomask_{tag}")
    g.ool.append(f"L_mask_{tag}:")
    prs = ["vcc", "s[32:33]", "s[34:35]", "s[36:37]"]
    for j0 in range(0, 16, 4):
        for j in range(j0, j0 + 4):
            g.ool.append(f"    v_cmp_gt_i32 {prs[j & 3]}, v{V_REM}, {(j & 3) + 8 * (j >> 2)}")
        if True: g.ool.append("    s_nop 1")
        for j in range(j0, j0 + 4):
            for qh in range(2):
                r = V_S + 16*qh + j
                g.ool.append(f"    v_cndmask_b32 v{r}, v{V_R}, v{r}, {prs[j & 3]}")
    g.ool.append(f"    s_branch L_nomask_{tag}")
    s0, s1 = V_S, V_S + 16
    g.e(f"v_max3_f32 v{V_T0}, v{s0}, v{s0+1}, v{s0+2}")
    g.e(f"v_max3_f32 v{V_T1}, v{s1}, v{s1+1}, v{s1+2}")
    for k in range(3, 15, 2):
        g.e(f"v_max3_f32 v{V_T0}, v{V_T0}, v{s0+k}, v{s0+k+1}")
        g.e(f"v_max3_f32 v{V_T1}, v{V_T1}, v{s1+k}, v{s1+k+1}")
    g.e(f"v_max_f32 v{V_T0}, v{V_T0}, v{s0+15}")
    g.e(f"v_max_f32 v{V_T1}, v{V_T1}, v{s1+15}")
    g.e(f"v_add_u32 v{V_CNT}, 1, v{V_CNT}")
    g.e("s_nop 0")
    g.e(f"v_permlane32_swap_b32 v{V_T0}, v{V_T1}")
    g.e(f"v_max_f32 v{V_T0}, v{V_T0}, v{V_T1}")
    g.e(f"v_mul_f32 v{V_T0}, s{S_C}, v{V_T0}")
    g.e(f"v_max_f32 v{V_MA}, v{V_M}, v{V_T0}")
    g.e(f"v_sub_f32 v{V_T1}, v{V_M}, v{V_MA}")
    g.e(f"v_mov_b32 v{V_MB}, v{V_MA}")
    g.e(f"v_exp_f32 v{aa}, v{V_T1}")
    g.e(f"v_mov_b32 v{V_M}, v{V_MA}")
    g.e(f"v_permlane32_swap_b32 v{V_MA}, v{V_MB}")
    g.e(f"v_mov_b32 v{ab}, v{aa}")
    for j in range(0, 16, 2):
        for qh in range(2):
            r = V_S + 16*qh + j
            m = V_MA if qh == 0 else V_MB
            g.e(f"v_pk_fma_f32 {vr(r,2)}, {vr(r,2)}, {sr(S_C2,2)}, {vr(m,2)} op_sel_hi:[1,1,0] neg_lo:[0,0,1] neg_hi:[0,0,1]")
        if j == 0: g.e(f"v_permlane32_swap_b32 v{aa}, v{ab}")
    for j in range(16):
        for qh in range(2):
            r = V_S + 16*qh + j
            g.e(f"v_exp_f32 v{r}, v{r}")
    g.e(f"ds_read_b32 v{V_PT}, v{V_FLAG}")
    for ts in range(2):
        for r in range(4):
            for qh in range(2):
                src = V_S + 16*qh + 8*ts + 2*r
                g.e(f"v_cvt_pk_bf16_f32 v{V_PP[e] + (qh*2+ts)*4 + r}, v{src}, v{src+1}")

def iteration(g, e, tag):
    x = g.e
    g.c(f"---- iteration parity {e}")
    x(f"s_add_u32 s{S_T1}, s{S_I}, 3")
    x(f"s_cmp_ge_u32 s{S_T1}, s{S_NT}")
    x(f"s_cbranch_scc1 L_last_{tag}")
    poll(g, "k" + tag, True)
    for r in k_reads(1 - e): x(r)
    for r in resc(e, 0, True): x(r)
    qk_phase(g, resc(e, 1) + resc(e, 2) + resc(e, 3)[:26])
    for r in resc(e, 3)[26:]: x(r)
    for r in need_v(): x(r)
    softmax(g, 1 - e, tag, 3)
    poll(g, "v" + tag, True)
    rd = v_reads(e)
    for r in rd[:12]: x(r)
    ls = lsum(1 - e)
    for r in ls[:10]: x(r)
    x("s_waitcnt lgkmcnt(10)")
    for r in rd[12:]: x(r)
    for r in ls[10:]: x(r)
    x("s_waitcnt lgkmcnt(12)")
    for ts in range(2):
        for qh in range(2): x(pv(e, 0, ts, qh))
    x("s_waitcnt lgkmcnt(8)")
    for ts in range(2):
        for qh in range(2): x(pv(e, 1, ts, qh))
    x("s_waitcnt lgkmcnt(0)")
    x(f"ds_write_b32 v{V_DONE}, v{V_CNT}")
    x(f"s_add_u32 s{S_I}, s{S_I}, 3")
    for ts in range(2):
        for qh in range(2): x(pv(e, 2, ts, qh))
    x(f"v_add_u32 v{V_CNT}, 1, v{V_CNT}")
    for r in need_k_next(): x(r)
    x(pv(e, 3, 0, 0))
    if g.a.split:
      x(f"s_cmp_lg_u32 s{S_IMP}, 0")
      x(f"s_cbranch_scc1 L_imp_{tag}")
      g.lab(f"L_impr_{tag}")
      g.ool += [f"L_imp_{tag}:",
        f"    s_cmp_eq_u32 s{S_IMP}, 2",
        f"    s_cbranch_scc1 L_imp2_{tag}",
        f"    s_add_u32 s{S_T2}, s{S_I}, {g.a.impat}",
        f"    s_cmp_lt_u32 s{S_T2}, s{S_NT}",
        f"    s_cbranch_scc1 L_impr_{tag}",
        f"    global_load_dword v63, v62, s[28:29] sc1",
        f"    s_add_u32 s{S_IMP}, s{S_IMP}, 1",
        f"    s_branch L_impr_{tag}",
        f"L_imp2_{tag}:",
        "    s_waitcnt vmcnt(0)",
        f"    v_readfirstlane_b32 s{S_T2}, v63",
        f"    s_cmp_eq_u32 s{S_T2}, 0",
        f"    s_addc_u32 s{S_IMP}, 0, 0"] + ([
        f"    s_cmp_lg_u32 s{S_IMP}, 0",
        f"    s_cbranch_scc1 L_impr_{tag}",
        "    buffer_inv sc1"] if g.a.rel else []) + [
        f"    s_branch L_impr_{tag}"]
    x(pv(e, 3, 0, 1))
    x(f"ds_read_b32 v{V_PT}, v{V_FLAG}")
    x(pv(e, 3, 1, 0)); x(pv(e, 3, 1, 1))

def write_stats(g):
    e = g.e
    e(f"v_permlane32_swap_b32 v{V_L0}, v{V_L1}")
    e(f"v_lshlrev_b32 v48, 3, v{V_LANE}")
    e(f"s_lshl_b32 s{S_T1}, s{S_ROLE}, 9")
    e(f"s_add_u32 s{S_T1}, s{S_T1}, {LDS_STAT}")
    e(f"v_add_u32 v49, s{S_T1}, v48")
    e(f"v_mov_b32 v50, v{V_M}")
    e(f"v_add_f32 v51, v{V_L0}, v{V_L1}")
    e("ds_write_b64 v49, v[50:51]")

def last_tile(g, e, tag):
    x = g.e
    g.lab(f"L_last_{tag}")
    if g.a.estamps: x("s_memrealtime s[90:91]")
    if g.a.split:
      x(f"s_cmp_lg_u32 s{S_IMP}, 0")
      x(f"s_cbranch_scc1 L_impb_{tag}")
      g.lab(f"L_impbr_{tag}")
      g.ool += [f"L_impb_{tag}:",
        f"    global_load_dword v63, v62, s[28:29] sc1",
        "    s_waitcnt vmcnt(0)",
        f"    v_readfirstlane_b32 s{S_T2}, v63",
        f"    s_cmp_eq_u32 s{S_T2}, 0",
        f"    s_cbranch_scc1 L_impb_{tag}"] + (["    buffer_inv sc1"] if g.a.rel else []) + [
        f"    s_branch L_impbr_{tag}"]
      if g.a.rel: x("s_waitcnt vmcnt(0)")
    write_stats(g)
    x(f"v_mov_b32 v{V_CNT}, 1")
    for r in need_v(): x(r)
    x("s_waitcnt lgkmcnt(0)")
    x(f"ds_write_b32 v{V_FIN}, v{V_CNT}")
    ew_addrs(g)
    for db in range(4):
        for r in resc(e, db, True): x(r)
    if g.a.estamps: x("s_memrealtime s[92:93]")
    poll(g, "l" + tag)
    if g.a.estamps:
        x("s_memrealtime s[94:95]"); x("s_waitcnt lgkmcnt(0)")
    rd = v_reads(e)
    for r in rd[:12]: x(r)
    x(f"v_mov_b32 v{V_CNT}, 2")
    x("s_waitcnt lgkmcnt(10)")
    x(pv(e,0,0,0))
    for r in rd[12:]: x(r)
    x("s_waitcnt lgkmcnt(12)")
    x(pv(e,0,1,0))
    x("s_waitcnt lgkmcnt(8)")
    x(pv(e,1,0,0)); x("s_nop 3"); x(pv(e,1,1,0)); x("s_nop 3")
    x("s_waitcnt lgkmcnt(0)")
    order = [db*8 + jj for db in range(4) for jj in range(4)] + [db*8 + 4 + jj for db in range(4) for jj in range(4)]
    ms = [pv(e,2,0,0), pv(e,2,1,0), pv(e,3,0,0), pv(e,3,1,0)] + [pv(e,db,ts,1) for db in range(4) for ts in range(2)]
    per = [1, 1, 1, 1, 2, 2, 2, 2, 2, 2, 2, 2]
    w = 0
    for m, n in zip(ms, per):
        x(m)
        for _ in range(n):
            x(owrite(order[w])); w += 1
            if w == 16: x(f"ds_write_b32 v{V_FIN}, v{V_CNT}")
    x(f"v_mov_b32 v{V_CNT}, 3")
    while w < 32:
        if w == 28: x("s_nop 3")
        x(owrite(order[w])); w += 1
    x("s_branch L_fin2")

def first_tile(g, e, tag):
    x = g.e
    for r in k_reads(e): x(r)
    qk_phase(g, [])
    x("s_nop 7"); x("s_nop 1")
    softmax(g, e, tag, 0)
    for r in lsum(e): x(r)
    x(f"v_add_u32 v{V_CNT}, 1, v{V_CNT}")
    for r in need_k_next(): x(r)

def stamp(g, k):
    if g.a.stamps: g.e(f"s_memrealtime s[{88+2*k}:{89+2*k}]")

def decide(g):
    e = g.e; a = g.a
    if not a.split:
        e(f"s_cmp_eq_u32 s{S_CL}, 0")
        e(f"s_cselect_b32 s{S_KEY}, 2048, s{S_CL}")
        e(f"s_bfe_u32 s{S_T0}, s{S_QO0}, 0x2000e")
        e(f"s_cmp_eq_u32 s{S_T0}, 1")
        e(f"s_cselect_b32 s{S_T2}, {a.thetal}, -1")
        e(f"s_cselect_b32 s{S_T1}, {a.bonus}, 0")
        e(f"s_cmp_ge_u32 s{S_KEY}, s{S_T2}")
        e(f"s_cselect_b32 s{S_T1}, 4096, s{S_T1}")
        e(f"s_add_u32 s{S_KEY}, s{S_KEY}, s{S_T1}")
        e(f"s_mov_b32 s{S_TB}, 0")
        e(f"s_mov_b32 s{S_QSRC}, {LDS_Q}")
        return
    assert a.hmap == 2
    for p in range(2):
        e(f"s_max_i32 s{S_CL4+p}, s{S_CL4+p}, 0")
        e(f"s_min_i32 s{S_CL4+p}, s{S_CL4+p}, 2048")
    e(f"s_bitcmp1_b32 s3, 0")
    e(f"s_cselect_b32 s{S_CLO}, s{S_CL4+1}, s{S_CL4}")
    e(f"s_cselect_b32 s{S_T1}, s{S_CL4}, s{S_CL4+1}")
    e(f"s_cmp_eq_u32 s{S_CLO}, 0")
    e(f"s_cselect_b32 s{S_KEY}, 2048, s{S_CLO}")
    e(f"s_bfe_u32 s{S_T0}, s{S_QO0}, 0x2000e")
    e(f"s_cmp_eq_u32 s{S_T0}, 1")
    e(f"s_cselect_b32 s{S_CLV}, s{S_CLO}, s{S_T1}")
    e(f"s_cselect_b32 s{S_T1}, s{S_T1}, s{S_CLO}")
    e(f"s_cselect_b32 s{S_MODE}, 2, 1")
    e(f"s_cselect_b32 s{S_T2}, {a.thetal}, -1")
    e(f"s_bitcmp1_b32 s{S_T0}, 0")
    e(f"s_cselect_b32 s{S_MODE}, s{S_MODE}, 0")
    e(f"s_cmp_lt_u32 s{S_CLV}, {a.theta}")
    e(f"s_cselect_b32 s{S_MODE}, 0, s{S_MODE}")
    e(f"s_sub_u32 s{S_T1}, s{S_T1}, 1")
    e(f"s_cmp_ge_u32 s{S_T1}, {a.sigma}")
    e(f"s_cselect_b32 s{S_MODE}, 0, s{S_MODE}")
    e(f"s_cmp_ge_u32 s{S_KEY}, s{S_T2}")
    e(f"s_cselect_b32 s{S_KEY}, 4096, s{S_KEY}")
    e(f"s_mov_b32 s{S_QSRC}, {LDS_Q}")
    e(f"s_xor_b32 s{S_T2}, s3, 1")
    e(f"s_cmp_eq_u32 s{S_MODE}, 2")
    e(f"s_cselect_b32 s{S_T2}, s3, s{S_T2}")
    e(f"s_lshl1_add_u32 s{S_QOV}, s{S_T2}, s2")
    e(f"s_and_b32 s{S_QOV}, s{S_QOV}, 7")
    e(f"s_lshr_b32 s{S_SLOT}, s{S_QOV}, 2")
    e(f"s_lshl1_add_u32 s{S_SLOT}, s{S_T2}, s{S_SLOT}")
    e(f"s_bfe_u32 s{S_HD}, s{S_QO0}, 0x3000e")
    e(f"s_sub_u32 s{S_HD}, s{S_QOV}, s{S_HD}")
    e(f"s_lshl_b32 s{S_HD}, s{S_HD}, 8")
    e(f"s_lshl3_add_u32 s{S_QOV}, s{S_T2}, s{S_QOV}")
    e(f"s_lshl_b32 s{S_QOV}, s{S_QOV}, 14")
    e(f"s_add_u32 s{S_T2}, s{S_CLV}, {31 - 32*a.t0}")
    e(f"s_lshr_b32 s{S_T2}, s{S_T2}, 5")
    e(f"s_and_b32 s{S_T2}, s{S_T2}, 63")
    e(f"s_mul_i32 s{S_CUT}, s{S_T2}, 171")
    e(f"s_lshr_b32 s{S_CUT}, s{S_CUT}, 9")
    e(f"s_mul_i32 s{S_CUT}, s{S_CUT}, 3")
    e(f"s_sub_u32 s{S_CUT}, s{S_T2}, s{S_CUT}")
    e(f"s_add_u32 s{S_CUT}, s{S_CUT}, {a.t0}")
    e(f"s_lshl_b32 s{S_T2}, s{S_CUT}, 5")
    e(f"s_sub_u32 s{S_T2}, s{S_CLV}, s{S_T2}")
    e(f"s_add_u32 s{S_T2}, s{S_T2}, s{S_KEY}")
    e(f"s_mul_i32 s{S_T2}, s{S_T2}, {a.hs}")
    e(f"s_lshr_b32 s{S_T2}, s{S_T2}, 8")
    e(f"s_cmp_eq_u32 s{S_MODE}, 1")
    e(f"s_cselect_b32 s{S_KEY}, s{S_T2}, s{S_KEY}")
    e(f"s_cselect_b32 s{S_CL}, s{S_CLV}, s{S_CLO}")
    e(f"s_cselect_b32 s{S_TB}, s{S_CUT}, 0")
    e(f"s_cselect_b32 s{S_QSRC}, {LDS_Q2}, s{S_QSRC}")

def job_common(g, first=False):
    e = g.e; a = g.a
    e(f"s_cmp_eq_u32 s{S_CL}, 0")
    e(f"s_cselect_b32 s{S_CLE}, 2048, s{S_CL}")
    e(f"s_add_u32 s{S_TE}, s{S_CLE}, 31")
    e(f"s_lshr_b32 s{S_TE}, s{S_TE}, 5")
    if a.split and not first:
        e(f"s_cmp_eq_u32 s{S_MODE}, 2")
        e(f"s_cselect_b32 s{S_TE}, s{S_CUT}, s{S_TE}")
    e(f"s_sub_u32 s{S_NT}, s{S_TE}, s{S_TB}")
    e(f"s_sub_u32 s{S_T1}, s{S_NT}, 1")
    e(f"s_mul_i32 s{S_T2}, s{S_T1}, 171")
    e(f"s_lshr_b32 s{S_T2}, s{S_T2}, 9")
    e(f"s_mul_i32 s{S_T2}, s{S_T2}, 3")
    e(f"s_sub_u32 s{S_T1}, s{S_T1}, s{S_T2}")
    e(f"s_sub_u32 s{S_SH}, {a.clast + 3}, s{S_T1}")
    e(f"s_cmp_ge_u32 s{S_SH}, 3")
    e(f"s_cselect_b32 s{S_T2}, 3, 0")
    e(f"s_sub_u32 s{S_SH}, s{S_SH}, s{S_T2}")

def next_job(g):
    e = g.e
    e(f"s_mov_b32 s{S_MODE}, 0")
    e(f"s_mov_b32 s{S_CL}, s{S_CLO}")
    e(f"s_mov_b32 s{S_TB}, 0")
    e(f"s_mov_b32 s{S_QSRC}, {LDS_Q}")

def reduce_setup(g, sg0):
    e = g.e
    cl = g.a.clast
    cA = (cl + 1) % 3
    e(f"s_mov_b32 s{S_G0}, s{sg0}")
    e("v_lshrrev_b32 v48, 2, v47")
    e("v_and_b32 v49, 3, v47")
    e("v_lshl_add_u32 v48, v48, 3, v49")
    e("v_lshlrev_b32 v48, 10, v48")
    if cA: e(f"v_add_u32 v48, {cA*32768}, v48")
    e("v_xor_b32 v49, v46, v47")
    for k in range(3):
        e(f"s_add_u32 s{S_OB}, s{sg0}, {k}")
        e(f"s_and_b32 s{S_T1}, s{S_OB}, 3")
        e(f"s_lshl_b32 s{S_T1}, s{S_T1}, 2")
        e(f"v_xor_b32 v50, s{S_T1}, v49")
        e(f"v_lshl_add_u32 v50, v50, 4, v48")
        e(f"s_bfe_u32 s{S_T2}, s{S_OB}, 0x10002")
        e(f"s_lshl_b32 s{S_T2}, s{S_T2}, 8")
        e(f"v_add_u32 v{V_RA+k}, s{S_T2}, v50")
    e(f"v_lshlrev_b32 v{V_SA}, 3, v{V_LANE}")
    e(f"v_add_u32 v{V_SA}, {LDS_STAT}, v{V_SA}")
    e(f"s_lshl_b32 s{S_T1}, s{sg0}, 6")
    e(f"s_add_u32 s{S_T1}, s{S_T1}, {LDS_G}")
    e(f"v_lshl_add_u32 v{V_BP}, v46, 4, s{S_T1}")
    e(f"v_min_u32 v{V_FP}, 3, v{V_LANE}")
    e(f"v_lshlrev_b32 v{V_FP}, 8, v{V_FP}")
    e(f"v_add_u32 v{V_FP}, {LDS_FIN}, v{V_FP}")
    e(f"s_lshl_b32 s{S_T1}, s{sg0}, 10")
    e(f"s_add_u32 s{S_OA}, s{S_QO0}, s{S_T1}")
    e(f"s_add_u32 s{S_OB}, s{S_OA}, 8192")
    e(f"v_lshlrev_b32 v{V_OV}, 4, v{V_LANE}")

def reduce_code(g, NG, tag, mode):
    e = g.e; a = g.a
    exp_stats = (tag == "d")
    tag = f"{tag}{mode}"
    cC = a.clast; cA = (cC + 1) % 3; cB = (cC + 2) % 3
    dB = ((cB - cA) * 32768) & 0xffffffff; dC = ((cC - cB) * 32768) & 0xffffffff
    dR = ((cA - cC) * 32768) & 0xffffffff
    V_G = 64; V_OUT = 96; V_ACC = 128; V_IN = 192
    ST = 32; T = 40; VP = 43; VT = 42
    H = NG // 2
    NR = 4 if mode == 2 else 3
    def kk(k): return (k % H, k // H)
    def waitfin(conds, lab):
        def test(out):
            if len(conds) == 1:
                out.append(f"s_cmp_ge_u32 s{S_F+conds[0][0]}, {conds[0][1]}")
            else:
                out.append(f"s_min_u32 s{S_T0}, s{S_F}, s{S_F+1}")
                out.append(f"s_min_u32 s{S_T0}, s{S_T0}, s{S_F+2}")
                out.append(f"s_cmp_ge_u32 s{S_T0}, 1")
        o = [f"{lab}:", f"ds_read_b32 v{VP}, v{V_FP}", "s_waitcnt lgkmcnt(0)"] + [f"v_readlane_b32 s{S_F+i}, v{VP}, {i}" for i in range(4)]
        test(o)
        if len(conds) > 1:
            for l in o: (g.lab(l[:-1]) if l.endswith(":") else e(l))
            e(f"s_cbranch_scc0 {lab}")
        else:
            t = []; test(t)
            for l in t: e(l)
            e(f"s_cbranch_scc0 {lab}")
            g.lab(f"{lab}r")
            g.ool += [l if l.endswith(":") else "    " + l for l in o] + [f"    s_cbranch_scc1 {lab}r", f"    s_branch {lab}"]
    def wsrd():
        e(f"s_mov_b32 s{S_WSRD}, s30"); e(f"s_mov_b32 s{S_WSRD+1}, s31")
        e(f"s_mov_b32 s{S_WSRD+2}, {80*65536}"); e(f"s_mov_b32 s{S_WSRD+3}, 0x20000")
        e(f"s_lshl_b32 s{S_P0}, s{S_SLOT}, 16")
        e(f"s_add_u32 s{S_P0}, s{S_P0}, 0x100000")
        e(f"s_add_u32 s{S_P1}, s{S_P0}, 32768")
        e(f"s_lshl_b32 s{S_T1}, s{S_G0}, 12")
        e(f"s_add_u32 s{S_P0}, s{S_P0}, s{S_T1}")
    def foreign():
        for k in range(NG):
            for hh in range(2):
                e(f"buffer_load_dwordx4 {vr(V_ACC+k*8+hh*4,4)}, v{V_OV}, {sr(S_WSRD,4)}, s{S_P0} offen offset:{(k&1)*2048+hh*1024} {a.hpol}")
            if k & 1: e(f"s_add_u32 s{S_P0}, s{S_P0}, 4096")
    waitfin([(0,1),(1,1),(2,1)], f"L_reduce_{tag}")
    if a.estamps and not a.e2: e("s_memrealtime s[90:91]")
    if exp_stats:
        for ro in range(3): e(f"ds_read_b64 {vr(ST+2*ro,2)}, v{V_SA} offset:{ro*512}")
        if mode:
            wsrd()
            e(f"v_lshlrev_b32 v{VT}, 3, v{V_LANE}")
        if mode == 2:
            e(f"buffer_load_dwordx2 {vr(ST+6,2)}, v{VT}, {sr(S_WSRD,4)}, s{S_P1} offen {a.hpol}")
            foreign()
        e(f"v_add_u32 v{VP}, {LDS_G}, v{V_OV}")
        e("v_mov_b32 v44, 1")
        e("s_waitcnt lgkmcnt(0)")
        e(f"v_max3_f32 v{T}, v{ST}, v{ST+2}, v{ST+4}")
        if mode == 2:
            e(f"s_waitcnt vmcnt({2*NG})")
            e(f"v_max_f32 v{T}, v{T}, v{ST+6}")
        for ro in range(NR): e(f"v_sub_f32 v{ST+2*ro}, v{ST+2*ro}, v{T}")
        for ro in range(NR): e(f"v_exp_f32 v{ST+2*ro}, v{ST+2*ro}")
        if mode == 2:
            e("s_nop 0")
            e(f"v_mul_f32 v{ST+6}, v{ST+6}, v{ST+7}")
            e(f"v_fma_f32 v{T+1}, v{ST}, v{ST+1}, v{ST+6}")
        else:
            e(f"v_mul_f32 v{T+1}, v{ST}, v{ST+1}")
        e(f"v_fma_f32 v{T+1}, v{ST+2}, v{ST+3}, v{T+1}")
        e(f"v_fma_f32 v{T+1}, v{ST+4}, v{ST+5}, v{T+1}")
        if mode == 1:
            e(f"buffer_store_dwordx2 {vr(T,2)}, v{VT}, {sr(S_WSRD,4)}, s{S_P1} offen {a.hpol}")
        e(f"v_rcp_f32 v{ST+1}, v{T+1}")
        e("s_nop 0")
        for ro in range(NR): e(f"v_mul_f32 v{48+ro}, v{ST+2*ro}, v{ST+1}")
        e(f"ds_write_b128 v{VP}, v[48:51]")
        e(f"ds_write_b32 v{V_FLAG}, v44 offset:{LDS_FIN + 768 - LDS_FLAG}")
    else:
        if mode: wsrd()
        if mode == 2: foreign()
        waitfin([(3,1)], f"L_rpg_{tag}")
    def gf(k, ro): return V_G + k*4 + ro
    for k in range(NG):
        e(f"ds_read_b128 {vr(V_G+4*k,4)}, v{V_BP} offset:{kk(k)[0]*64 + kk(k)[1]*512}")
    def pkop(op, d, s_, f, acc):
        sel = f & 1
        fr = vr(f & ~1, 2)
        if acc: e(f"v_pk_fma_f32 {vr(d,2)}, {vr(s_,2)}, {fr}, {vr(d,2)} op_sel:[0,{sel},0] op_sel_hi:[1,{sel},1]")
        else: e(f"v_pk_mul_f32 {vr(d,2)}, {vr(s_,2)}, {fr} op_sel:[0,{sel}] op_sel_hi:[1,{sel}]")
    def acck(k, ro, first):
        for x in range(0, 8, 2):
            pkop(None, V_ACC + k*8 + x, V_IN + k*8 + x, gf(k, ro), not first)
    def stage(ks, body):
        for b0 in range(0, len(ks), 6):
            kb = ks[b0:b0+6]
            e("s_waitcnt lgkmcnt(3)")
            for k in kb:
                for hh in range(2):
                    e(f"ds_read_b128 {vr(V_IN + k*8 + hh*4, 4)}, v{V_RA+kk(k)[0]} offset:{hh*512 + kk(k)[1]*4096}")
            for n, k in enumerate(kb):
                e(f"s_waitcnt lgkmcnt({2*(len(kb)-1-n)})")
                body(k)
    if mode == 2:
        e("s_waitcnt vmcnt(0) lgkmcnt(0)")
        for k in range(NG):
            for x in range(0, 8, 2): pkop(None, V_ACC + k*8 + x, V_ACC + k*8 + x, gf(k, 3), False)
    if a.e2:
        e("s_memrealtime s[90:91]"); e("s_waitcnt lgkmcnt(0)")
    waitfin([(0,3)], f"L_rpa_{tag}")
    stage(list(range(NG)), lambda k: acck(k, 0, mode != 2))
    if a.e2:
        e("s_memrealtime s[92:93]"); e("s_waitcnt lgkmcnt(0)")
    for k in range(H): e(f"v_add_u32 v{V_RA+k}, 0x{dB:x}, v{V_RA+k}")
    waitfin([(1,3)], f"L_rpb_{tag}")
    stage(list(range(NG)), lambda k: acck(k, 1, False))
    for k in range(H): e(f"v_add_u32 v{V_RA+k}, 0x{dC:x}, v{V_RA+k}")
    if a.estamps:
        e("s_memrealtime s[94:95]" if a.e2 else "s_memrealtime s[92:93]"); e("s_waitcnt lgkmcnt(0)")
    def fin(k):
        acck(k, 2, False)
        if mode == 1:
            for hh in range(2):
                e(f"buffer_store_dwordx4 {vr(V_ACC+k*8+hh*4,4)}, v{V_OV}, {sr(S_WSRD,4)}, s{S_P0} offen offset:{(k&1)*2048+hh*1024} {a.hpol}")
            if k & 1: e(f"s_add_u32 s{S_P0}, s{S_P0}, 4096")
        else:
            for x in range(4):
                e(f"v_cvt_pk_bf16_f32 v{V_OUT + k*4 + x}, v{V_ACC + k*8 + 2*x}, v{V_ACC + k*8 + 2*x + 1}")
            so = S_OA if kk(k)[1] == 0 else S_OB
            e(f"buffer_store_dwordx4 {vr(V_OUT + k*4, 4)}, v{V_OV}, {sr(S_XSRD,4)}, s{so} offen offset:{kk(k)[0]*1024} {a.stpol}")
    for half in range(2):
        waitfin([(2, 2 + half)], f"L_rpc{half}_{tag}")
        stage(list(range(half * H, half * H + H)), fin)
    if mode == 1:
        for k in range(H): e(f"v_add_u32 v{V_RA+k}, 0x{dR:x}, v{V_RA+k}")
        e("s_branch L_jobend")
    else:
        if a.estamps and not a.e2: e("s_memrealtime s[94:95]")
        e("s_branch L_out")
    g.o += g.ool; g.ool = []

def build(a):
    g = Gen(a); e = g.e
    stamps, spin = a.stamps, a.spin
    pol = (" " + a.nt) if a.nt else ""
    c = (128 ** -0.5) * math.log2(math.e)
    R = -1e9 * math.sqrt(128.0)
    hdr = open("standalone__paged_block_table_kv_pagedattention__sampling.s.ref").read().split("\n")
    head = [l for l in hdr if l.startswith(";") and "@launch" not in l and "Override launch" not in l and "grid=ceil" not in l]
    out = head + [f"; @launch grid=(256,1,1) block=(256,1,1) lds={LDS_TOTAL if a.split else LDS_NOSPLIT}",
        '.amdgcn_target "amdgcn-amd-amdhsa--gfx950"',
        "; Paged GQA attention, one workgroup per (batch, kv head), generated by dev/gen14.py.",
        ";  wave 0   : loader. Streams Q, K and V tiles (32 tokens) into LDS with buffer_load ... lds; the number of",
        ";             loads in flight is chosen from the sequence length so that all workgroups finish together.",
        ";  waves 1-3: consumers, tiles round-robin. S^T = K Q^T (MFMA 32x32x16), online softmax with the running row",
        ";             max, O^T += V^T P^T; QK/softmax run one tile ahead of PV. Progress words in LDS pair them with the loader.",
        ";  end      : partial O of the three consumers are merged through LDS, rows written as 1 KiB stores.",
        ";  Long sequences on heads with (h & 3) == 1 hand their last tiles to the workgroup of batch b^1 (partial in d_ws,",
        ";  flag in d_debug).",
        ".text", f".globl {NAME}", ".p2align 8",
        f".type {NAME},@function", f"{NAME}:"]
    e("s_cmp_ge_u32 s2, 256")
    e("s_cbranch_scc1 L_end")
    e("s_load_dwordx16 s[16:31], s[0:1], 0")
    if a.x1: e("s_xor_b32 s2, s2, 1")
    if spin or stamps: e("s_memrealtime s[88:89]")
    e("v_lshrrev_b32 v2, 6, v0")
    e(f"v_and_b32 v{V_LANE}, 63, v0")
    e(f"v_readfirstlane_b32 s{S_W}, v2")
    e("s_lshr_b32 s3, s2, 3")
    if a.hmap == 1: e(f"s_add_u32 s{S_T0}, s2, s3")
    elif a.hmap == 2: e(f"s_lshl1_add_u32 s{S_T0}, s3, s2")
    elif a.hmap == 3:
        e(f"s_lshl1_add_u32 s{S_T0}, s3, s2"); e(f"s_add_u32 s{S_T0}, s{S_T0}, 1")
    elif a.hmap >= 4:
        e(f"s_and_b32 s{S_T0}, s2, 7"); e(f"s_lshl_b32 s{S_T0}, s{S_T0}, 2")
        e(f"s_lshr_b32 s{S_T0}, 0x{a.hperm}, s{S_T0}")
    e(f"s_and_b32 s{S_T0}, s{S_T0}, 7")
    e(f"s_lshl3_add_u32 s{S_QO0}, s3, s{S_T0}")
    e(f"s_lshl_b32 s{S_QO0}, s{S_QO0}, 14")
    e(f"v_lshrrev_b32 v46, 4, v{V_LANE}")
    e(f"v_and_b32 v47, 15, v{V_LANE}")
    e(f"s_cmp_lg_u32 s{S_W}, 0")
    e("s_cbranch_scc1 L_consumer")
    e(f"v_lshlrev_b32 v6, 3, v{V_LANE}")
    e(f"s_lshl_b32 s{S_P0}, s3, 9")
    e(f"s_lshl_b32 s{S_P1}, s3, 2")
    e(f"s_movk_i32 s{S_BSRD+2}, 0x4000"); e(f"s_mov_b32 s{S_BSRD+3}, 0x20000")
    e(f"s_mov_b32 s{S_XSRD+2}, {Q_BYTES}"); e(f"s_mov_b32 s{S_XSRD+3}, 0x20000")
    e(f"s_mov_b32 s{S_KSRD+2}, {KV_BYTES}"); e(f"s_mov_b32 s{S_KSRD+3}, 0x20000")
    e("v_xor_b32 v52, v47, v46")
    for k in range(4):
        if k: e(f"v_xor_b32 v53, {4*k}, v52")
        e(f"v_lshlrev_b32 v{48+k}, 4, v{53 if k else 52}")
        e(f"v_lshl_add_u32 v{V_DQ+k}, v46, 8, v{48+k}")
    e("s_waitcnt lgkmcnt(0)")
    stamp(g, 1)
    e(f"s_mov_b32 s{S_BSRD}, s22"); e(f"s_mov_b32 s{S_BSRD+1}, s23")
    e(f"s_load_dword s{S_CL}, s[24:25], s{S_P1}")
    e(f"buffer_load_dwordx2 {vr(V_BT,2)}, v6, {sr(S_BSRD,4)}, s{S_P0} offen")
    e(f"s_mov_b32 s{S_XSRD}, s16"); e(f"s_mov_b32 s{S_XSRD+1}, s17")
    for gq in range(4):
        e(f"s_mov_b32 m0, {LDS_Q + gq*4096}")
        e(f"s_add_u32 s{S_T1}, s{S_QO0}, {gq*4096}")
        for k in range(4):
            e(f"buffer_load_dwordx4 v{V_DQ+k}, {sr(S_XSRD,4)}, s{S_T1} offen offset:{k*1024}{pol} lds")
    e(f"s_mov_b32 s{S_KSRD}, s18"); e(f"s_mov_b32 s{S_KSRD+1}, s19")
    e(f"s_lshl_b32 s{S_T2}, s{S_T0}, 8")
    e(f"v_lshlrev_b32 v54, 11, v46")
    e(f"v_add_u32 v54, s{S_T2}, v54")
    e(f"v_add_u32 v{V_DK}, v54, v48")
    for k in range(1, 4):
        e(f"v_add_u32 v53, {k*7168}, v54")
        e(f"v_add_u32 v{V_DK+k}, v53, v{48+k}")
    e(f"v_lshlrev_b32 v5, 1, v{V_LANE}")
    e("v_add_u32 v7, 1, v5")
    e(f"v_mov_b32 v61, {KV_BYTES}")
    e(f"s_mov_b32 s{S_TB}, 0")
    e("s_waitcnt lgkmcnt(0)")
    e(f"s_max_i32 s{S_CL}, s{S_CL}, 0")
    e(f"s_min_i32 s{S_CL}, s{S_CL}, 2048")
    job_common(g, True)
    e(f"s_add_u32 s{S_NP}, s{S_CLE}, 15")
    e(f"s_lshr_b32 s{S_NP}, s{S_NP}, 4")
    if a.noload: e(f"s_mov_b32 s{S_NP}, 0")
    e(f"v_cmp_gt_u32 vcc, s{S_NP}, v5")
    e(f"v_cmp_gt_u32 s[32:33], s{S_NP}, v7")
    e("s_waitcnt vmcnt(16)")
    stamp(g, 2)
    e(f"v_lshlrev_b32 v{V_BT}, 15, v{V_BT}")
    e(f"v_lshlrev_b32 v{V_BT+1}, 15, v{V_BT+1}")
    e(f"v_cndmask_b32 v{V_BT}, v61, v{V_BT}, vcc")
    e(f"v_cndmask_b32 v{V_BT+1}, v61, v{V_BT+1}, s[32:33]")
    def advance(si, sc, sn, sb, extra):
        e(f"s_add_u32 s{si}, s{si}, 1")
        e(f"s_add_u32 s{sc}, s{sc}, 1")
        e(f"s_add_u32 s{sb}, s{sb}, 32768")
        e(f"s_add_u32 s{S_T1}, s{sn}, 2")
        e(f"s_lshl_b32 s{S_T2}, s{S_T1}, 13")
        e(f"s_and_b32 s{S_T2}, s{S_T2}, 16384")
        if extra: e(f"s_add_u32 s{S_T2}, s{S_T2}, {extra}")
        e(f"s_cmp_eq_u32 s{sc}, 3")
        e(f"s_cselect_b32 s{sc}, 0, s{sc}")
        e(f"s_cselect_b32 s{sn}, s{S_T1}, s{sn}")
        e(f"s_cselect_b32 s{sb}, s{S_T2}, s{sb}")
    def opening(tag):
        e(f"s_lshl_b32 s{S_LB}, s{S_SH}, 15")
        e(f"s_mov_b32 s{S_J}, s{S_TB}"); e(f"s_mov_b32 s{S_CI}, s{S_SH}"); e(f"s_mov_b32 s{S_NK}, 0")
        e(f"s_min_u32 s{S_NP}, s{S_NT}, {a.burst}")
        e(f"s_add_u32 s{S_T1}, s{S_NP}, 2")
        e(f"v_mov_b32 v{V_CNT}, s{S_T1}")
        e(f"s_add_u32 s{S_NP}, s{S_NP}, s{S_TB}")
        g.lab(f"L_burst{tag}")
        e(f"v_readlane_b32 s{S_P0}, v{V_BT}, s{S_J}")
        e(f"v_readlane_b32 s{S_P1}, v{V_BT+1}, s{S_J}")
        e("s_nop 2")
        for it in range(2):
            e(f"s_add_u32 m0, s{S_LB}, {it*4096}")
            e("s_nop 0")
            for i in range(4):
                e(f"buffer_load_dwordx4 v{V_DK+i}, {sr(S_KSRD,4)}, s{S_P0 if it == 0 else S_P1} offen offset:{i*1024}{pol} lds")
        advance(S_J, S_CI, S_N, S_LB, 0)
        e(f"s_cmp_lt_u32 s{S_J}, s{S_NP}")
        e(f"s_cbranch_scc1 L_burst{tag}")
        stamp(g, 3)
        e(f"s_mov_b32 s{S_I}, s{S_TB}"); e(f"s_mov_b32 s{S_CV}, s{S_SH}"); e(f"s_mov_b32 s{S_NV}, 0")
        e(f"s_lshl_b32 s{S_LBV}, s{S_SH}, 15")
        e(f"s_add_u32 s{S_LBV}, s{S_LBV}, 8192")
    opening("0")
    if a.split:
        e(f"s_and_b32 s{S_P1}, s3, 30")
        e(f"s_lshl_b32 s{S_P1}, s{S_P1}, 2")
        e(f"s_load_dwordx2 {sr(S_CL4,2)}, s[24:25], s{S_P1}")
    e(f"v_lshlrev_b32 v{V_FLAG}, 2, v{V_LANE}")
    e(f"v_add_u32 v{V_FLAG}, {LDS_FLAG}, v{V_FLAG}")
    e("v_mov_b32 v53, 0")
    for k in range(8): e(f"ds_write_b32 v{V_FLAG}, v53 offset:{256*k}")
    e(f"s_mov_b32 s{S_VSRD}, s20"); e(f"s_mov_b32 s{S_VSRD+1}, s21")
    e(f"s_mov_b32 s{S_VSRD+2}, {KV_BYTES}"); e(f"s_mov_b32 s{S_VSRD+3}, 0x20000")
    e("v_lshlrev_b32 v53, 2, v46")
    e("v_xor_b32 v53, v47, v53")
    e(f"v_lshl_add_u32 v{V_DV}, v53, 4, v54")
    for k in range(1, 4): e(f"v_add_u32 v{V_DV+k}, {k*7168}, v{V_DV}")
    e(f"v_min_u32 v{V_DONE}, 3, v{V_LANE}")
    e(f"v_lshlrev_b32 v{V_DONE}, 8, v{V_DONE}")
    e(f"v_add_u32 v{V_FP}, {LDS_FIN}, v{V_DONE}")
    e(f"v_add_u32 v{V_DONE}, {LDS_DONE}, v{V_DONE}")
    e(f"v_mov_b32 v{V_PT}, 0")
    if a.split: e(f"v_mov_b32 v{V_BT2}, 0")
    e("s_waitcnt lgkmcnt(0)")
    e("s_barrier")
    decide(g)
    if a.split:
        e(f"s_cmp_eq_u32 s{S_MODE}, 2")
        e(f"s_cselect_b32 s{S_TE}, s{S_CUT}, s{S_TE}")
        e(f"s_sub_u32 s{S_NT}, s{S_TE}, s{S_TB}")
    cA = (a.clast + 1) % 3
    e("v_lshrrev_b32 v48, 2, v47")
    e("v_and_b32 v49, 3, v47")
    e("v_lshl_add_u32 v48, v48, 3, v49")
    e("v_lshlrev_b32 v48, 10, v48")
    e("v_mov_b32 v51, v52")
    for k in range(4):
        cst = cA*32768 + ((k >> 2) & 1) * 256
        if k & 3: e(f"v_xor_b32 v50, {4*(k&3)}, v51")
        e(f"v_lshl_add_u32 v{V_RA+k}, v{50 if k & 3 else 51}, 4, v48")
        if cst: e(f"v_add_u32 v{V_RA+k}, {cst}, v{V_RA+k}")
    e(f"v_lshlrev_b32 v{V_SA}, 3, v{V_LANE}")
    e(f"v_add_u32 v{V_SA}, {LDS_STAT}, v{V_SA}")
    e(f"v_lshlrev_b32 v{V_BP}, 4, v46")
    e(f"v_add_u32 v{V_BP}, {LDS_G}, v{V_BP}")
    e(f"v_lshlrev_b32 v{V_OV}, 4, v{V_LANE}")
    e(f"s_mov_b32 s{S_G0}, 0")
    e(f"s_mov_b32 s{S_OA}, s{S_QO0}")
    e(f"s_add_u32 s{S_OB}, s{S_QO0}, 8192")
    if a.split:
        e(f"s_cmp_eq_u32 s{S_MODE}, 1")
        e("s_cbranch_scc1 L_lhelp")
        h = ["L_lhelp:",
             f"    s_lshr_b32 s{S_T1}, s{S_QOV}, 17", f"    s_lshl_b32 s{S_T1}, s{S_T1}, 11",
             ]
        h = ["L_lhelp:", "    s_waitcnt vmcnt(24)",
             f"    s_lshr_b32 s{S_T1}, s{S_QOV}, 17", f"    s_lshl_b32 s{S_T1}, s{S_T1}, 9",
             f"    v_add_u32 v48, s{S_T1}, v6",
             f"    global_load_dwordx2 v[50:51], v48, s[22:23]"]
        for gq in range(4):
            h.append(f"    s_mov_b32 m0, {LDS_Q2 + gq*4096}")
            h.append(f"    s_add_u32 s{S_T1}, s{S_QOV}, {gq*4096}")
            for k in range(4):
                h.append(f"    buffer_load_dwordx4 v{V_DQ+k}, {sr(S_XSRD,4)}, s{S_T1} offen offset:{k*1024}{pol} lds")
        h += [f"    s_mov_b32 s{S_XSRD}, s26", f"    s_mov_b32 s{S_XSRD+1}, s27",
              f"    s_add_u32 s{S_NP}, s{S_CLV}, 15", f"    s_lshr_b32 s{S_NP}, s{S_NP}, 4",
              f"    v_cmp_gt_u32 vcc, s{S_NP}, v5", f"    v_cmp_gt_u32 s[32:33], s{S_NP}, v7",
              f"    v_mov_b32 v{V_BT2}, v{V_BT}", f"    v_mov_b32 v{V_BT2+1}, v{V_BT+1}"]
        for k in range(8): h.append(f"    v_add_u32 v{V_DK+k}, s{S_HD}, v{V_DK+k}")
        sub = Gen(a); job_common(sub); h += sub.o
        h += ["    s_waitcnt vmcnt(16)",
              "    v_lshlrev_b32 v50, 15, v50", "    v_lshlrev_b32 v51, 15, v51",
              f"    v_cndmask_b32 v{V_BT}, v61, v50, vcc", f"    v_cndmask_b32 v{V_BT+1}, v61, v51, s[32:33]",
              "    s_branch L_ljob"]
        g.ool += h
    e(f"s_mov_b32 s{S_XSRD}, s26"); e(f"s_mov_b32 s{S_XSRD+1}, s27")
    g.lab("L_lgo")
    if a.epub:
        e(f"s_cmp_lt_u32 s{S_NT}, {a.burst}")
        e("s_cbranch_scc1 L_lgo2")
        for k in range(a.epub):
            e(f"v_mov_b32 v27, {2 + k}")
            e(f"s_waitcnt vmcnt({8*(a.burst - k)})")
            e(f"ds_write_b32 v{V_FLAG}, v27")
        g.lab("L_lgo2")
    e(f"s_min_u32 s{S_NP}, s{S_NT}, {LEAD}")
    e(f"s_add_u32 s{S_NP}, s{S_NP}, s{S_TB}")
    for (clmin, L) in reversed(a.table[1:]):
        e(f"s_cmp_ge_u32 s{S_KEY}, {clmin}")
        e(f"s_cbranch_scc1 L_var_{L}")
    def group(lims, srd, vb, sbase, sp0, sp1):
        if isinstance(lims, int): lims = [lims] * 8
        hs = [(p - lims[p] + 1) // 8 for p in range(8)]
        best = max(hs); p1 = hs.index(best); lag = -best
        for q in range(8):
            it = q >> 2; i = q & 3
            if i == 0: e(f"s_add_u32 m0, s{sbase}, {it*4096}")
            e(f"s_waitcnt vmcnt({lims[q]-1})")
            e(f"buffer_load_dwordx4 v{vb+i}, {sr(srd,4)}, s{sp0 if it == 0 else sp1} offen offset:{i*1024}{pol} lds")
            if q == p1:
                if lag:
                    e(f"v_subrev_u32 v27, {lag}, v{V_CNT}")
                    e(f"ds_write_b32 v{V_FLAG}, v27")
                else:
                    e(f"ds_write_b32 v{V_FLAG}, v{V_CNT}")
        e(f"v_add_u32 v{V_CNT}, 1, v{V_CNT}")
    for (clmin, L2) in a.table:
        base = L2 // 4; up = (L2 % 4) * 4
        lim16 = [base + 1] * up + [base] * (16 - up)
        LK = lim16[:8]; LV = lim16[8:]
        LT = min(a.tmax, max(base, int(round(L2 / 4.0 * a.tf))))
        L = L2
        g.lab(f"L_var_{L}")
        e(f"s_cmp_ge_u32 s{S_J}, s{S_NP}")
        e(f"s_cbranch_scc1 L_lp_{L}")
        g.lab(f"L_pk_{L}")
        e(f"v_readlane_b32 s{S_P0}, v{V_BT}, s{S_J}")
        e(f"v_readlane_b32 s{S_P1}, v{V_BT+1}, s{S_J}")
        e("s_nop 2")
        group(LK, S_KSRD, V_DK, S_LB, S_P0, S_P1)
        advance(S_J, S_CI, S_N, S_LB, 0)
        e(f"s_cmp_lt_u32 s{S_J}, s{S_NP}")
        e(f"s_cbranch_scc1 L_pk_{L}")
        g.lab(f"L_lp_{L}")
        e(f"s_cmp_ge_u32 s{S_J}, s{S_TE}")
        e(f"s_cbranch_scc1 L_tl_{L}")
        g.lab(f"L_lp2_{L}")
        e(f"v_readlane_b32 s{S_P2}, v{V_BT}, s{S_I}")
        e(f"v_readlane_b32 s{S_P3}, v{V_BT+1}, s{S_I}")
        e(f"v_readlane_b32 s{S_P0}, v{V_BT}, s{S_J}")
        e(f"v_readlane_b32 s{S_P1}, v{V_BT+1}, s{S_J}")
        g.lab(f"L_chk_{L}")
        e("s_waitcnt lgkmcnt(0)")
        e(f"v_readlane_b32 s{S_T1}, v{V_PT}, s{S_CI}")
        e(f"v_readlane_b32 s{S_T2}, v{V_PT}, s{S_CV}")
        e(f"ds_read_b32 v{V_PT}, v{V_DONE}")
        e(f"s_cmp_lt_u32 s{S_NV}, 4")
        e(f"s_cselect_b32 s{S_T2}, s{S_NV}, s{S_T2}")
        e(f"s_cmp_lt_u32 s{S_T2}, s{S_NV}")
        e(f"s_cbranch_scc1 L_chk_{L}")
        e(f"s_add_u32 s{S_T1}, s{S_T1}, 3")
        e(f"s_cmp_lt_u32 s{S_T1}, s{S_N}")
        e(f"s_cbranch_scc1 L_chk_{L}")
        group(LK, S_KSRD, V_DK, S_LB, S_P0, S_P1)
        advance(S_J, S_CI, S_N, S_LB, 0)
        group(LV, S_VSRD, V_DV, S_LBV, S_P2, S_P3)
        advance(S_I, S_CV, S_NV, S_LBV, 8192)
        e(f"s_cmp_lt_u32 s{S_J}, s{S_TE}")
        e(f"s_cbranch_scc1 L_lp2_{L}")
        g.lab(f"L_tl_{L}")
        e(f"v_readlane_b32 s{S_P2}, v{V_BT}, s{S_I}")
        e(f"v_readlane_b32 s{S_P3}, v{V_BT+1}, s{S_I}")
        g.lab(f"L_chv_{L}")
        e("s_waitcnt lgkmcnt(0)")
        e(f"v_readlane_b32 s{S_T2}, v{V_PT}, s{S_CV}")
        e(f"ds_read_b32 v{V_PT}, v{V_DONE}")
        e(f"s_cmp_lt_u32 s{S_NV}, 4")
        e(f"s_cselect_b32 s{S_T2}, s{S_NV}, s{S_T2}")
        e(f"s_cmp_lt_u32 s{S_T2}, s{S_NV}")
        e(f"s_cbranch_scc1 L_chv_{L}")
        group(LT, S_VSRD, V_DV, S_LBV, S_P2, S_P3)
        advance(S_I, S_CV, S_NV, S_LBV, 8192)
        e(f"s_cmp_lt_u32 s{S_I}, s{S_TE}")
        e(f"s_cbranch_scc1 L_tl_{L}")
        lag = (LT - 1) // 8
        for k in range(lag, -1, -1):
            e(f"s_waitcnt vmcnt({8*k})")
            if k:
                e(f"v_subrev_u32 v27, {k}, v{V_CNT}")
                e(f"ds_write_b32 v{V_FLAG}, v27")
            else:
                e(f"ds_write_b32 v{V_FLAG}, v{V_CNT}")
        e("s_branch L_ldone")
    g.lab("L_ldone")
    stamp(g, 4)
    e("s_branch L_red_d")
    if a.split:
        g.lab("L_ljob")
        opening("1")
        e("s_branch L_lgo")
    g.lab("L_consumer")
    if a.tlb:
        e(f"s_cmp_gt_u32 s{S_W}, {a.tlb}")
        e("s_cbranch_scc1 L_notlb")
        e(f"s_sub_u32 s{S_T1}, s{S_W}, 1")
        e(f"s_lshl_b32 s{S_T1}, s{S_T1}, 5")
        e(f"s_add_u32 s{S_T1}, s{S_T1}, s3")
        e(f"s_mul_i32 s{S_T1}, s{S_T1}, {a.tlbn}")
        e(f"v_add_u32 v2, s{S_T1}, v{V_LANE}")
        e("v_and_b32 v2, 63, v2")
        e("v_lshlrev_b32 v2, 21, v2")
        e(f"s_mov_b64 exec, {(1 << a.tlbn) - 1}")
        e("s_waitcnt lgkmcnt(0)")
        e("global_load_dword v5, v2, s[18:19] nt")
        e("global_load_dword v6, v2, s[20:21] nt")
        e("s_mov_b64 exec, -1")
        g.lab("L_notlb")
    if a.wstat:
        e("s_mov_b32 s10, 0"); e("s_mov_b32 s11, 0")
    if not a.early: e("s_barrier")
    if a.split:
        e(f"s_and_b32 s{S_P1}, s3, 30")
        e(f"s_lshl_b32 s{S_P1}, s{S_P1}, 2")
    else:
        e(f"s_lshl_b32 s{S_P1}, s3, 2")
    e(f"v_lshlrev_b32 v{V_FLAG}, 2, v{V_LANE}")
    e(f"v_add_u32 v{V_FLAG}, {LDS_FLAG}, v{V_FLAG}")
    e(f"s_sub_u32 s{S_CI}, s{S_W}, 1")
    e(f"s_lshl_b32 s{S_LB}, s{S_CI}, 15")
    e(f"v_lshrrev_b32 v3, 5, v{V_LANE}")
    e(f"v_and_b32 v4, 31, v{V_LANE}")
    e(f"s_add_u32 s{S_ROLE}, s{S_CI}, {2 - a.clast}")
    if a.clast != 2:
        e(f"s_cmp_ge_u32 s{S_ROLE}, 3")
        e(f"s_cselect_b32 s{S_T1}, 3, 0")
        e(f"s_sub_u32 s{S_ROLE}, s{S_ROLE}, s{S_T1}")
    e(f"s_lshl_b32 s{S_T1}, s{S_ROLE}, 8")
    e(f"s_add_u32 s{S_T1}, s{S_T1}, {LDS_FIN - LDS_FLAG}")
    e(f"v_add_u32 v{V_FIN}, s{S_T1}, v{V_FLAG}")
    e("v_lshrrev_b32 v48, 2, v47")
    e("v_lshl_add_u32 v49, v3, 2, v48")
    e("v_lshlrev_b32 v49, 8, v49")
    e("v_and_b32 v50, 1, v46")
    e("v_lshl_add_u32 v49, v50, 5, v49")
    e(f"v_and_b32 v50, 3, v{V_LANE}")
    e("v_lshl_add_u32 v49, v50, 3, v49")
    e(f"v_add_u32 v49, s{S_LB}, v49")
    e("v_add_u32 v49, 8192, v49")
    for db in range(4):
        e(f"v_xor_b32 v50, {db}, v48")
        e(f"v_lshl_add_u32 v{V_VA+db}, v50, 6, v49")
    e("s_waitcnt lgkmcnt(0)")
    if a.split: e(f"s_load_dwordx2 {sr(S_CL4,2)}, s[24:25], s{S_P1}")
    else: e(f"s_load_dword s{S_CL}, s[24:25], s{S_P1}")
    e(f"s_mov_b32 s{S_XSRD}, s26"); e(f"s_mov_b32 s{S_XSRD+1}, s27")
    e(f"s_mov_b32 s{S_XSRD+2}, {Q_BYTES}"); e(f"s_mov_b32 s{S_XSRD+3}, 0x20000")
    if a.split:
        e(f"s_mov_b32 s{S_KSRD}, s18"); e(f"s_mov_b32 s{S_KSRD+1}, s19")
        e(f"s_mov_b32 s{S_KSRD+2}, {KV_BYTES}"); e(f"s_mov_b32 s{S_KSRD+3}, 0x20000")
        e(f"s_mov_b32 s{S_VSRD}, s20"); e(f"s_mov_b32 s{S_VSRD+1}, s21")
        e(f"s_mov_b32 s{S_VSRD+2}, {KV_BYTES}"); e(f"s_mov_b32 s{S_VSRD+3}, 0x20000")
    e(f"s_cmp_eq_u32 s{S_ROLE}, 0")
    e(f"s_cselect_b32 s{S_T0}, {a.hd_}, {a.hd_ + a.ha_}")
    reduce_setup(g, S_T0)
    e("v_and_b32 v48, 15, v4")
    e("v_xor_b32 v48, v48, v3")
    e("v_lshlrev_b32 v49, 8, v4")
    for st in range(8):
        e(f"v_xor_b32 v50, {2*st}, v48")
        e(f"v_lshl_add_u32 v50, v50, 4, v49")
        e(f"v_add_u32 v{V_KA+st}, s{S_LB}, v50")
    e(f"s_lshl_b32 s{S_T1}, s{S_W}, 8")
    e(f"v_add_u32 v{V_DONE}, s{S_T1}, v{V_FLAG}")
    e(f"v_mov_b32 v{V_R}, 0x{f32bits(R):08x}")
    e(f"s_mov_b32 s{S_C}, 0x{f32bits(c):08x}")
    e(f"s_mov_b32 s{S_C2}, s{S_C}"); e(f"s_mov_b32 s{S_C2+1}, s{S_C}")
    e("s_waitcnt lgkmcnt(0)")
    if a.split:
        decide(g)
        e(f"s_mov_b32 s{S_IMP}, 0")
    else:
        e(f"s_max_i32 s{S_CL}, s{S_CL}, 0")
        e(f"s_min_i32 s{S_CL}, s{S_CL}, 2048")
        e(f"s_mov_b32 s{S_TB}, 0")
        e(f"s_mov_b32 s{S_QSRC}, {LDS_Q}")
    if a.split:
        e(f"s_lshl_b32 s{S_T1}, s{S_SLOT}, 2")
        e(f"v_mov_b32 v62, s{S_T1}")
        e(f"s_lshl_b32 s{S_T1}, s{S_MODE}, 2")
        e(f"s_add_u32 s{S_T1}, s{S_T1}, s{S_ROLE}")
        e(f"s_cmp_eq_u32 s{S_T1}, 10")
        e(f"s_addc_u32 s{S_IMP}, 0, 0")
    if a.early == 1:
        e("s_barrier")
    g.lab("L_cjob")
    job_common(g)
    e(f"v_mov_b32 v{V_M}, 0x{f32bits(-3.0e38):08x}")
    e(f"v_mov_b32 v{V_L0}, 0"); e(f"v_mov_b32 v{V_L1}, 0")
    e(f"s_sub_u32 s{S_T1}, s{S_QSRC}, s{S_LB}")
    for st in range(8): e(f"v_add_u32 v{V_S+st}, s{S_T1}, v{V_KA+st}")
    for r in range(0, 128, 2):
        e(f"v_pk_mul_f32 {vr(V_O+r,2)}, {vr(V_L0,2)}, {vr(V_L0,2)}")
    e(f"s_add_u32 s{S_NVB}, s{S_NT}, 3")
    e(f"s_sub_u32 s{S_JM}, s{S_NT}, 1")
    e(f"s_sub_u32 s{S_T1}, s{S_TE}, 1")
    e(f"s_lshl_b32 s{S_T1}, s{S_T1}, 5")
    e(f"s_sub_i32 s{S_REM}, s{S_CL}, s{S_T1}")
    e(f"s_cmp_eq_u32 s{S_CL}, 0")
    e(f"s_cselect_b32 s{S_JM}, 0, s{S_JM}")
    e(f"v_lshrrev_b32 v48, 5, v{V_LANE}")
    e("v_lshlrev_b32 v48, 2, v48")
    e(f"v_sub_u32 v{V_REM}, s{S_REM}, v48")
    e(f"s_sub_u32 s{S_I}, s{S_CI}, s{S_SH}")
    e(f"s_cmp_lt_u32 s{S_CI}, s{S_SH}")
    e(f"s_cselect_b32 s{S_T1}, 3, 0")
    e(f"s_addc_u32 s{S_PAR}, 0, 0")
    e(f"s_add_u32 s{S_I}, s{S_I}, s{S_T1}")
    e(f"v_mov_b32 v{V_CNT}, s{S_PAR}")
    e(f"ds_write_b32 v{V_DONE}, v{V_CNT}")
    e(f"s_lshl_b32 s{S_T1}, s{S_PAR}, 1")
    e(f"s_add_u32 s{S_T1}, s{S_T1}, 1")
    e(f"v_mov_b32 v{V_CNT}, s{S_T1}")
    e(f"s_cmp_ge_u32 s{S_I}, s{S_NT}")
    e("s_cbranch_scc1 L_notiles")
    e(f"s_mov_b32 s{S_H}, 0")
    e(f"s_mov_b32 s{S_NEED}, 2")
    poll(g, "q")
    for qh in range(2):
        for st in range(8):
            e(f"ds_read_b128 {ar(A_Q+(qh*8+st)*4,4)}, v{V_S+st} offset:{qh*8192}")
        if qh == 0: e("s_waitcnt lgkmcnt(4)")
    need_k_first(g)
    e("s_waitcnt lgkmcnt(0)")
    poll(g, "k0")
    if a.stamps and not a.estamps:
        e("s_memrealtime s[90:91]"); e("s_waitcnt lgkmcnt(0)")
    e(f"s_cmp_eq_u32 s{S_PAR}, 1")
    e("s_cbranch_scc1 L_start_b")
    first_tile(g, 0, "fa")
    g.lab("L_loop")
    iteration(g, 0, "a")
    g.lab("L_loop_b")
    iteration(g, 1, "b")
    e("s_branch L_loop")
    g.lab("L_start_b")
    first_tile(g, 1, "fb")
    e("s_branch L_loop_b")
    last_tile(g, 0, "a")
    last_tile(g, 1, "b")
    g.o += g.ool; g.ool = []
    g.lab("L_notiles")
    write_stats(g)
    ew_addrs(g)
    e(f"v_mov_b32 v{V_CNT}, 3")
    for idx in range(32): e(owrite(idx))
    g.lab("L_fin2")
    e(f"ds_write_b32 v{V_FIN}, v{V_CNT}")
    stamp(g, 4)
    e(f"s_cmp_eq_u32 s{S_ROLE}, 0")
    e("s_cbranch_scc1 L_red_a")
    e(f"s_cmp_eq_u32 s{S_ROLE}, 2")
    e("s_cbranch_scc1 L_red_c")
    for (t, n) in (("b", 2*a.hb_), ("a", 2*a.ha_), ("d", 2*a.hd_)):
        if t != "b": g.lab(f"L_red_{t}")
        if a.split:
            e(f"s_cmp_eq_u32 s{S_MODE}, 1")
            e(f"s_cbranch_scc1 L_reduce_{t}1")
            e(f"s_cmp_eq_u32 s{S_MODE}, 2")
            e(f"s_cbranch_scc1 L_reduce_{t}2")
        reduce_code(g, n, t, 0)
    if a.split:
        for m in (1, 2):
            for (t, n) in (("b", 2*a.hb_), ("a", 2*a.ha_), ("d", 2*a.hd_)): reduce_code(g, n, t, m)
    g.lab("L_red_c")
    if a.split:
        e(f"s_cmp_lg_u32 s{S_MODE}, 1")
        e("s_cbranch_scc1 L_out")
        g.lab("L_jobend")
        e("s_waitcnt vmcnt(0) lgkmcnt(0)")
        e("s_barrier")
        next_job(g)
        e(f"s_cmp_lg_u32 s{S_W}, 0")
        e("s_cbranch_scc1 L_cnext")
        e(f"s_lshl_b32 s{S_T1}, s{S_SLOT}, 2")
        e(f"v_mov_b32 v48, s{S_T1}")
        e("v_mov_b32 v49, 1")
        e("v_mov_b32 v50, 0")
        e("v_mov_b32 v51, 2")
        if not a.rel:
            e("s_mov_b64 exec, 1")
            e("global_store_dword v48, v49, s[28:29] sc1")
            e("s_mov_b64 exec, -1")
        e(f"ds_write_b32 v{V_FLAG}, v51")
        for k in range(1, 8): e(f"ds_write_b32 v{V_FLAG}, v50 offset:{256*k}")
        e(f"v_mov_b32 v{V_BT}, v{V_BT2}"); e(f"v_mov_b32 v{V_BT+1}, v{V_BT2+1}")
        for k in range(8): e(f"v_subrev_u32 v{V_DK+k}, s{S_HD}, v{V_DK+k}")
        e(f"v_mov_b32 v{V_PT}, 0")
        job_common(g)
        e("s_waitcnt lgkmcnt(0)")
        e("s_barrier")
        e("s_branch L_ljob")
        g.lab("L_cnext")
        e("s_barrier")
        if a.rel:
            e(f"s_cmp_lg_u32 s{S_ROLE}, {a.relrole}")
            e("s_cbranch_scc1 L_cjob")
            e("buffer_wbl2 sc1")
            e("v_mov_b32 v63, 1")
            e("s_waitcnt vmcnt(0)")
            e("s_mov_b64 exec, 1")
            e("global_store_dword v62, v63, s[28:29] sc1")
            e("s_mov_b64 exec, -1")
        e("s_branch L_cjob")
    g.lab("L_out")
    if a.dbg:
        e(f"s_cmp_lg_u32 s{S_W}, 0"); e("s_cbranch_scc1 L_end")
        e("s_waitcnt vmcnt(0)")
        e("s_memrealtime s[98:99]")
        e("s_getreg_b32 s100, hwreg(HW_REG_XCC_ID)")
        e("s_waitcnt lgkmcnt(0)")
        e("s_mov_b64 exec, 1")
        for r in (90, 92, 94, 96, 98): e(f"s_sub_u32 s{r}, s{r}, s88")
        e("s_and_b32 s100, s100, 15")
        def put(idx, sreg):
            e(f"v_mov_b32 v4, s{sreg}"); e(f"global_store_dword v2, v4, s[28:29] offset:{4*idx}"); e("s_nop 1")
        e("v_mov_b32 v2, 0")
        e("s_cmp_eq_u32 s2, 88"); e("s_cbranch_scc0 L_d1")
        put(8, 90); put(9, 92); put(10, 94); put(11, 100)
        g.lab("L_d1")
        e("s_cmp_eq_u32 s2, 200"); e("s_cbranch_scc0 L_d2")
        put(12, 96); put(13, 94)
        g.lab("L_d2")
        e("s_cmp_eq_u32 s2, 130"); e("s_cbranch_scc0 L_d3")
        put(14, 96); put(15, 98)
        g.lab("L_d3")
        e("s_lshr_b32 s101, s2, 3"); e("s_cmp_eq_u32 s101, 11"); e("s_cbranch_scc0 L_end")
        e("s_and_b32 s101, s2, 7"); e("s_lshl_b32 s101, s101, 2"); e("v_mov_b32 v2, s101")
        put(0, 98)
    elif stamps:
        e("s_waitcnt vmcnt(0)")
        e("s_memrealtime s[98:99]")
        if a.wstat:
            e("s_mov_b32 s90, s10"); e("s_mov_b32 s91, 0"); e("s_mov_b32 s92, s11"); e("s_mov_b32 s93, 0")
        e("s_getreg_b32 s100, hwreg(HW_REG_XCC_ID)")
        e("s_getreg_b32 s101, hwreg(HW_REG_HW_ID)")
        e("s_lshl_b32 s3, s2, 2")
        e(f"s_add_u32 s3, s3, s{S_W}")
        e("s_lshl_b32 s3, s3, 6")
        e("v_mov_b32 v2, s3")
        e("s_waitcnt lgkmcnt(0)")
        for k in range(6):
            e(f"v_mov_b32 v4, s{88+2*k}")
            e(f"v_mov_b32 v5, s{89+2*k}")
            e(f"global_store_dwordx2 v2, v[4:5], s[30:31] offset:{8*k}")
            e("s_nop 1")
        e("v_mov_b32 v4, 0"); e("v_mov_b32 v5, 0")
        e("global_store_dwordx2 v2, v[4:5], s[30:31] offset:48")
        e("s_nop 1")
        e("v_mov_b32 v4, s100"); e("v_mov_b32 v5, s101")
        e("global_store_dwordx2 v2, v[4:5], s[30:31] offset:56")
    if spin:
        e(f"s_add_u32 s88, s88, {spin*100}")
        e("s_addc_u32 s89, s89, 0")
        g.lab("L_spin")
        e("s_memrealtime s[90:91]")
        e("s_waitcnt lgkmcnt(0)")
        e("s_sub_u32 s92, s90, s88")
        e("s_subb_u32 s93, s91, s89")
        e("s_cmp_lt_i32 s93, 0")
        e("s_cbranch_scc1 L_spin")
    g.lab("L_end")
    e("s_endpgm")
    out += g.o
    out += ['.section .rodata,"a"', ".p2align 6", f".amdhsa_kernel {NAME}",
        "  .amdhsa_next_free_vgpr 384", "  .amdhsa_next_free_sgpr 102", "  .amdhsa_accum_offset 256",
        "  .amdhsa_group_segment_fixed_size 0", "  .amdhsa_kernarg_size 64", "  .amdhsa_user_sgpr_count 2",
        "  .amdhsa_user_sgpr_kernarg_segment_ptr 1", "  .amdhsa_system_sgpr_workgroup_id_x 1",
        ".end_amdhsa_kernel", ""]
    return "\n".join(out)

def parse():
    ap = argparse.ArgumentParser()
    ap.add_argument("-L", type=int, default=20)
    ap.add_argument("--lin", default="")
    ap.add_argument("--nt", default="nt")
    ap.add_argument("--bonus", type=int, default=0)
    ap.add_argument("--clast", type=int, default=2)
    ap.add_argument("--lead", type=int, default=5)
    ap.add_argument("--tab", default="")
    ap.add_argument("--res", type=int, default=2)
    ap.add_argument("--tf", type=float, default=1.0)
    ap.add_argument("--tmax", type=int, default=32)
    ap.add_argument("--dry", type=int, default=0)
    ap.add_argument("--pf", type=int, default=2)
    ap.add_argument("--theta", type=int, default=1850)
    ap.add_argument("--ahead", type=int, default=10)
    ap.add_argument("--pstep", type=int, default=3)
    ap.add_argument("--pfirst", type=int, default=10)
    ap.add_argument("--lv", type=int, default=40)
    ap.add_argument("--split", type=int, default=0)
    ap.add_argument("--t0", type=int, default=56)
    ap.add_argument("--thetal", type=int, default=1800)
    ap.add_argument("--hs", type=int, default=280)
    ap.add_argument("--impat", type=int, default=18)
    ap.add_argument("--burst", type=int, default=4)
    ap.add_argument("--hmap", type=int, default=2)
    ap.add_argument("--dbg", action="store_true")
    ap.add_argument("--e2", action="store_true")
    ap.add_argument("--x1", action="store_true")
    ap.add_argument("--early", type=int, default=0)
    ap.add_argument("--epub", type=int, default=0)
    ap.add_argument("--red", default="332")
    ap.add_argument("--rel", type=int, default=0)
    ap.add_argument("--relrole", type=int, default=2)
    ap.add_argument("--kmax", type=int, default=2400)
    ap.add_argument("--tlb", type=int, default=0)
    ap.add_argument("--tlbn", type=int, default=2)
    ap.add_argument("--hperm", default="76345210")
    ap.add_argument("--fine", type=float, default=19)
    ap.add_argument("--hpol", default="sc1")
    ap.add_argument("--cheat", type=int, default=0)
    ap.add_argument("--sigma", type=int, default=1700)
    ap.add_argument("--hb", type=int, default=150)
    ap.add_argument("--spin", type=int, default=0)
    ap.add_argument("--stamps", action="store_true")
    ap.add_argument("--estamps", action="store_true")
    ap.add_argument("--noload", action="store_true")
    ap.add_argument("--wstat", action="store_true")
    ap.add_argument("--stpol", default="")
    ap.add_argument("-o", default="standalone__paged_block_table_kv_pagedattention__sampling.s")
    a = ap.parse_args()
    a.hd_, a.ha_, a.hb_ = [int(c) for c in a.red]
    assert a.hd_ + a.ha_ + a.hb_ == 8 and max(a.ha_, a.hb_) <= 3 and a.hd_ <= 4
    if a.rel: a.hpol = ""
    if a.tab:
        a.table = [tuple(int(y) for y in x.split(":")) for x in a.tab.split(",")]
        a.table[0] = (0, a.table[0][1])
    elif a.lin:
        pts = [float(x) for x in a.lin.split(",")]
        tab = []
        for cl in range(1024, (a.kmax if a.split else 2048) + 1):
            u = (cl - 1024) / 1024.0 * (len(pts) - 1)
            k = min(int(u), len(pts) - 2)
            Lf = pts[k] + (pts[k+1] - pts[k]) * (u - k)
            res = 4 if Lf < a.fine else a.res
            L = int(round(res * Lf)) * (4 // res)
            L = max(8, min(4 * 34, L))
            if not tab or tab[-1][1] < L: tab.append((cl, L))
        tab[0] = (0, tab[0][1])
        a.table = tab
    else:
        a.table = [(0, 4 * a.L)]
    a.table.append((4096, 4 * a.lv))
    assert not a.split or a.theta > 32 * (a.t0 + 2)
    return a

if __name__ == "__main__":
    a = parse()
    LEAD = a.lead
    open(a.o, "w").write(build(a))
```

```python
import sys, struct, math, argparse

NAME = "standalone__paged_block_table_kv_pagedattention__sampling_kernel"
KV_BYTES = 4100 * 32768
Q_BYTES = 32 * 32 * 16 * 128 * 2
LEAD = 6

def f32bits(x): return struct.unpack("<I", struct.pack("<f", x))[0]

class Gen:
    def __init__(self, a): self.o = []; self.a = a; self.ool = []
    def e(self, s): self.o.append("    " + s)
    def lab(self, s): self.o.append(s + ":")
    def c(self, s): self.o.append("    ; " + s)

LDS_Q = 98304
LDS_FLAG = 114688
LDS_DONE = LDS_FLAG + 256
LDS_FIN = LDS_FLAG + 1024
LDS_STAT = LDS_FLAG + 2048
LDS_G = LDS_STAT + 2048
LDS_Q2 = LDS_STAT + 3072
LDS_TOTAL = LDS_Q2 + 16384
LDS_NOSPLIT = LDS_Q2

S_KSRD = 4; S_VSRD = 8; S_XSRD = 12; S_BSRD = 76
S_C2 = 38; S_PAR = 47
S_CL4 = 40; S_KEY4 = 44; S_WSRD = 48
S_MODE, S_TB, S_CLO, S_HD, S_SLOT, S_QOV, S_SH, S_NVB, S_KEY, S_QSRC, S_IMP, S_CLV = 52, 53, 54, 55, 56, 57, 58, 59, 60, 61, 62, 63
S_TE = 77; S_G0 = 76; S_CUT = 46
V_BT2 = 62; V_REM = 28
S_P2, S_P3, S_J, S_LBV, S_CV, S_NV = 34, 35, 36, 37, 38, 39
S_CL, S_CLE, S_W, S_NT, S_NP, S_JM, S_REM, S_H = 64, 65, 66, 67, 68, 69, 70, 71
S_NEED, S_C, S_LB, S_I = 72, 73, 74, 75
S_DB, S_DC, S_OA, S_OB = 76, 77, 78, 79
S_P0, S_P1, S_T0, S_T1, S_T2 = 80, 81, 82, 83, 84
S_QO0, S_ROLE, S_CI, S_N = 85, 86, 87, 70
S_NK = S_N; S_FIRST = 71
V_LANE = 1
V_KA = 8; V_VA = 16
V_DK = 8; V_DV = 12; V_DQ = 16; V_BT = 20
V_FLAG = 22; V_CNT = 23; V_DONE = 24; V_PT = 25; V_FIN = 26
V_R = 27; V_M = 29; V_L0, V_L1 = 30, 31
V_T0, V_T1 = 32, 33
V_MA, V_MB = 34, 36
V_AL = [(38, 40), (42, 44)]
V_RA = 52; V_BP = 57; V_SA = 58; V_FP = 59; V_OV = 60
S_F = 40
V_PP = [64, 80]; V_S = 96; V_O = 128
V_EW = 96
A_Q = 0; A_K = 64; A_V = 96

def vr(b, n): return f"v[{b}:{b+n-1}]"
def ar(b, n): return f"a[{b}:{b+n-1}]"
def sr(b, n): return f"s[{b}:{b+n-1}]"

def poll(g, tag, pre=False):
    if pre:
        g.e("s_waitcnt lgkmcnt(0)")
        g.e(f"v_readfirstlane_b32 s{S_H}, v{V_PT}")
    g.e(f"s_cmp_ge_i32 s{S_H}, s{S_NEED}")
    g.e(f"s_cbranch_scc0 L_poll_{tag}")
    g.lab(f"L_ok_{tag}")
    if g.a.wstat:
        acc = 10 if tag[0] == "k" else 11
        g.ool += [f"L_poll_{tag}:", "    s_memtime s[8:9]", f"L_poll2_{tag}:",
            f"    ds_read_b32 v{V_PT}, v{V_FLAG}", "    s_waitcnt lgkmcnt(0)",
            f"    v_readfirstlane_b32 s{S_H}, v{V_PT}", f"    s_cmp_ge_i32 s{S_H}, s{S_NEED}",
            f"    s_cbranch_scc0 L_poll2_{tag}", "    s_memtime s[100:101]", "    s_waitcnt lgkmcnt(0)",
            "    s_sub_u32 s100, s100, s8", f"    s_add_u32 s{acc}, s{acc}, s100", f"    s_branch L_ok_{tag}"]
        return
    g.ool += [f"L_poll_{tag}:",
        f"    ds_read_b32 v{V_PT}, v{V_FLAG}",
        "    s_waitcnt lgkmcnt(0)",
        f"    v_readfirstlane_b32 s{S_H}, v{V_PT}",
        f"    s_cmp_ge_i32 s{S_H}, s{S_NEED}",
        f"    s_cbranch_scc1 L_ok_{tag}",
        f"    s_branch L_poll_{tag}"]

def need_k_first(g):
    g.e(f"s_lshl_b32 s{S_NEED}, s{S_I}, 1")
    g.e(f"s_add_i32 s{S_NEED}, s{S_NEED}, {3 - LEAD}")
    g.e(f"s_add_u32 s{S_T1}, s{S_I}, 3")
    g.e(f"s_max_i32 s{S_NEED}, s{S_NEED}, s{S_T1}")
def need_k_next():
    return [f"s_lshl_b32 s{S_NEED}, s{S_I}, 1", f"s_add_i32 s{S_NEED}, s{S_NEED}, {9 - LEAD}",
            f"s_add_u32 s{S_T1}, s{S_I}, 6", f"s_max_i32 s{S_NEED}, s{S_NEED}, s{S_T1}"]
def need_v():
    return [f"s_lshl_b32 s{S_NEED}, s{S_I}, 1", f"s_add_u32 s{S_NEED}, s{S_NEED}, {4 + LEAD}",
            f"s_add_u32 s{S_T1}, s{S_I}, s{S_NVB}", f"s_min_i32 s{S_NEED}, s{S_NEED}, s{S_T1}"]

def k_reads(e): return [f"ds_read_b128 {ar(A_K+4*st,4)}, v{V_KA+st} offset:{e*16384}" for st in range(8)]
def v_reads(e):
    return [f"ds_read_b64_tr_b16 {ar(A_V+(db*2+ts)*4+2*u,2)}, v{V_VA+db} offset:{e*16384+ts*4096+u*2048}"
            for db in range(4) for ts in range(2) for u in range(2)]
def qk(st, qh):
    cc = "0" if st == 0 else vr(V_S+16*qh, 16)
    return f"v_mfma_f32_32x32x16_bf16 {vr(V_S+16*qh,16)}, {ar(A_K+4*st,4)}, {ar(A_Q+(qh*8+st)*4,4)}, {cc}"
def pv(e, db, ts, qh):
    o = vr(V_O + (db*2+qh)*16, 16)
    return f"v_mfma_f32_32x32x16_bf16 {o}, {ar(A_V+(db*2+ts)*4,4)}, {vr(V_PP[e]+(qh*2+ts)*4,4)}, {o}"
def owrite(idx):
    db = idx >> 3; jj = idx & 3
    return f"ds_write_b128 v{V_EW + 4*db + jj}, {vr(V_O+4*idx,4)} offset:{idx*1024}"
def resc(e, db, pk=False):
    out = []
    for qh in range(2):
        al = V_AL[e][qh]
        if pk:
            for k in range(0, 16, 2):
                r = V_O + (db*2+qh)*16 + k
                out.append(f"v_pk_mul_f32 {vr(r,2)}, {vr(r,2)}, {vr(al,2)} op_sel_hi:[1,0]")
        else:
            for k in range(16):
                r = V_O + (db*2+qh)*16 + k
                out.append(f"v_mul_f32 v{r}, v{r}, v{al}")
    return out
def lsum(e):
    s0, s1 = V_S, V_S + 16
    aa, ab = V_AL[e]
    o = [f"v_pk_add_f32 v[48:49], {vr(s0,2)}, {vr(s0+2,2)}", f"v_pk_add_f32 v[50:51], {vr(s1,2)}, {vr(s1+2,2)}"]
    for k in range(4, 16, 2):
        o.append(f"v_pk_add_f32 v[48:49], v[48:49], {vr(s0+k,2)}")
        o.append(f"v_pk_add_f32 v[50:51], v[50:51], {vr(s1+k,2)}")
    o += [f"v_fma_f32 v{V_L0}, v{V_L0}, v{aa}, v48", f"v_fma_f32 v{V_L1}, v{V_L1}, v{ab}, v50",
          f"v_add_f32 v{V_L0}, v{V_L0}, v49", f"v_add_f32 v{V_L1}, v{V_L1}, v51"]
    return o
def ew_addrs(g):
    for f in range(16):
        g.e(f"v_xor_b32 v48, {f}, v{V_LANE}")
        g.e(f"v_lshl_add_u32 v{V_EW+f}, v48, 4, s{S_LB}")

def qk_phase(g, fill):
    mf = [qk(st, qh) for st in range(8) for qh in range(2)]
    n = len(mf); k = 0
    for i, m in enumerate(mf):
        st = i >> 1
        if (i & 1) == 0:
            if st < 4: g.e(f"s_waitcnt lgkmcnt({7-st})")
            elif st == 4:
                g.e("s_waitcnt lgkmcnt(0)")
                g.e(f"ds_write_b32 v{V_DONE}, v{V_CNT}")
        g.e(m)
        upto = (len(fill) * (i + 1) + n - 1) // n
        while k < upto:
            g.e(fill[k]); k += 1

def softmax(g, e, tag, imask):
    aa, ab = V_AL[e]
    if imask: g.e(f"s_add_u32 s{S_T2}, s{S_I}, {imask}")
    g.e(f"s_cmp_lt_u32 s{S_T2 if imask else S_I}, s{S_JM}")
    g.e(f"s_cbranch_scc0 L_mask_{tag}")
    g.lab(f"L_nomask_{tag}")
    g.ool.append(f"L_mask_{tag}:")
    prs = ["vcc", "s[32:33]", "s[34:35]", "s[36:37]"]
    for j0 in range(0, 16, 4):
        for j in range(j0, j0 + 4):
            g.ool.append(f"    v_cmp_gt_i32 {prs[j & 3]}, v{V_REM}, {(j & 3) + 8 * (j >> 2)}")
        if True: g.ool.append("    s_nop 1")
        for j in range(j0, j0 + 4):
            for qh in range(2):
                r = V_S + 16*qh + j
                g.ool.append(f"    v_cndmask_b32 v{r}, v{V_R}, v{r}, {prs[j & 3]}")
    g.ool.append(f"    s_branch L_nomask_{tag}")
    s0, s1 = V_S, V_S + 16
    g.e(f"v_max3_f32 v{V_T0}, v{s0}, v{s0+1}, v{s0+2}")
    g.e(f"v_max3_f32 v{V_T1}, v{s1}, v{s1+1}, v{s1+2}")
    for k in range(3, 15, 2):
        g.e(f"v_max3_f32 v{V_T0}, v{V_T0}, v{s0+k}, v{s0+k+1}")
        g.e(f"v_max3_f32 v{V_T1}, v{V_T1}, v{s1+k}, v{s1+k+1}")
    g.e(f"v_max_f32 v{V_T0}, v{V_T0}, v{s0+15}")
    g.e(f"v_max_f32 v{V_T1}, v{V_T1}, v{s1+15}")
    g.e(f"v_add_u32 v{V_CNT}, 1, v{V_CNT}")
    g.e("s_nop 0")
    g.e(f"v_permlane32_swap_b32 v{V_T0}, v{V_T1}")
    g.e(f"v_max_f32 v{V_T0}, v{V_T0}, v{V_T1}")
    g.e(f"v_mul_f32 v{V_T0}, s{S_C}, v{V_T0}")
    g.e(f"v_max_f32 v{V_MA}, v{V_M}, v{V_T0}")
    g.e(f"v_sub_f32 v{V_T1}, v{V_M}, v{V_MA}")
    g.e(f"v_mov_b32 v{V_MB}, v{V_MA}")
    g.e(f"v_exp_f32 v{aa}, v{V_T1}")
    g.e(f"v_mov_b32 v{V_M}, v{V_MA}")
    g.e(f"v_permlane32_swap_b32 v{V_MA}, v{V_MB}")
    g.e(f"v_mov_b32 v{ab}, v{aa}")
    for j in range(0, 16, 2):
        for qh in range(2):
            r = V_S + 16*qh + j
            m = V_MA if qh == 0 else V_MB
            g.e(f"v_pk_fma_f32 {vr(r,2)}, {vr(r,2)}, {sr(S_C2,2)}, {vr(m,2)} op_sel_hi:[1,1,0] neg_lo:[0,0,1] neg_hi:[0,0,1]")
        if j == 0: g.e(f"v_permlane32_swap_b32 v{aa}, v{ab}")
    for j in range(16):
        for qh in range(2):
            r = V_S + 16*qh + j
            g.e(f"v_exp_f32 v{r}, v{r}")
    g.e(f"ds_read_b32 v{V_PT}, v{V_FLAG}")
    for ts in range(2):
        for r in range(4):
            for qh in range(2):
                src = V_S + 16*qh + 8*ts + 2*r
                g.e(f"v_cvt_pk_bf16_f32 v{V_PP[e] + (qh*2+ts)*4 + r}, v{src}, v{src+1}")

def iteration(g, e, tag):
    x = g.e
    g.c(f"---- iteration parity {e}")
    x(f"s_add_u32 s{S_T1}, s{S_I}, 3")
    x(f"s_cmp_ge_u32 s{S_T1}, s{S_NT}")
    x(f"s_cbranch_scc1 L_last_{tag}")
    poll(g, "k" + tag, True)
    for r in k_reads(1 - e): x(r)
    for r in resc(e, 0, True): x(r)
    qk_phase(g, resc(e, 1) + resc(e, 2) + resc(e, 3)[:26])
    for r in resc(e, 3)[26:]: x(r)
    for r in need_v(): x(r)
    softmax(g, 1 - e, tag, 3)
    poll(g, "v" + tag, True)
    rd = v_reads(e)
    for r in rd[:12]: x(r)
    ls = lsum(1 - e)
    for r in ls[:10]: x(r)
    x("s_waitcnt lgkmcnt(10)")
    for r in rd[12:]: x(r)
    for r in ls[10:]: x(r)
    x("s_waitcnt lgkmcnt(12)")
    for ts in range(2):
        for qh in range(2): x(pv(e, 0, ts, qh))
    x("s_waitcnt lgkmcnt(8)")
    for ts in range(2):
        for qh in range(2): x(pv(e, 1, ts, qh))
    x("s_waitcnt lgkmcnt(0)")
    x(f"ds_write_b32 v{V_DONE}, v{V_CNT}")
    x(f"s_add_u32 s{S_I}, s{S_I}, 3")
    for ts in range(2):
        for qh in range(2): x(pv(e, 2, ts, qh))
    x(f"v_add_u32 v{V_CNT}, 1, v{V_CNT}")
    for r in need_k_next(): x(r)
    x(pv(e, 3, 0, 0))
    if g.a.split:
      x(f"s_cmp_lg_u32 s{S_IMP}, 0")
      x(f"s_cbranch_scc1 L_imp_{tag}")
      g.lab(f"L_impr_{tag}")
      g.ool += [f"L_imp_{tag}:",
        f"    s_cmp_eq_u32 s{S_IMP}, 2",
        f"    s_cbranch_scc1 L_imp2_{tag}",
        f"    s_add_u32 s{S_T2}, s{S_I}, {g.a.impat}",
        f"    s_cmp_lt_u32 s{S_T2}, s{S_NT}",
        f"    s_cbranch_scc1 L_impr_{tag}",
        f"    global_load_dword v63, v62, s[28:29] sc1",
        f"    s_add_u32 s{S_IMP}, s{S_IMP}, 1",
        f"    s_branch L_impr_{tag}",
        f"L_imp2_{tag}:",
        "    s_waitcnt vmcnt(0)",
        f"    v_readfirstlane_b32 s{S_T2}, v63",
        f"    s_cmp_eq_u32 s{S_T2}, 0",
        f"    s_addc_u32 s{S_IMP}, 0, 0"] + ([
        f"    s_cmp_lg_u32 s{S_IMP}, 0",
        f"    s_cbranch_scc1 L_impr_{tag}",
        "    buffer_inv sc1"] if g.a.rel else []) + [
        f"    s_branch L_impr_{tag}"]
    x(pv(e, 3, 0, 1))
    x(f"ds_read_b32 v{V_PT}, v{V_FLAG}")
    x(pv(e, 3, 1, 0)); x(pv(e, 3, 1, 1))

def write_stats(g):
    e = g.e
    e(f"v_permlane32_swap_b32 v{V_L0}, v{V_L1}")
    e(f"v_lshlrev_b32 v48, 3, v{V_LANE}")
    e(f"s_lshl_b32 s{S_T1}, s{S_ROLE}, 9")
    e(f"s_add_u32 s{S_T1}, s{S_T1}, {LDS_STAT}")
    e(f"v_add_u32 v49, s{S_T1}, v48")
    e(f"v_mov_b32 v50, v{V_M}")
    e(f"v_add_f32 v51, v{V_L0}, v{V_L1}")
    e("ds_write_b64 v49, v[50:51]")

def last_tile(g, e, tag):
    x = g.e
    g.lab(f"L_last_{tag}")
    if g.a.estamps: x("s_memrealtime s[90:91]")
    if g.a.split:
      x(f"s_cmp_lg_u32 s{S_IMP}, 0")
      x(f"s_cbranch_scc1 L_impb_{tag}")
      g.lab(f"L_impbr_{tag}")
      g.ool += [f"L_impb_{tag}:",
        f"    global_load_dword v63, v62, s[28:29] sc1",
        "    s_waitcnt vmcnt(0)",
        f"    v_readfirstlane_b32 s{S_T2}, v63",
        f"    s_cmp_eq_u32 s{S_T2}, 0",
        f"    s_cbranch_scc1 L_impb_{tag}"] + (["    buffer_inv sc1"] if g.a.rel else []) + [
        f"    s_branch L_impbr_{tag}"]
      if g.a.rel: x("s_waitcnt vmcnt(0)")
    write_stats(g)
    x(f"v_mov_b32 v{V_CNT}, 1")
    for r in need_v(): x(r)
    x("s_waitcnt lgkmcnt(0)")
    x(f"ds_write_b32 v{V_FIN}, v{V_CNT}")
    ew_addrs(g)
    for db in range(4):
        for r in resc(e, db, True): x(r)
    if g.a.estamps: x("s_memrealtime s[92:93]")
    if g.a.tight:
        g.lab(f"L_tp_{tag}")
        x(f"ds_read_b32 v{V_PT}, v{V_FLAG}")
        x("s_waitcnt lgkmcnt(0)")
        x(f"v_readfirstlane_b32 s{S_H}, v{V_PT}")
        x(f"s_cmp_ge_i32 s{S_H}, s{S_NEED}")
        x(f"s_cbranch_scc0 L_tp_{tag}")
    else:
        poll(g, "l" + tag)
    if g.a.estamps:
        x("s_memrealtime s[94:95]"); x("s_waitcnt lgkmcnt(0)")
    rd = v_reads(e)
    for r in rd[:12]: x(r)
    x(f"v_mov_b32 v{V_CNT}, 2")
    x("s_waitcnt lgkmcnt(10)")
    x(pv(e,0,0,0))
    for r in rd[12:]: x(r)
    x("s_waitcnt lgkmcnt(12)")
    x(pv(e,0,1,0))
    x("s_waitcnt lgkmcnt(8)")
    x(pv(e,1,0,0)); x("s_nop 3"); x(pv(e,1,1,0)); x("s_nop 3")
    x("s_waitcnt lgkmcnt(0)")
    order = [db*8 + jj for db in range(4) for jj in range(4)] + [db*8 + 4 + jj for db in range(4) for jj in range(4)]
    ms = [pv(e,2,0,0), pv(e,2,1,0), pv(e,3,0,0), pv(e,3,1,0)] + [pv(e,db,ts,1) for db in range(4) for ts in range(2)]
    per = [1, 1, 1, 1, 2, 2, 2, 2, 2, 2, 2, 2]
    w = 0
    for m, n in zip(ms, per):
        x(m)
        for _ in range(n):
            x(owrite(order[w])); w += 1
            if w == 16: x(f"ds_write_b32 v{V_FIN}, v{V_CNT}")
    x(f"v_mov_b32 v{V_CNT}, 3")
    while w < 32:
        if w == 28: x("s_nop 3")
        x(owrite(order[w])); w += 1
    x("s_branch L_fin2")

def first_tile(g, e, tag):
    x = g.e
    for r in k_reads(e): x(r)
    qk_phase(g, [])
    x("s_nop 7"); x("s_nop 1")
    softmax(g, e, tag, 0)
    for r in lsum(e): x(r)
    x(f"v_add_u32 v{V_CNT}, 1, v{V_CNT}")
    for r in need_k_next(): x(r)

def stamp(g, k):
    if g.a.stamps: g.e(f"s_memrealtime s[{88+2*k}:{89+2*k}]")

def decide(g):
    e = g.e; a = g.a
    if not a.split:
        e(f"s_cmp_eq_u32 s{S_CL}, 0")
        e(f"s_cselect_b32 s{S_KEY}, 2048, s{S_CL}")
        e(f"s_bfe_u32 s{S_T0}, s{S_QO0}, 0x2000e")
        e(f"s_cmp_eq_u32 s{S_T0}, 1")
        e(f"s_cselect_b32 s{S_T2}, {a.thetal}, -1")
        e(f"s_cselect_b32 s{S_T1}, {a.bonus}, 0")
        e(f"s_cmp_ge_u32 s{S_KEY}, s{S_T2}")
        e(f"s_cselect_b32 s{S_T1}, 4096, s{S_T1}")
        e(f"s_add_u32 s{S_KEY}, s{S_KEY}, s{S_T1}")
        e(f"s_mov_b32 s{S_TB}, 0")
        e(f"s_mov_b32 s{S_QSRC}, {LDS_Q}")
        return
    assert a.hmap == 2
    for p in range(2):
        e(f"s_max_i32 s{S_CL4+p}, s{S_CL4+p}, 0")
        e(f"s_min_i32 s{S_CL4+p}, s{S_CL4+p}, 2048")
    e(f"s_bitcmp1_b32 s3, 0")
    e(f"s_cselect_b32 s{S_CLO}, s{S_CL4+1}, s{S_CL4}")
    e(f"s_cselect_b32 s{S_T1}, s{S_CL4}, s{S_CL4+1}")
    e(f"s_cmp_eq_u32 s{S_CLO}, 0")
    e(f"s_cselect_b32 s{S_KEY}, 2048, s{S_CLO}")
    e(f"s_bfe_u32 s{S_T0}, s{S_QO0}, 0x2000e")
    e(f"s_cmp_eq_u32 s{S_T0}, 1")
    e(f"s_cselect_b32 s{S_CLV}, s{S_CLO}, s{S_T1}")
    e(f"s_cselect_b32 s{S_T1}, s{S_T1}, s{S_CLO}")
    e(f"s_cselect_b32 s{S_MODE}, 2, 1")
    e(f"s_cselect_b32 s{S_T2}, {a.thetal}, -1")
    e(f"s_bitcmp1_b32 s{S_T0}, 0")
    e(f"s_cselect_b32 s{S_MODE}, s{S_MODE}, 0")
    e(f"s_cmp_lt_u32 s{S_CLV}, {a.theta}")
    e(f"s_cselect_b32 s{S_MODE}, 0, s{S_MODE}")
    e(f"s_sub_u32 s{S_T1}, s{S_T1}, 1")
    e(f"s_cmp_ge_u32 s{S_T1}, {a.sigma}")
    e(f"s_cselect_b32 s{S_MODE}, 0, s{S_MODE}")
    e(f"s_cmp_ge_u32 s{S_KEY}, s{S_T2}")
    e(f"s_cselect_b32 s{S_KEY}, 4096, s{S_KEY}")
    e(f"s_mov_b32 s{S_QSRC}, {LDS_Q}")
    e(f"s_xor_b32 s{S_T2}, s3, 1")
    e(f"s_cmp_eq_u32 s{S_MODE}, 2")
    e(f"s_cselect_b32 s{S_T2}, s3, s{S_T2}")
    e(f"s_lshl1_add_u32 s{S_QOV}, s{S_T2}, s2")
    e(f"s_and_b32 s{S_QOV}, s{S_QOV}, 7")
    e(f"s_lshr_b32 s{S_SLOT}, s{S_QOV}, 2")
    e(f"s_lshl1_add_u32 s{S_SLOT}, s{S_T2}, s{S_SLOT}")
    e(f"s_bfe_u32 s{S_HD}, s{S_QO0}, 0x3000e")
    e(f"s_sub_u32 s{S_HD}, s{S_QOV}, s{S_HD}")
    e(f"s_lshl_b32 s{S_HD}, s{S_HD}, 8")
    e(f"s_lshl3_add_u32 s{S_QOV}, s{S_T2}, s{S_QOV}")
    e(f"s_lshl_b32 s{S_QOV}, s{S_QOV}, 14")
    e(f"s_add_u32 s{S_T2}, s{S_CLV}, {31 - 32*a.t0}")
    e(f"s_lshr_b32 s{S_T2}, s{S_T2}, 5")
    e(f"s_and_b32 s{S_T2}, s{S_T2}, 63")
    e(f"s_mul_i32 s{S_CUT}, s{S_T2}, 171")
    e(f"s_lshr_b32 s{S_CUT}, s{S_CUT}, 9")
    e(f"s_mul_i32 s{S_CUT}, s{S_CUT}, 3")
    e(f"s_sub_u32 s{S_CUT}, s{S_T2}, s{S_CUT}")
    e(f"s_add_u32 s{S_CUT}, s{S_CUT}, {a.t0}")
    e(f"s_lshl_b32 s{S_T2}, s{S_CUT}, 5")
    e(f"s_sub_u32 s{S_T2}, s{S_CLV}, s{S_T2}")
    e(f"s_add_u32 s{S_T2}, s{S_T2}, s{S_KEY}")
    e(f"s_mul_i32 s{S_T2}, s{S_T2}, {a.hs}")
    e(f"s_lshr_b32 s{S_T2}, s{S_T2}, 8")
    e(f"s_cmp_eq_u32 s{S_MODE}, 1")
    e(f"s_cselect_b32 s{S_KEY}, s{S_T2}, s{S_KEY}")
    e(f"s_cselect_b32 s{S_CL}, s{S_CLV}, s{S_CLO}")
    e(f"s_cselect_b32 s{S_TB}, s{S_CUT}, 0")
    e(f"s_cselect_b32 s{S_QSRC}, {LDS_Q2}, s{S_QSRC}")

def job_common(g, first=False):
    e = g.e; a = g.a
    e(f"s_cmp_eq_u32 s{S_CL}, 0")
    e(f"s_cselect_b32 s{S_CLE}, 2048, s{S_CL}")
    e(f"s_add_u32 s{S_TE}, s{S_CLE}, 31")
    e(f"s_lshr_b32 s{S_TE}, s{S_TE}, 5")
    if a.split and not first:
        e(f"s_cmp_eq_u32 s{S_MODE}, 2")
        e(f"s_cselect_b32 s{S_TE}, s{S_CUT}, s{S_TE}")
    e(f"s_sub_u32 s{S_NT}, s{S_TE}, s{S_TB}")
    e(f"s_sub_u32 s{S_T1}, s{S_NT}, 1")
    e(f"s_mul_i32 s{S_T2}, s{S_T1}, 171")
    e(f"s_lshr_b32 s{S_T2}, s{S_T2}, 9")
    e(f"s_mul_i32 s{S_T2}, s{S_T2}, 3")
    e(f"s_sub_u32 s{S_T1}, s{S_T1}, s{S_T2}")
    e(f"s_sub_u32 s{S_SH}, {a.clast + 3}, s{S_T1}")
    e(f"s_cmp_ge_u32 s{S_SH}, 3")
    e(f"s_cselect_b32 s{S_T2}, 3, 0")
    e(f"s_sub_u32 s{S_SH}, s{S_SH}, s{S_T2}")

def next_job(g):
    e = g.e
    e(f"s_mov_b32 s{S_MODE}, 0")
    e(f"s_mov_b32 s{S_CL}, s{S_CLO}")
    e(f"s_mov_b32 s{S_TB}, 0")
    e(f"s_mov_b32 s{S_QSRC}, {LDS_Q}")

def reduce_setup(g, sg0):
    e = g.e
    cl = g.a.clast
    cA = (cl + 1) % 3
    e(f"s_mov_b32 s{S_G0}, s{sg0}")
    e("v_lshrrev_b32 v48, 2, v47")
    e("v_and_b32 v49, 3, v47")
    e("v_lshl_add_u32 v48, v48, 3, v49")
    e("v_lshlrev_b32 v48, 10, v48")
    if cA: e(f"v_add_u32 v48, {cA*32768}, v48")
    e("v_xor_b32 v49, v46, v47")
    for k in range(3):
        e(f"s_add_u32 s{S_OB}, s{sg0}, {k}")
        e(f"s_and_b32 s{S_T1}, s{S_OB}, 3")
        e(f"s_lshl_b32 s{S_T1}, s{S_T1}, 2")
        e(f"v_xor_b32 v50, s{S_T1}, v49")
        e(f"v_lshl_add_u32 v50, v50, 4, v48")
        e(f"s_bfe_u32 s{S_T2}, s{S_OB}, 0x10002")
        e(f"s_lshl_b32 s{S_T2}, s{S_T2}, 8")
        e(f"v_add_u32 v{V_RA+k}, s{S_T2}, v50")
    e(f"v_lshlrev_b32 v{V_SA}, 3, v{V_LANE}")
    e(f"v_add_u32 v{V_SA}, {LDS_STAT}, v{V_SA}")
    e(f"s_lshl_b32 s{S_T1}, s{sg0}, 6")
    e(f"s_add_u32 s{S_T1}, s{S_T1}, {LDS_G}")
    e(f"v_lshl_add_u32 v{V_BP}, v46, 4, s{S_T1}")
    e(f"v_min_u32 v{V_FP}, 3, v{V_LANE}")
    e(f"v_lshlrev_b32 v{V_FP}, 8, v{V_FP}")
    e(f"v_add_u32 v{V_FP}, {LDS_FIN}, v{V_FP}")
    e(f"s_lshl_b32 s{S_T1}, s{sg0}, 10")
    e(f"s_add_u32 s{S_OA}, s{S_QO0}, s{S_T1}")
    e(f"s_add_u32 s{S_OB}, s{S_OA}, 8192")
    e(f"v_lshlrev_b32 v{V_OV}, 4, v{V_LANE}")

def reduce_code(g, NG, tag, mode):
    e = g.e; a = g.a
    exp_stats = (tag == "d")
    tag = f"{tag}{mode}"
    cC = a.clast; cA = (cC + 1) % 3; cB = (cC + 2) % 3
    dB = ((cB - cA) * 32768) & 0xffffffff; dC = ((cC - cB) * 32768) & 0xffffffff
    dR = ((cA - cC) * 32768) & 0xffffffff
    V_G = 64; V_OUT = 96; V_ACC = 128; V_IN = 192
    ST = 32; T = 40; VP = 43; VT = 42
    H = NG // 2
    NR = 4 if mode == 2 else 3
    def kk(k): return (k % H, k // H)
    def waitfin(conds, lab):
        def test(out):
            if len(conds) == 1:
                out.append(f"s_cmp_ge_u32 s{S_F+conds[0][0]}, {conds[0][1]}")
            else:
                out.append(f"s_min_u32 s{S_T0}, s{S_F}, s{S_F+1}")
                out.append(f"s_min_u32 s{S_T0}, s{S_T0}, s{S_F+2}")
                out.append(f"s_cmp_ge_u32 s{S_T0}, 1")
        o = [f"{lab}:", f"ds_read_b32 v{VP}, v{V_FP}", "s_waitcnt lgkmcnt(0)"] + [f"v_readlane_b32 s{S_F+i}, v{VP}, {i}" for i in range(4)]
        test(o)
        if len(conds) > 1:
            for l in o: (g.lab(l[:-1]) if l.endswith(":") else e(l))
            e(f"s_cbranch_scc0 {lab}")
        else:
            t = []; test(t)
            for l in t: e(l)
            e(f"s_cbranch_scc0 {lab}")
            g.lab(f"{lab}r")
            g.ool += [l if l.endswith(":") else "    " + l for l in o] + [f"    s_cbranch_scc1 {lab}r", f"    s_branch {lab}"]
    def wsrd():
        e(f"s_mov_b32 s{S_WSRD}, s30"); e(f"s_mov_b32 s{S_WSRD+1}, s31")
        e(f"s_mov_b32 s{S_WSRD+2}, {80*65536}"); e(f"s_mov_b32 s{S_WSRD+3}, 0x20000")
        e(f"s_lshl_b32 s{S_P0}, s{S_SLOT}, 16")
        e(f"s_add_u32 s{S_P0}, s{S_P0}, 0x100000")
        e(f"s_add_u32 s{S_P1}, s{S_P0}, 32768")
        e(f"s_lshl_b32 s{S_T1}, s{S_G0}, 12")
        e(f"s_add_u32 s{S_P0}, s{S_P0}, s{S_T1}")
    def foreign():
        for k in range(NG):
            for hh in range(2):
                e(f"buffer_load_dwordx4 {vr(V_ACC+k*8+hh*4,4)}, v{V_OV}, {sr(S_WSRD,4)}, s{S_P0} offen offset:{(k&1)*2048+hh*1024} {a.hpol}")
            if k & 1: e(f"s_add_u32 s{S_P0}, s{S_P0}, 4096")
    waitfin([(0,1),(1,1),(2,1)], f"L_reduce_{tag}")
    if a.estamps and not a.e2: e("s_memrealtime s[90:91]")
    if exp_stats:
        for ro in range(3): e(f"ds_read_b64 {vr(ST+2*ro,2)}, v{V_SA} offset:{ro*512}")
        if mode:
            wsrd()
            e(f"v_lshlrev_b32 v{VT}, 3, v{V_LANE}")
        if mode == 2:
            e(f"buffer_load_dwordx2 {vr(ST+6,2)}, v{VT}, {sr(S_WSRD,4)}, s{S_P1} offen {a.hpol}")
            foreign()
        e(f"v_add_u32 v{VP}, {LDS_G}, v{V_OV}")
        e("v_mov_b32 v44, 1")
        e("s_waitcnt lgkmcnt(0)")
        e(f"v_max3_f32 v{T}, v{ST}, v{ST+2}, v{ST+4}")
        if mode == 2:
            e(f"s_waitcnt vmcnt({2*NG})")
            e(f"v_max_f32 v{T}, v{T}, v{ST+6}")
        for ro in range(NR): e(f"v_sub_f32 v{ST+2*ro}, v{ST+2*ro}, v{T}")
        for ro in range(NR): e(f"v_exp_f32 v{ST+2*ro}, v{ST+2*ro}")
        if mode == 2:
            e("s_nop 0")
            e(f"v_mul_f32 v{ST+6}, v{ST+6}, v{ST+7}")
            e(f"v_fma_f32 v{T+1}, v{ST}, v{ST+1}, v{ST+6}")
        else:
            e(f"v_mul_f32 v{T+1}, v{ST}, v{ST+1}")
        e(f"v_fma_f32 v{T+1}, v{ST+2}, v{ST+3}, v{T+1}")
        e(f"v_fma_f32 v{T+1}, v{ST+4}, v{ST+5}, v{T+1}")
        if mode == 1:
            e(f"buffer_store_dwordx2 {vr(T,2)}, v{VT}, {sr(S_WSRD,4)}, s{S_P1} offen {a.hpol}")
        e(f"v_rcp_f32 v{ST+1}, v{T+1}")
        e("s_nop 0")
        for ro in range(NR): e(f"v_mul_f32 v{48+ro}, v{ST+2*ro}, v{ST+1}")
        e(f"ds_write_b128 v{VP}, v[48:51]")
        e(f"ds_write_b32 v{V_FLAG}, v44 offset:{LDS_FIN + 768 - LDS_FLAG}")
    else:
        if mode: wsrd()
        if mode == 2: foreign()
        waitfin([(3,1)], f"L_rpg_{tag}")
    def gf(k, ro): return V_G + k*4 + ro
    for k in range(NG):
        e(f"ds_read_b128 {vr(V_G+4*k,4)}, v{V_BP} offset:{kk(k)[0]*64 + kk(k)[1]*512}")
    def pkop(op, d, s_, f, acc):
        sel = f & 1
        fr = vr(f & ~1, 2)
        if acc: e(f"v_pk_fma_f32 {vr(d,2)}, {vr(s_,2)}, {fr}, {vr(d,2)} op_sel:[0,{sel},0] op_sel_hi:[1,{sel},1]")
        else: e(f"v_pk_mul_f32 {vr(d,2)}, {vr(s_,2)}, {fr} op_sel:[0,{sel}] op_sel_hi:[1,{sel}]")
    def acck(k, ro, first):
        for x in range(0, 8, 2):
            pkop(None, V_ACC + k*8 + x, V_IN + k*8 + x, gf(k, ro), not first)
    def stage(ks, body):
        for b0 in range(0, len(ks), 6):
            kb = ks[b0:b0+6]
            e("s_waitcnt lgkmcnt(3)")
            for k in kb:
                for hh in range(2):
                    e(f"ds_read_b128 {vr(V_IN + k*8 + hh*4, 4)}, v{V_RA+kk(k)[0]} offset:{hh*512 + kk(k)[1]*4096}")
            for n, k in enumerate(kb):
                e(f"s_waitcnt lgkmcnt({2*(len(kb)-1-n)})")
                body(k)
    if mode == 2:
        e("s_waitcnt vmcnt(0) lgkmcnt(0)")
        for k in range(NG):
            for x in range(0, 8, 2): pkop(None, V_ACC + k*8 + x, V_ACC + k*8 + x, gf(k, 3), False)
    if a.e2:
        e("s_memrealtime s[90:91]"); e("s_waitcnt lgkmcnt(0)")
    waitfin([(0,3)], f"L_rpa_{tag}")
    stage(list(range(NG)), lambda k: acck(k, 0, mode != 2))
    if a.e2:
        e("s_memrealtime s[92:93]"); e("s_waitcnt lgkmcnt(0)")
    for k in range(H): e(f"v_add_u32 v{V_RA+k}, 0x{dB:x}, v{V_RA+k}")
    waitfin([(1,3)], f"L_rpb_{tag}")
    stage(list(range(NG)), lambda k: acck(k, 1, False))
    for k in range(H): e(f"v_add_u32 v{V_RA+k}, 0x{dC:x}, v{V_RA+k}")
    if a.estamps:
        e("s_memrealtime s[94:95]" if a.e2 else "s_memrealtime s[92:93]"); e("s_waitcnt lgkmcnt(0)")
    def fin(k):
        acck(k, 2, False)
        if mode == 1:
            for hh in range(2):
                e(f"buffer_store_dwordx4 {vr(V_ACC+k*8+hh*4,4)}, v{V_OV}, {sr(S_WSRD,4)}, s{S_P0} offen offset:{(k&1)*2048+hh*1024} {a.hpol}")
            if k & 1: e(f"s_add_u32 s{S_P0}, s{S_P0}, 4096")
        else:
            for x in range(4):
                e(f"v_cvt_pk_bf16_f32 v{V_OUT + k*4 + x}, v{V_ACC + k*8 + 2*x}, v{V_ACC + k*8 + 2*x + 1}")
            so = S_OA if kk(k)[1] == 0 else S_OB
            e(f"buffer_store_dwordx4 {vr(V_OUT + k*4, 4)}, v{V_OV}, {sr(S_XSRD,4)}, s{so} offen offset:{kk(k)[0]*1024} {a.stpol}")
    for half in range(2):
        if a.tight and half == 1:
            g.lab(f"L_rpc1_{tag}")
            e(f"ds_read_b32 v{VP}, v{V_FP}")
            e("s_waitcnt lgkmcnt(0)")
            e(f"v_readlane_b32 s{S_F+2}, v{VP}, 2")
            e(f"s_cmp_ge_u32 s{S_F+2}, 3")
            e(f"s_cbranch_scc0 L_rpc1_{tag}")
        else:
            waitfin([(2, 2 + half)], f"L_rpc{half}_{tag}")
        stage(list(range(half * H, half * H + H)), fin)
    if mode == 1:
        for k in range(H): e(f"v_add_u32 v{V_RA+k}, 0x{dR:x}, v{V_RA+k}")
        e("s_branch L_jobend")
    else:
        if a.estamps and not a.e2: e("s_memrealtime s[94:95]")
        e("s_branch L_out")
    g.o += g.ool; g.ool = []

def build(a):
    g = Gen(a); e = g.e
    stamps, spin = a.stamps, a.spin
    pol = (" " + a.nt) if a.nt else ""
    c = (128 ** -0.5) * math.log2(math.e)
    R = -1e9 * math.sqrt(128.0)
    hdr = open("standalone__paged_block_table_kv_pagedattention__sampling.s.ref").read().split("\n")
    head = [l for l in hdr if l.startswith(";") and "@launch" not in l and "Override launch" not in l and "grid=ceil" not in l]
    out = head + [f"; @launch grid=(256,1,1) block=(256,1,1) lds={LDS_TOTAL if a.split else LDS_NOSPLIT}",
        '.amdgcn_target "amdgcn-amd-amdhsa--gfx950"',
        "; Paged GQA attention, one workgroup per (batch, kv head), generated by dev/gen14.py.",
        ";  wave 0   : loader. Streams Q, K and V tiles (32 tokens) into LDS with buffer_load ... lds; the number of",
        ";             loads in flight is chosen from the sequence length so that all workgroups finish together.",
        ";  waves 1-3: consumers, tiles round-robin. S^T = K Q^T (MFMA 32x32x16), online softmax with the running row",
        ";             max, O^T += V^T P^T; QK/softmax run one tile ahead of PV. Progress words in LDS pair them with the loader.",
        ";  end      : partial O of the three consumers are merged through LDS, rows written as 1 KiB stores.",
        ";  Long sequences on heads with (h & 3) == 1 hand their last tiles to the workgroup of batch b^1 (partial in d_ws,",
        ";  flag in d_debug).",
        ".text", f".globl {NAME}", ".p2align 8",
        f".type {NAME},@function", f"{NAME}:"]
    e("s_cmp_ge_u32 s2, 256")
    e("s_cbranch_scc1 L_end")
    e("s_load_dwordx16 s[16:31], s[0:1], 0")
    if a.x1: e("s_xor_b32 s2, s2, 1")
    if spin or stamps: e("s_memrealtime s[88:89]")
    e("v_lshrrev_b32 v2, 6, v0")
    e(f"v_and_b32 v{V_LANE}, 63, v0")
    e(f"v_readfirstlane_b32 s{S_W}, v2")
    e("s_lshr_b32 s3, s2, 3")
    if a.hmap == 1: e(f"s_add_u32 s{S_T0}, s2, s3")
    elif a.hmap == 2: e(f"s_lshl1_add_u32 s{S_T0}, s3, s2")
    elif a.hmap == 3:
        e(f"s_lshl1_add_u32 s{S_T0}, s3, s2"); e(f"s_add_u32 s{S_T0}, s{S_T0}, 1")
    elif a.hmap >= 4:
        e(f"s_and_b32 s{S_T0}, s2, 7"); e(f"s_lshl_b32 s{S_T0}, s{S_T0}, 2")
        e(f"s_lshr_b32 s{S_T0}, 0x{a.hperm}, s{S_T0}")
    e(f"s_and_b32 s{S_T0}, s{S_T0}, 7")
    e(f"s_lshl3_add_u32 s{S_QO0}, s3, s{S_T0}")
    e(f"s_lshl_b32 s{S_QO0}, s{S_QO0}, 14")
    e(f"v_lshrrev_b32 v46, 4, v{V_LANE}")
    e(f"v_and_b32 v47, 15, v{V_LANE}")
    e(f"s_cmp_lg_u32 s{S_W}, 0")
    e("s_cbranch_scc1 L_consumer")
    e(f"v_lshlrev_b32 v6, 3, v{V_LANE}")
    e(f"s_lshl_b32 s{S_P0}, s3, 9")
    e(f"s_lshl_b32 s{S_P1}, s3, 2")
    e(f"s_movk_i32 s{S_BSRD+2}, 0x4000"); e(f"s_mov_b32 s{S_BSRD+3}, 0x20000")
    e(f"s_mov_b32 s{S_XSRD+2}, {Q_BYTES}"); e(f"s_mov_b32 s{S_XSRD+3}, 0x20000")
    e(f"s_mov_b32 s{S_KSRD+2}, {KV_BYTES}"); e(f"s_mov_b32 s{S_KSRD+3}, 0x20000")
    e("v_xor_b32 v52, v47, v46")
    for k in range(4):
        if k: e(f"v_xor_b32 v53, {4*k}, v52")
        e(f"v_lshlrev_b32 v{48+k}, 4, v{53 if k else 52}")
        e(f"v_lshl_add_u32 v{V_DQ+k}, v46, 8, v{48+k}")
    e("s_waitcnt lgkmcnt(0)")
    stamp(g, 1)
    e(f"s_mov_b32 s{S_BSRD}, s22"); e(f"s_mov_b32 s{S_BSRD+1}, s23")
    e(f"s_load_dword s{S_CL}, s[24:25], s{S_P1}")
    e(f"buffer_load_dwordx2 {vr(V_BT,2)}, v6, {sr(S_BSRD,4)}, s{S_P0} offen")
    e(f"s_mov_b32 s{S_XSRD}, s16"); e(f"s_mov_b32 s{S_XSRD+1}, s17")
    for gq in range(4):
        e(f"s_mov_b32 m0, {LDS_Q + gq*4096}")
        e(f"s_add_u32 s{S_T1}, s{S_QO0}, {gq*4096}")
        for k in range(4):
            e(f"buffer_load_dwordx4 v{V_DQ+k}, {sr(S_XSRD,4)}, s{S_T1} offen offset:{k*1024}{pol} lds")
    e(f"s_mov_b32 s{S_KSRD}, s18"); e(f"s_mov_b32 s{S_KSRD+1}, s19")
    e(f"s_lshl_b32 s{S_T2}, s{S_T0}, 8")
    e(f"v_lshlrev_b32 v54, 11, v46")
    e(f"v_add_u32 v54, s{S_T2}, v54")
    e(f"v_add_u32 v{V_DK}, v54, v48")
    for k in range(1, 4):
        e(f"v_add_u32 v53, {k*7168}, v54")
        e(f"v_add_u32 v{V_DK+k}, v53, v{48+k}")
    e(f"v_lshlrev_b32 v5, 1, v{V_LANE}")
    e("v_add_u32 v7, 1, v5")
    e(f"v_mov_b32 v61, {KV_BYTES}")
    e(f"s_mov_b32 s{S_TB}, 0")
    if a.st2: e("s_memrealtime s[94:95]")
    e("s_waitcnt lgkmcnt(0)")
    if a.st2: e("s_memrealtime s[90:91]")
    e(f"s_max_i32 s{S_CL}, s{S_CL}, 0")
    e(f"s_min_i32 s{S_CL}, s{S_CL}, 2048")
    job_common(g, True)
    e(f"s_add_u32 s{S_NP}, s{S_CLE}, 15")
    e(f"s_lshr_b32 s{S_NP}, s{S_NP}, 4")
    if a.noload: e(f"s_mov_b32 s{S_NP}, 0")
    e(f"v_cmp_gt_u32 vcc, s{S_NP}, v5")
    e(f"v_cmp_gt_u32 s[32:33], s{S_NP}, v7")
    e("s_waitcnt vmcnt(16)")
    stamp(g, 2)
    e(f"v_lshlrev_b32 v{V_BT}, 15, v{V_BT}")
    e(f"v_lshlrev_b32 v{V_BT+1}, 15, v{V_BT+1}")
    e(f"v_cndmask_b32 v{V_BT}, v61, v{V_BT}, vcc")
    e(f"v_cndmask_b32 v{V_BT+1}, v61, v{V_BT+1}, s[32:33]")
    def advance(si, sc, sn, sb, extra):
        e(f"s_add_u32 s{si}, s{si}, 1")
        e(f"s_add_u32 s{sc}, s{sc}, 1")
        e(f"s_add_u32 s{sb}, s{sb}, 32768")
        e(f"s_add_u32 s{S_T1}, s{sn}, 2")
        e(f"s_lshl_b32 s{S_T2}, s{S_T1}, 13")
        e(f"s_and_b32 s{S_T2}, s{S_T2}, 16384")
        if extra: e(f"s_add_u32 s{S_T2}, s{S_T2}, {extra}")
        e(f"s_cmp_eq_u32 s{sc}, 3")
        e(f"s_cselect_b32 s{sc}, 0, s{sc}")
        e(f"s_cselect_b32 s{sn}, s{S_T1}, s{sn}")
        e(f"s_cselect_b32 s{sb}, s{S_T2}, s{sb}")
    def opening(tag):
        e(f"s_lshl_b32 s{S_LB}, s{S_SH}, 15")
        e(f"s_mov_b32 s{S_J}, s{S_TB}"); e(f"s_mov_b32 s{S_CI}, s{S_SH}"); e(f"s_mov_b32 s{S_NK}, 0")
        e(f"s_min_u32 s{S_NP}, s{S_NT}, {a.burst}")
        e(f"s_add_u32 s{S_T1}, s{S_NP}, 2")
        e(f"v_mov_b32 v{V_CNT}, s{S_T1}")
        e(f"s_add_u32 s{S_NP}, s{S_NP}, s{S_TB}")
        g.lab(f"L_burst{tag}")
        e(f"v_readlane_b32 s{S_P0}, v{V_BT}, s{S_J}")
        e(f"v_readlane_b32 s{S_P1}, v{V_BT+1}, s{S_J}")
        e("s_nop 2")
        for it in range(2):
            e(f"s_add_u32 m0, s{S_LB}, {it*4096}")
            e("s_nop 0")
            for i in range(4):
                e(f"buffer_load_dwordx4 v{V_DK+i}, {sr(S_KSRD,4)}, s{S_P0 if it == 0 else S_P1} offen offset:{i*1024}{pol} lds")
        advance(S_J, S_CI, S_N, S_LB, 0)
        e(f"s_cmp_lt_u32 s{S_J}, s{S_NP}")
        e(f"s_cbranch_scc1 L_burst{tag}")
        if not a.st2: stamp(g, 3)
        e(f"s_mov_b32 s{S_I}, s{S_TB}"); e(f"s_mov_b32 s{S_CV}, s{S_SH}"); e(f"s_mov_b32 s{S_NV}, 0")
        e(f"s_lshl_b32 s{S_LBV}, s{S_SH}, 15")
        e(f"s_add_u32 s{S_LBV}, s{S_LBV}, 8192")
    opening("0")
    if a.split:
        e(f"s_and_b32 s{S_P1}, s3, 30")
        e(f"s_lshl_b32 s{S_P1}, s{S_P1}, 2")
        e(f"s_load_dwordx2 {sr(S_CL4,2)}, s[24:25], s{S_P1}")
    e(f"v_lshlrev_b32 v{V_FLAG}, 2, v{V_LANE}")
    e(f"v_add_u32 v{V_FLAG}, {LDS_FLAG}, v{V_FLAG}")
    e("v_mov_b32 v53, 0")
    for k in range(8): e(f"ds_write_b32 v{V_FLAG}, v53 offset:{256*k}")
    e(f"s_mov_b32 s{S_VSRD}, s20"); e(f"s_mov_b32 s{S_VSRD+1}, s21")
    e(f"s_mov_b32 s{S_VSRD+2}, {KV_BYTES}"); e(f"s_mov_b32 s{S_VSRD+3}, 0x20000")
    e("v_lshlrev_b32 v53, 2, v46")
    e("v_xor_b32 v53, v47, v53")
    e(f"v_lshl_add_u32 v{V_DV}, v53, 4, v54")
    for k in range(1, 4): e(f"v_add_u32 v{V_DV+k}, {k*7168}, v{V_DV}")
    e(f"v_min_u32 v{V_DONE}, 3, v{V_LANE}")
    e(f"v_lshlrev_b32 v{V_DONE}, 8, v{V_DONE}")
    e(f"v_add_u32 v{V_FP}, {LDS_FIN}, v{V_DONE}")
    e(f"v_add_u32 v{V_DONE}, {LDS_DONE}, v{V_DONE}")
    e(f"v_mov_b32 v{V_PT}, 0")
    if a.split: e(f"v_mov_b32 v{V_BT2}, 0")
    e("s_waitcnt lgkmcnt(0)")
    e("s_barrier")
    decide(g)
    if a.split:
        e(f"s_cmp_eq_u32 s{S_MODE}, 2")
        e(f"s_cselect_b32 s{S_TE}, s{S_CUT}, s{S_TE}")
        e(f"s_sub_u32 s{S_NT}, s{S_TE}, s{S_TB}")
    cA = (a.clast + 1) % 3
    e("v_lshrrev_b32 v48, 2, v47")
    e("v_and_b32 v49, 3, v47")
    e("v_lshl_add_u32 v48, v48, 3, v49")
    e("v_lshlrev_b32 v48, 10, v48")
    e("v_mov_b32 v51, v52")
    for k in range(4):
        cst = cA*32768 + ((k >> 2) & 1) * 256
        if k & 3: e(f"v_xor_b32 v50, {4*(k&3)}, v51")
        e(f"v_lshl_add_u32 v{V_RA+k}, v{50 if k & 3 else 51}, 4, v48")
        if cst: e(f"v_add_u32 v{V_RA+k}, {cst}, v{V_RA+k}")
    e(f"v_lshlrev_b32 v{V_SA}, 3, v{V_LANE}")
    e(f"v_add_u32 v{V_SA}, {LDS_STAT}, v{V_SA}")
    e(f"v_lshlrev_b32 v{V_BP}, 4, v46")
    e(f"v_add_u32 v{V_BP}, {LDS_G}, v{V_BP}")
    e(f"v_lshlrev_b32 v{V_OV}, 4, v{V_LANE}")
    e(f"s_mov_b32 s{S_G0}, 0")
    e(f"s_mov_b32 s{S_OA}, s{S_QO0}")
    e(f"s_add_u32 s{S_OB}, s{S_QO0}, 8192")
    if a.split:
        e(f"s_cmp_eq_u32 s{S_MODE}, 1")
        e("s_cbranch_scc1 L_lhelp")
        h = ["L_lhelp:",
             f"    s_lshr_b32 s{S_T1}, s{S_QOV}, 17", f"    s_lshl_b32 s{S_T1}, s{S_T1}, 11",
             ]
        h = ["L_lhelp:", "    s_waitcnt vmcnt(24)",
             f"    s_lshr_b32 s{S_T1}, s{S_QOV}, 17", f"    s_lshl_b32 s{S_T1}, s{S_T1}, 9",
             f"    v_add_u32 v48, s{S_T1}, v6",
             f"    global_load_dwordx2 v[50:51], v48, s[22:23]"]
        for gq in range(4):
            h.append(f"    s_mov_b32 m0, {LDS_Q2 + gq*4096}")
            h.append(f"    s_add_u32 s{S_T1}, s{S_QOV}, {gq*4096}")
            for k in range(4):
                h.append(f"    buffer_load_dwordx4 v{V_DQ+k}, {sr(S_XSRD,4)}, s{S_T1} offen offset:{k*1024}{pol} lds")
        h += [f"    s_mov_b32 s{S_XSRD}, s26", f"    s_mov_b32 s{S_XSRD+1}, s27",
              f"    s_add_u32 s{S_NP}, s{S_CLV}, 15", f"    s_lshr_b32 s{S_NP}, s{S_NP}, 4",
              f"    v_cmp_gt_u32 vcc, s{S_NP}, v5", f"    v_cmp_gt_u32 s[32:33], s{S_NP}, v7",
              f"    v_mov_b32 v{V_BT2}, v{V_BT}", f"    v_mov_b32 v{V_BT2+1}, v{V_BT+1}"]
        for k in range(8): h.append(f"    v_add_u32 v{V_DK+k}, s{S_HD}, v{V_DK+k}")
        sub = Gen(a); job_common(sub); h += sub.o
        h += ["    s_waitcnt vmcnt(16)",
              "    v_lshlrev_b32 v50, 15, v50", "    v_lshlrev_b32 v51, 15, v51",
              f"    v_cndmask_b32 v{V_BT}, v61, v50, vcc", f"    v_cndmask_b32 v{V_BT+1}, v61, v51, s[32:33]",
              "    s_branch L_ljob"]
        g.ool += h
    e(f"s_mov_b32 s{S_XSRD}, s26"); e(f"s_mov_b32 s{S_XSRD+1}, s27")
    g.lab("L_lgo")
    if a.epub:
        e(f"s_cmp_lt_u32 s{S_NT}, {a.burst}")
        e("s_cbranch_scc1 L_lgo2")
        for k in range(a.epub):
            e(f"v_mov_b32 v27, {2 + k}")
            e(f"s_waitcnt vmcnt({8*(a.burst - k)})")
            e(f"ds_write_b32 v{V_FLAG}, v27")
        g.lab("L_lgo2")
    e(f"s_min_u32 s{S_NP}, s{S_NT}, {LEAD}")
    e(f"s_add_u32 s{S_NP}, s{S_NP}, s{S_TB}")
    for (clmin, L) in reversed(a.table[1:]):
        e(f"s_cmp_ge_u32 s{S_KEY}, {clmin}")
        e(f"s_cbranch_scc1 L_var_{L}")
    def group(lims, srd, vb, sbase, sp0, sp1):
        if isinstance(lims, int): lims = [lims] * 8
        hs = [(p - lims[p] + 1) // 8 for p in range(8)]
        best = max(hs); p1 = hs.index(best); lag = -best
        for q in range(8):
            it = q >> 2; i = q & 3
            if i == 0: e(f"s_add_u32 m0, s{sbase}, {it*4096}")
            e(f"s_waitcnt vmcnt({lims[q]-1})")
            e(f"buffer_load_dwordx4 v{vb+i}, {sr(srd,4)}, s{sp0 if it == 0 else sp1} offen offset:{i*1024}{pol} lds")
            if q == p1:
                if lag:
                    e(f"v_subrev_u32 v27, {lag}, v{V_CNT}")
                    e(f"ds_write_b32 v{V_FLAG}, v27")
                else:
                    e(f"ds_write_b32 v{V_FLAG}, v{V_CNT}")
        e(f"v_add_u32 v{V_CNT}, 1, v{V_CNT}")
    for (clmin, L2) in a.table:
        base = L2 // 4; up = (L2 % 4) * 4
        lim16 = [base + 1] * up + [base] * (16 - up)
        LK = lim16[:8]; LV = lim16[8:]
        LT = min(a.tmax, max(base, int(round(L2 / 4.0 * a.tf))))
        L = L2
        g.lab(f"L_var_{L}")
        e(f"s_cmp_ge_u32 s{S_J}, s{S_NP}")
        e(f"s_cbranch_scc1 L_lp_{L}")
        g.lab(f"L_pk_{L}")
        e(f"v_readlane_b32 s{S_P0}, v{V_BT}, s{S_J}")
        e(f"v_readlane_b32 s{S_P1}, v{V_BT+1}, s{S_J}")
        e("s_nop 2")
        group(LK, S_KSRD, V_DK, S_LB, S_P0, S_P1)
        advance(S_J, S_CI, S_N, S_LB, 0)
        e(f"s_cmp_lt_u32 s{S_J}, s{S_NP}")
        e(f"s_cbranch_scc1 L_pk_{L}")
        g.lab(f"L_lp_{L}")
        e(f"s_cmp_ge_u32 s{S_J}, s{S_TE}")
        e(f"s_cbranch_scc1 L_tl_{L}")
        g.lab(f"L_lp2_{L}")
        e(f"v_readlane_b32 s{S_P2}, v{V_BT}, s{S_I}")
        e(f"v_readlane_b32 s{S_P3}, v{V_BT+1}, s{S_I}")
        e(f"v_readlane_b32 s{S_P0}, v{V_BT}, s{S_J}")
        e(f"v_readlane_b32 s{S_P1}, v{V_BT+1}, s{S_J}")
        g.lab(f"L_chk_{L}")
        e("s_waitcnt lgkmcnt(0)")
        e(f"v_readlane_b32 s{S_T1}, v{V_PT}, s{S_CI}")
        e(f"v_readlane_b32 s{S_T2}, v{V_PT}, s{S_CV}")
        e(f"ds_read_b32 v{V_PT}, v{V_DONE}")
        e(f"s_cmp_lt_u32 s{S_NV}, 4")
        e(f"s_cselect_b32 s{S_T2}, s{S_NV}, s{S_T2}")
        e(f"s_cmp_lt_u32 s{S_T2}, s{S_NV}")
        e(f"s_cbranch_scc1 L_chk_{L}")
        e(f"s_add_u32 s{S_T1}, s{S_T1}, 3")
        e(f"s_cmp_lt_u32 s{S_T1}, s{S_N}")
        e(f"s_cbranch_scc1 L_chk_{L}")
        group(LK, S_KSRD, V_DK, S_LB, S_P0, S_P1)
        advance(S_J, S_CI, S_N, S_LB, 0)
        group(LV, S_VSRD, V_DV, S_LBV, S_P2, S_P3)
        advance(S_I, S_CV, S_NV, S_LBV, 8192)
        e(f"s_cmp_lt_u32 s{S_J}, s{S_TE}")
        e(f"s_cbranch_scc1 L_lp2_{L}")
        g.lab(f"L_tl_{L}")
        e(f"v_readlane_b32 s{S_P2}, v{V_BT}, s{S_I}")
        e(f"v_readlane_b32 s{S_P3}, v{V_BT+1}, s{S_I}")
        g.lab(f"L_chv_{L}")
        e("s_waitcnt lgkmcnt(0)")
        e(f"v_readlane_b32 s{S_T2}, v{V_PT}, s{S_CV}")
        e(f"ds_read_b32 v{V_PT}, v{V_DONE}")
        e(f"s_cmp_lt_u32 s{S_NV}, 4")
        e(f"s_cselect_b32 s{S_T2}, s{S_NV}, s{S_T2}")
        e(f"s_cmp_lt_u32 s{S_T2}, s{S_NV}")
        e(f"s_cbranch_scc1 L_chv_{L}")
        group(LT, S_VSRD, V_DV, S_LBV, S_P2, S_P3)
        advance(S_I, S_CV, S_NV, S_LBV, 8192)
        e(f"s_cmp_lt_u32 s{S_I}, s{S_TE}")
        e(f"s_cbranch_scc1 L_tl_{L}")
        lag = (LT - 1) // 8
        for k in range(lag, -1, -1):
            e(f"s_waitcnt vmcnt({8*k})")
            if k:
                e(f"v_subrev_u32 v27, {k}, v{V_CNT}")
                e(f"ds_write_b32 v{V_FLAG}, v27")
            else:
                e(f"ds_write_b32 v{V_FLAG}, v{V_CNT}")
        e("s_branch L_ldone")
    g.lab("L_ldone")
    stamp(g, 4)
    e("s_branch L_red_d")
    if a.split:
        g.lab("L_ljob")
        opening("1")
        e("s_branch L_lgo")
    g.lab("L_consumer")
    if a.tlb:
        e(f"s_cmp_gt_u32 s{S_W}, {a.tlb}")
        e("s_cbranch_scc1 L_notlb")
        e(f"s_sub_u32 s{S_T1}, s{S_W}, 1")
        e(f"s_lshl_b32 s{S_T1}, s{S_T1}, 5")
        e(f"s_add_u32 s{S_T1}, s{S_T1}, s3")
        e(f"s_mul_i32 s{S_T1}, s{S_T1}, {a.tlbn}")
        e(f"v_add_u32 v2, s{S_T1}, v{V_LANE}")
        e("v_and_b32 v2, 63, v2")
        e("v_lshlrev_b32 v2, 21, v2")
        e(f"s_mov_b64 exec, {(1 << a.tlbn) - 1}")
        e("s_waitcnt lgkmcnt(0)")
        e("global_load_dword v5, v2, s[18:19] nt")
        e("global_load_dword v6, v2, s[20:21] nt")
        e("s_mov_b64 exec, -1")
        g.lab("L_notlb")
    if a.wstat:
        e("s_mov_b32 s10, 0"); e("s_mov_b32 s11, 0")
    if not a.early: e("s_barrier")
    if a.split:
        e(f"s_and_b32 s{S_P1}, s3, 30")
        e(f"s_lshl_b32 s{S_P1}, s{S_P1}, 2")
    else:
        e(f"s_lshl_b32 s{S_P1}, s3, 2")
    e(f"v_lshlrev_b32 v{V_FLAG}, 2, v{V_LANE}")
    e(f"v_add_u32 v{V_FLAG}, {LDS_FLAG}, v{V_FLAG}")
    e(f"s_sub_u32 s{S_CI}, s{S_W}, 1")
    e(f"s_lshl_b32 s{S_LB}, s{S_CI}, 15")
    e(f"v_lshrrev_b32 v3, 5, v{V_LANE}")
    e(f"v_and_b32 v4, 31, v{V_LANE}")
    e(f"s_add_u32 s{S_ROLE}, s{S_CI}, {2 - a.clast}")
    if a.clast != 2:
        e(f"s_cmp_ge_u32 s{S_ROLE}, 3")
        e(f"s_cselect_b32 s{S_T1}, 3, 0")
        e(f"s_sub_u32 s{S_ROLE}, s{S_ROLE}, s{S_T1}")
    e(f"s_lshl_b32 s{S_T1}, s{S_ROLE}, 8")
    e(f"s_add_u32 s{S_T1}, s{S_T1}, {LDS_FIN - LDS_FLAG}")
    e(f"v_add_u32 v{V_FIN}, s{S_T1}, v{V_FLAG}")
    e("v_lshrrev_b32 v48, 2, v47")
    e("v_lshl_add_u32 v49, v3, 2, v48")
    e("v_lshlrev_b32 v49, 8, v49")
    e("v_and_b32 v50, 1, v46")
    e("v_lshl_add_u32 v49, v50, 5, v49")
    e(f"v_and_b32 v50, 3, v{V_LANE}")
    e("v_lshl_add_u32 v49, v50, 3, v49")
    e(f"v_add_u32 v49, s{S_LB}, v49")
    e("v_add_u32 v49, 8192, v49")
    for db in range(4):
        e(f"v_xor_b32 v50, {db}, v48")
        e(f"v_lshl_add_u32 v{V_VA+db}, v50, 6, v49")
    e("s_waitcnt lgkmcnt(0)")
    if a.split: e(f"s_load_dwordx2 {sr(S_CL4,2)}, s[24:25], s{S_P1}")
    else: e(f"s_load_dword s{S_CL}, s[24:25], s{S_P1}")
    e(f"s_mov_b32 s{S_XSRD}, s26"); e(f"s_mov_b32 s{S_XSRD+1}, s27")
    e(f"s_mov_b32 s{S_XSRD+2}, {Q_BYTES}"); e(f"s_mov_b32 s{S_XSRD+3}, 0x20000")
    if a.split:
        e(f"s_mov_b32 s{S_KSRD}, s18"); e(f"s_mov_b32 s{S_KSRD+1}, s19")
        e(f"s_mov_b32 s{S_KSRD+2}, {KV_BYTES}"); e(f"s_mov_b32 s{S_KSRD+3}, 0x20000")
        e(f"s_mov_b32 s{S_VSRD}, s20"); e(f"s_mov_b32 s{S_VSRD+1}, s21")
        e(f"s_mov_b32 s{S_VSRD+2}, {KV_BYTES}"); e(f"s_mov_b32 s{S_VSRD+3}, 0x20000")
    e(f"s_cmp_eq_u32 s{S_ROLE}, 0")
    e(f"s_cselect_b32 s{S_T0}, {a.hd_}, {a.hd_ + a.ha_}")
    reduce_setup(g, S_T0)
    e("v_and_b32 v48, 15, v4")
    e("v_xor_b32 v48, v48, v3")
    e("v_lshlrev_b32 v49, 8, v4")
    for st in range(8):
        e(f"v_xor_b32 v50, {2*st}, v48")
        e(f"v_lshl_add_u32 v50, v50, 4, v49")
        e(f"v_add_u32 v{V_KA+st}, s{S_LB}, v50")
    e(f"s_lshl_b32 s{S_T1}, s{S_W}, 8")
    e(f"v_add_u32 v{V_DONE}, s{S_T1}, v{V_FLAG}")
    e(f"v_mov_b32 v{V_R}, 0x{f32bits(R):08x}")
    e(f"s_mov_b32 s{S_C}, 0x{f32bits(c):08x}")
    e(f"s_mov_b32 s{S_C2}, s{S_C}"); e(f"s_mov_b32 s{S_C2+1}, s{S_C}")
    e("s_waitcnt lgkmcnt(0)")
    if a.split:
        decide(g)
        e(f"s_mov_b32 s{S_IMP}, 0")
    else:
        e(f"s_max_i32 s{S_CL}, s{S_CL}, 0")
        e(f"s_min_i32 s{S_CL}, s{S_CL}, 2048")
        e(f"s_mov_b32 s{S_TB}, 0")
        e(f"s_mov_b32 s{S_QSRC}, {LDS_Q}")
    if a.split:
        e(f"s_lshl_b32 s{S_T1}, s{S_SLOT}, 2")
        e(f"v_mov_b32 v62, s{S_T1}")
        e(f"s_lshl_b32 s{S_T1}, s{S_MODE}, 2")
        e(f"s_add_u32 s{S_T1}, s{S_T1}, s{S_ROLE}")
        e(f"s_cmp_eq_u32 s{S_T1}, 10")
        e(f"s_addc_u32 s{S_IMP}, 0, 0")
    if a.early == 1:
        e("s_barrier")
    g.lab("L_cjob")
    job_common(g)
    e(f"v_mov_b32 v{V_M}, 0x{f32bits(-3.0e38):08x}")
    e(f"v_mov_b32 v{V_L0}, 0"); e(f"v_mov_b32 v{V_L1}, 0")
    e(f"s_sub_u32 s{S_T1}, s{S_QSRC}, s{S_LB}")
    for st in range(8): e(f"v_add_u32 v{V_S+st}, s{S_T1}, v{V_KA+st}")
    for r in range(0, 128, 2):
        e(f"v_pk_mul_f32 {vr(V_O+r,2)}, {vr(V_L0,2)}, {vr(V_L0,2)}")
    e(f"s_add_u32 s{S_NVB}, s{S_NT}, 3")
    e(f"s_sub_u32 s{S_JM}, s{S_NT}, 1")
    e(f"s_sub_u32 s{S_T1}, s{S_TE}, 1")
    e(f"s_lshl_b32 s{S_T1}, s{S_T1}, 5")
    e(f"s_sub_i32 s{S_REM}, s{S_CL}, s{S_T1}")
    e(f"s_cmp_eq_u32 s{S_CL}, 0")
    e(f"s_cselect_b32 s{S_JM}, 0, s{S_JM}")
    e(f"v_lshrrev_b32 v48, 5, v{V_LANE}")
    e("v_lshlrev_b32 v48, 2, v48")
    e(f"v_sub_u32 v{V_REM}, s{S_REM}, v48")
    e(f"s_sub_u32 s{S_I}, s{S_CI}, s{S_SH}")
    e(f"s_cmp_lt_u32 s{S_CI}, s{S_SH}")
    e(f"s_cselect_b32 s{S_T1}, 3, 0")
    e(f"s_addc_u32 s{S_PAR}, 0, 0")
    e(f"s_add_u32 s{S_I}, s{S_I}, s{S_T1}")
    e(f"v_mov_b32 v{V_CNT}, s{S_PAR}")
    e(f"ds_write_b32 v{V_DONE}, v{V_CNT}")
    e(f"s_lshl_b32 s{S_T1}, s{S_PAR}, 1")
    e(f"s_add_u32 s{S_T1}, s{S_T1}, 1")
    e(f"v_mov_b32 v{V_CNT}, s{S_T1}")
    e(f"s_cmp_ge_u32 s{S_I}, s{S_NT}")
    e("s_cbranch_scc1 L_notiles")
    e(f"s_mov_b32 s{S_H}, 0")
    e(f"s_mov_b32 s{S_NEED}, 2")
    poll(g, "q")
    for qh in range(2):
        for st in range(8):
            e(f"ds_read_b128 {ar(A_Q+(qh*8+st)*4,4)}, v{V_S+st} offset:{qh*8192}")
        if qh == 0: e("s_waitcnt lgkmcnt(4)")
    need_k_first(g)
    e("s_waitcnt lgkmcnt(0)")
    poll(g, "k0")
    if a.stamps and not a.estamps:
        e("s_memrealtime s[90:91]"); e("s_waitcnt lgkmcnt(0)")
    e(f"s_cmp_eq_u32 s{S_PAR}, 1")
    e("s_cbranch_scc1 L_start_b")
    first_tile(g, 0, "fa")
    g.lab("L_loop")
    iteration(g, 0, "a")
    g.lab("L_loop_b")
    iteration(g, 1, "b")
    e("s_branch L_loop")
    g.lab("L_start_b")
    first_tile(g, 1, "fb")
    e("s_branch L_loop_b")
    last_tile(g, 0, "a")
    last_tile(g, 1, "b")
    g.o += g.ool; g.ool = []
    g.lab("L_notiles")
    write_stats(g)
    ew_addrs(g)
    e(f"v_mov_b32 v{V_CNT}, 3")
    for idx in range(32): e(owrite(idx))
    g.lab("L_fin2")
    e(f"ds_write_b32 v{V_FIN}, v{V_CNT}")
    stamp(g, 4)
    e(f"s_cmp_eq_u32 s{S_ROLE}, 0")
    e("s_cbranch_scc1 L_red_a")
    e(f"s_cmp_eq_u32 s{S_ROLE}, 2")
    e("s_cbranch_scc1 L_red_c")
    for (t, n) in (("b", 2*a.hb_), ("a", 2*a.ha_), ("d", 2*a.hd_)):
        if t != "b": g.lab(f"L_red_{t}")
        if a.split:
            e(f"s_cmp_eq_u32 s{S_MODE}, 1")
            e(f"s_cbranch_scc1 L_reduce_{t}1")
            e(f"s_cmp_eq_u32 s{S_MODE}, 2")
            e(f"s_cbranch_scc1 L_reduce_{t}2")
        reduce_code(g, n, t, 0)
    if a.split:
        for m in (1, 2):
            for (t, n) in (("b", 2*a.hb_), ("a", 2*a.ha_), ("d", 2*a.hd_)): reduce_code(g, n, t, m)
    g.lab("L_red_c")
    if a.split:
        e(f"s_cmp_lg_u32 s{S_MODE}, 1")
        e("s_cbranch_scc1 L_out")
        g.lab("L_jobend")
        e("s_waitcnt vmcnt(0) lgkmcnt(0)")
        e("s_barrier")
        next_job(g)
        e(f"s_cmp_lg_u32 s{S_W}, 0")
        e("s_cbranch_scc1 L_cnext")
        e(f"s_lshl_b32 s{S_T1}, s{S_SLOT}, 2")
        e(f"v_mov_b32 v48, s{S_T1}")
        e("v_mov_b32 v49, 1")
        e("v_mov_b32 v50, 0")
        e("v_mov_b32 v51, 2")
        if not a.rel:
            e("s_mov_b64 exec, 1")
            e("global_store_dword v48, v49, s[28:29] sc1")
            e("s_mov_b64 exec, -1")
        e(f"ds_write_b32 v{V_FLAG}, v51")
        for k in range(1, 8): e(f"ds_write_b32 v{V_FLAG}, v50 offset:{256*k}")
        e(f"v_mov_b32 v{V_BT}, v{V_BT2}"); e(f"v_mov_b32 v{V_BT+1}, v{V_BT2+1}")
        for k in range(8): e(f"v_subrev_u32 v{V_DK+k}, s{S_HD}, v{V_DK+k}")
        e(f"v_mov_b32 v{V_PT}, 0")
        job_common(g)
        e("s_waitcnt lgkmcnt(0)")
        e("s_barrier")
        e("s_branch L_ljob")
        g.lab("L_cnext")
        e("s_barrier")
        if a.rel:
            e(f"s_cmp_lg_u32 s{S_ROLE}, {a.relrole}")
            e("s_cbranch_scc1 L_cjob")
            e("buffer_wbl2 sc1")
            e("v_mov_b32 v63, 1")
            e("s_waitcnt vmcnt(0)")
            e("s_mov_b64 exec, 1")
            e("global_store_dword v62, v63, s[28:29] sc1")
            e("s_mov_b64 exec, -1")
        e("s_branch L_cjob")
    g.lab("L_out")
    if a.dbg:
        e(f"s_cmp_lg_u32 s{S_W}, 0"); e("s_cbranch_scc1 L_end")
        e("s_waitcnt vmcnt(0)")
        e("s_memrealtime s[98:99]")
        e("s_getreg_b32 s100, hwreg(HW_REG_XCC_ID)")
        e("s_waitcnt lgkmcnt(0)")
        e("s_mov_b64 exec, 1")
        for r in (90, 92, 94, 96, 98): e(f"s_sub_u32 s{r}, s{r}, s88")
        e("s_and_b32 s100, s100, 15")
        def put(idx, sreg):
            e(f"v_mov_b32 v4, s{sreg}"); e(f"global_store_dword v2, v4, s[28:29] offset:{4*idx}"); e("s_nop 1")
        e("v_mov_b32 v2, 0")
        e("s_cmp_eq_u32 s2, 88"); e("s_cbranch_scc0 L_d1")
        put(8, 90); put(9, 92); put(10, 94); put(11, 100)
        g.lab("L_d1")
        e("s_cmp_eq_u32 s2, 200"); e("s_cbranch_scc0 L_d2")
        put(12, 96); put(13, 94)
        g.lab("L_d2")
        e("s_cmp_eq_u32 s2, 130"); e("s_cbranch_scc0 L_d3")
        put(14, 96); put(15, 98)
        g.lab("L_d3")
        e("s_lshr_b32 s101, s2, 3"); e("s_cmp_eq_u32 s101, 11"); e("s_cbranch_scc0 L_end")
        e("s_and_b32 s101, s2, 7"); e("s_lshl_b32 s101, s101, 2"); e("v_mov_b32 v2, s101")
        put(0, 98)
    elif stamps:
        e("s_waitcnt vmcnt(0)")
        e("s_memrealtime s[98:99]")
        if a.wstat:
            e("s_mov_b32 s90, s10"); e("s_mov_b32 s91, 0"); e("s_mov_b32 s92, s11"); e("s_mov_b32 s93, 0")
        e("s_getreg_b32 s100, hwreg(HW_REG_XCC_ID)")
        e("s_getreg_b32 s101, hwreg(HW_REG_HW_ID)")
        e("s_lshl_b32 s3, s2, 2")
        e(f"s_add_u32 s3, s3, s{S_W}")
        e("s_lshl_b32 s3, s3, 6")
        e("v_mov_b32 v2, s3")
        e("s_waitcnt lgkmcnt(0)")
        for k in range(6):
            e(f"v_mov_b32 v4, s{88+2*k}")
            e(f"v_mov_b32 v5, s{89+2*k}")
            e(f"global_store_dwordx2 v2, v[4:5], s[30:31] offset:{8*k}")
            e("s_nop 1")
        e("v_mov_b32 v4, 0"); e("v_mov_b32 v5, 0")
        e("global_store_dwordx2 v2, v[4:5], s[30:31] offset:48")
        e("s_nop 1")
        e("v_mov_b32 v4, s100"); e("v_mov_b32 v5, s101")
        e("global_store_dwordx2 v2, v[4:5], s[30:31] offset:56")
    if spin:
        e(f"s_add_u32 s88, s88, {spin*100}")
        e("s_addc_u32 s89, s89, 0")
        g.lab("L_spin")
        e("s_memrealtime s[90:91]")
        e("s_waitcnt lgkmcnt(0)")
        e("s_sub_u32 s92, s90, s88")
        e("s_subb_u32 s93, s91, s89")
        e("s_cmp_lt_i32 s93, 0")
        e("s_cbranch_scc1 L_spin")
    g.lab("L_end")
    e("s_endpgm")
    out += g.o
    out += ['.section .rodata,"a"', ".p2align 6", f".amdhsa_kernel {NAME}",
        "  .amdhsa_next_free_vgpr 384", "  .amdhsa_next_free_sgpr 102", "  .amdhsa_accum_offset 256",
        "  .amdhsa_group_segment_fixed_size 0", "  .amdhsa_kernarg_size 64", "  .amdhsa_user_sgpr_count 2",
        "  .amdhsa_user_sgpr_kernarg_segment_ptr 1", "  .amdhsa_system_sgpr_workgroup_id_x 1",
        ".end_amdhsa_kernel", ""]
    return "\n".join(out)

def parse():
    ap = argparse.ArgumentParser()
    ap.add_argument("-L", type=int, default=20)
    ap.add_argument("--lin", default="")
    ap.add_argument("--nt", default="nt")
    ap.add_argument("--bonus", type=int, default=0)
    ap.add_argument("--clast", type=int, default=2)
    ap.add_argument("--lead", type=int, default=5)
    ap.add_argument("--tab", default="")
    ap.add_argument("--res", type=int, default=2)
    ap.add_argument("--tf", type=float, default=1.0)
    ap.add_argument("--tmax", type=int, default=32)
    ap.add_argument("--dry", type=int, default=0)
    ap.add_argument("--pf", type=int, default=2)
    ap.add_argument("--theta", type=int, default=1850)
    ap.add_argument("--ahead", type=int, default=10)
    ap.add_argument("--pstep", type=int, default=3)
    ap.add_argument("--pfirst", type=int, default=10)
    ap.add_argument("--lv", type=int, default=40)
    ap.add_argument("--split", type=int, default=0)
    ap.add_argument("--t0", type=int, default=56)
    ap.add_argument("--thetal", type=int, default=1800)
    ap.add_argument("--hs", type=int, default=280)
    ap.add_argument("--impat", type=int, default=18)
    ap.add_argument("--burst", type=int, default=4)
    ap.add_argument("--hmap", type=int, default=2)
    ap.add_argument("--dbg", action="store_true")
    ap.add_argument("--e2", action="store_true")
    ap.add_argument("--x1", action="store_true")
    ap.add_argument("--early", type=int, default=0)
    ap.add_argument("--epub", type=int, default=0)
    ap.add_argument("--tight", type=int, default=0)
    ap.add_argument("--st2", action="store_true")
    ap.add_argument("--red", default="332")
    ap.add_argument("--rel", type=int, default=0)
    ap.add_argument("--relrole", type=int, default=2)
    ap.add_argument("--kmax", type=int, default=2400)
    ap.add_argument("--tlb", type=int, default=0)
    ap.add_argument("--tlbn", type=int, default=2)
    ap.add_argument("--hperm", default="76345210")
    ap.add_argument("--fine", type=float, default=19)
    ap.add_argument("--hpol", default="sc1")
    ap.add_argument("--cheat", type=int, default=0)
    ap.add_argument("--sigma", type=int, default=1700)
    ap.add_argument("--hb", type=int, default=150)
    ap.add_argument("--spin", type=int, default=0)
    ap.add_argument("--stamps", action="store_true")
    ap.add_argument("--estamps", action="store_true")
    ap.add_argument("--noload", action="store_true")
    ap.add_argument("--wstat", action="store_true")
    ap.add_argument("--stpol", default="")
    ap.add_argument("-o", default="standalone__paged_block_table_kv_pagedattention__sampling.s")
    a = ap.parse_args()
    a.hd_, a.ha_, a.hb_ = [int(c) for c in a.red]
    assert a.hd_ + a.ha_ + a.hb_ == 8 and max(a.ha_, a.hb_) <= 3 and a.hd_ <= 4
    if a.rel: a.hpol = ""
    if a.tab:
        a.table = [tuple(int(y) for y in x.split(":")) for x in a.tab.split(",")]
        a.table[0] = (0, a.table[0][1])
    elif a.lin:
        pts = [float(x) for x in a.lin.split(",")]
        tab = []
        for cl in range(1024, (a.kmax if a.split else 2048) + 1):
            u = (cl - 1024) / 1024.0 * (len(pts) - 1)
            k = min(int(u), len(pts) - 2)
            Lf = pts[k] + (pts[k+1] - pts[k]) * (u - k)
            res = 4 if Lf < a.fine else a.res
            L = int(round(res * Lf)) * (4 // res)
            L = max(8, min(4 * 34, L))
            if not tab or tab[-1][1] < L: tab.append((cl, L))
        tab[0] = (0, tab[0][1])
        a.table = tab
    else:
        a.table = [(0, 4 * a.L)]
    a.table.append((4096, 4 * a.lv))
    assert not a.split or a.theta > 32 * (a.t0 + 2)
    return a

if __name__ == "__main__":
    a = parse()
    LEAD = a.lead
    open(a.o, "w").write(build(a))
```
